```python
import torch

def _softmax(x, axis=-1):
    return torch.softmax(x, dim=axis)
def _gelu(x):
    return torch.nn.functional.gelu(x, approximate="tanh")
def _silu(x):
    return torch.nn.functional.silu(x)
def _sigmoid(x):
    return torch.sigmoid(x)
def _layernorm(x, axis=-1, eps=1e-5):
    m = x.mean(dim=axis, keepdim=True)
    v = x.var(dim=axis, keepdim=True, unbiased=False)
    return (x - m) / torch.sqrt(v + eps)
def _scatter_add(tgt, idx, src, axis=0):
    return tgt.clone().index_add_(axis, idx, src)
def _segment_sum(src, seg, n):
    out = torch.zeros((n,) + src.shape[1:], dtype=src.dtype)
    return out.index_add_(0, seg, src)
def _pad(x, pw):
    flat = tuple(v for pair in reversed(pw) for v in pair)
    return torch.nn.functional.pad(x, flat)

kernel_name = 'sequential_preLN__compressed_kv_cla__glu_gated_reglu__decode'

def setup_inputs():

    _w = (lambda a: (lambda t: t.to(torch.bfloat16) if t.is_floating_point() else t)(torch.as_tensor(a)))
    def _A_setup():
        B, H, Sq, Sk, D, M = 4, 32, 1, 4096, 128, 512
        Dc = 4 * D
        return {
            "x": _w((lambda *s: torch.randn(*s, dtype=torch.bfloat16) * 0.05)(B, Sq, M)),
            "c_kv": _w((lambda *s: torch.randn(*s, dtype=torch.bfloat16) * 0.8)(B, Sk, Dc)),
            "w_q": _w((lambda *s: torch.randn(*s, dtype=torch.bfloat16) * 1.6)(M, H, D) * (M ** -0.5)),
            "w_uk": _w((lambda *s: torch.randn(*s, dtype=torch.bfloat16) * 1.6)(Dc, H, D) * (Dc ** -0.5)),
            "w_uv": _w((lambda *s: torch.randn(*s, dtype=torch.bfloat16) * 0.8)(Dc, H, D) * (Dc ** -0.5)),
            "w_o": _w((lambda *s: torch.randn(*s, dtype=torch.bfloat16) * 0.8)(H, D, M) * ((H * D) ** -0.5)),
        }
    _A_in = _A_setup()

    def _B_setup():
        B, S, D, F = 4, 1, 512, 1792
        return {
            "x": _w((lambda *s: torch.randn(*s, dtype=torch.bfloat16) * 0.05)(B, S, D)),
            "W_gate": _w((lambda *s: torch.randn(*s, dtype=torch.bfloat16) * 0.4)(D, F) * (2.0 / D) ** 0.5),
            "W_up": _w((lambda *s: torch.randn(*s, dtype=torch.bfloat16) * 0.4)(D, F) * (2.0 / D) ** 0.5),
            "W_down": _w((lambda *s: torch.randn(*s, dtype=torch.bfloat16) * 0.4)(F, D) * (1.0 / F) ** 0.5),
        }
    _B_in = _B_setup()

    return {
        "A_x": _A_in["x"],
        "A_c_kv": _A_in["c_kv"],
        "A_w_q": _A_in["w_q"],
        "A_w_uk": _A_in["w_uk"],
        "A_w_uv": _A_in["w_uv"],
        "A_w_o": _A_in["w_o"],
        "B_x": _B_in["x"],
        "B_W_gate": _B_in["W_gate"],
        "B_W_up": _B_in["W_up"],
        "B_W_down": _B_in["W_down"],
    }

def reference(A_x, A_c_kv, A_w_q, A_w_uk, A_w_uv, A_w_o, B_x, B_W_gate, B_W_up, B_W_down):
    def _A_ref(x, c_kv, w_q, w_uk, w_uv, w_o):
        B, Sq, M = x.shape[0], x.shape[1], x.shape[2]
        Sk = c_kv.shape[1]
        H, D = w_q.shape[1], w_q.shape[2]
        q = torch.einsum("bqm,mhd->bhqd", x, w_q)
        k = torch.einsum("bkc,chd->bhkd", c_kv, w_uk)
        v = torch.einsum("bkc,chd->bhkd", c_kv, w_uv)
        scores = torch.einsum("bhqd,bhkd->bhqk", q, k) * (D ** -0.5)
        off = Sk - Sq
        qi = torch.arange(Sq)[:, None]
        kj = torch.arange(Sk)[None, :]
        cmask = kj <= (qi + off)
        scores = torch.where(cmask[None, None], scores, -1e9)
        p = _softmax(scores, axis=-1)
        ctx = torch.einsum("bhqk,bhkd->bhqd", p, v)
        return torch.einsum("bhqd,hdm->bqm", ctx, w_o)

    def _B_ref(x, W_gate, W_up, W_down):
        gate = torch.einsum("bsd,df->bsf", x, W_gate)
        up = torch.einsum("bsd,df->bsf", x, W_up)
        gate = gate * (lambda x, dt: x.to(dt))(gate > 0, gate.dtype)
        h = gate * up
        return torch.einsum("bsf,fd->bsd", h, W_down)

    x = A_x
    h = x + _A_ref(_layernorm(x, axis=-1), A_c_kv, A_w_q, A_w_uk, A_w_uv, A_w_o)
    h2 = h + _B_ref(_layernorm(h, axis=-1), B_W_gate, B_W_up, B_W_down)
    return h2
```

```python
import re

REG_RE = re.compile(r'\b([vsa])(?:(\d+)|\[(\d+):(\d+)\])')
TRANS = ('v_exp_f32', 'v_log_f32', 'v_rcp_f32', 'v_rsq_f32', 'v_sqrt_f32', 'v_sin_f32', 'v_cos_f32')


def regs_of(tok):
    out = set()
    for m in REG_RE.finditer(tok):
        k = m.group(1)
        if m.group(2) is not None:
            out.add((k, int(m.group(2))))
        else:
            for i in range(int(m.group(3)), int(m.group(4)) + 1):
                out.add((k, i))
    if re.search(r'\bvcc\b', tok):
        out.add(('s', 106)); out.add(('s', 107))
    if re.search(r'\bexec\b', tok):
        out.add(('s', 126)); out.add(('s', 127))
    if re.search(r'\bm0\b', tok):
        out.add(('s', 124))
    return out


class Ins:
    def __init__(self, text):
        self.text = text
        t = text.split(';')[0].strip()
        self.label = t.endswith(':')
        self.directive = t.startswith('.')
        self.empty = (t == '')
        parts = t.split(None, 1)
        self.op = parts[0] if parts else ''
        rest = parts[1] if len(parts) > 1 else ''
        ops, cur, depth = [], '', 0
        for ch in rest:
            if ch == '[': depth += 1
            if ch == ']': depth -= 1
            if ch == ',' and depth == 0:
                ops.append(cur.strip()); cur = ''
            else:
                cur += ch
        if cur.strip(): ops.append(cur.strip())
        self.ops = ops
        op = self.op
        self.is_mfma = op.startswith('v_mfma')
        self.is_valu = op.startswith('v_') and not self.is_mfma
        self.is_trans = any(op.startswith(x) for x in TRANS)
        self.is_dpp = '_dpp' in op
        self.is_perml = op.startswith('v_permlane')
        self.is_rdl = op.startswith('v_readlane') or op.startswith('v_readfirstlane')
        self.is_wrl = op.startswith('v_writelane')
        self.is_vmem = op.startswith('buffer_') or op.startswith('global_')
        self.is_ds = op.startswith('ds_')
        self.is_salu = op.startswith('s_')
        self.is_store = self.is_vmem and ('store' in op)
        self.is_lds_dma = self.is_vmem and re.search(r'\blds\b', rest) is not None
        self.is_dot = op.startswith('v_dot')
        self.wr, self.rd = set(), set()
        self.srcc = set(); self.srcab = set()
        if self.label or self.directive or self.empty:
            return
        if self.is_mfma:
            self.wr = regs_of(ops[0]); self.srcab = regs_of(ops[1]) | regs_of(ops[2]); self.srcc = regs_of(ops[3])
            self.rd = self.srcab | self.srcc
            self.passes = 8 if '32x32' in op else 4
        elif self.is_valu:
            self.wr = regs_of(ops[0])
            for o in ops[1:]: self.rd |= regs_of(o)
            if op.startswith('v_cmpx'):
                self.wr |= {('s', 126), ('s', 127)}
            if self.is_perml:
                self.wr |= regs_of(ops[1]); self.rd |= regs_of(ops[0])
            if op.startswith('v_fmac') or op.startswith('v_dot2c') or self.is_dpp or self.is_wrl:
                self.rd |= regs_of(ops[0])
            if op.startswith('v_add_co') or op.startswith('v_sub_co'):
                self.wr |= regs_of(ops[1])
        elif self.is_vmem:
            if self.is_store or self.is_lds_dma:
                for o in ops: self.rd |= regs_of(o)
                if self.is_lds_dma: self.rd.add(('s', 124))
            else:
                self.wr = regs_of(ops[0])
                for o in ops[1:]: self.rd |= regs_of(o)
        elif self.is_ds:
            if op.startswith('ds_write') or op.startswith('ds_add'):
                for o in ops: self.rd |= regs_of(o)
            else:
                self.wr = regs_of(ops[0])
                for o in ops[1:]: self.rd |= regs_of(o)
        elif self.is_salu:
            if op.startswith('s_cmp') or op.startswith('s_cbranch') or op.startswith('s_branch') or op in (
                    's_waitcnt', 's_nop', 's_barrier', 's_endpgm', 's_sleep', 's_setprio') or op.startswith('s_bitcmp'):
                for o in ops: self.rd |= regs_of(o)
            else:
                self.wr = regs_of(ops[0])
                for o in ops[1:]: self.rd |= regs_of(o)
                if 'saveexec' in op:
                    self.wr |= {('s', 126), ('s', 127)}

    def states(self):
        if self.label or self.directive or self.empty: return 0
        if self.op == 's_nop': return int(self.ops[0], 0) + 1
        return 1


def V(rs): return {r for r in rs if r[0] in 'va'}
def S(rs): return {r for r in rs if r[0] == 's'}
EXEC = {('s', 126), ('s', 127)}


def need(p, c):
    n = 0
    if p.is_valu:
        wv, ws = V(p.wr), S(p.wr)
        if c.is_mfma and (wv & c.rd): n = max(n, 2 if not p.is_dot else 3)
        if c.is_mfma and (ws & EXEC): n = max(n, 4)
        if c.is_dpp and (wv & c.rd): n = max(n, 2)
        if c.is_dpp and (ws & EXEC): n = max(n, 5)
        if c.is_perml and (wv & c.rd): n = max(n, 2)
        if c.is_perml and (ws & EXEC): n = max(n, 4)
        if c.is_rdl and (wv & c.rd): n = max(n, 1)
        if (c.is_rdl or c.is_wrl) and (ws & (S(c.rd) | EXEC)): n = max(n, 4)
        if c.is_valu and (ws & S(c.rd)): n = max(n, 2)
        if c.is_vmem and (ws & S(c.rd)): n = max(n, 5)
        if c.is_salu and (ws & S(c.rd)): n = max(n, 1)
        if p.is_trans and (c.is_valu or c.is_mfma or c.is_vmem or c.is_ds) and not c.is_trans and (wv & c.rd): n = max(n, 1)
        if p.is_trans and c.is_trans and (wv & c.rd): n = max(n, 1)
        if p.is_dot and (wv & (c.rd | c.wr)) and not (c.op == p.op): n = max(n, 3)
        if p.is_dot and c.op == p.op and (wv & (regs_of(c.ops[1]) | regs_of(c.ops[2]))): n = max(n, 3)
    if p.is_mfma:
        d = p.wr
        big = {4: 8, 8: 12}[p.passes]
        if c.is_mfma:
            if d & c.srcab: n = max(n, big)
            if d & c.srcc:
                if not (d == c.srcc and c.passes == p.passes): n = max(n, {4: 6, 8: 10}[p.passes])
            elif d & c.wr: n = max(n, big)
        elif (d & (c.rd | c.wr)): n = max(n, big)
        if c.is_valu and (p.srcc & c.wr): n = max(n, {4: 3, 8: 7}[p.passes])
    if p.is_salu and ('s', 124) in p.wr and c.is_lds_dma: n = max(n, 1)
    if p.is_store and ('x4' in p.op or 'x3' in p.op):
        data = regs_of(p.ops[0]) if p.op.startswith('buffer') else regs_of(p.ops[1])
        if data & c.wr: n = max(n, 2)
    return n


def pad_hazards(lines, window=14):
    out = []
    hist = []
    for ln in lines:
        c = Ins(ln)
        if not (c.label or c.directive or c.empty):
            dist = 0
            worst = 0
            for p in reversed(hist):
                if dist >= window: break
                if not (p.label or p.directive or p.empty):
                    r = need(p, c) - dist
                    if r > worst: worst = r
                dist += p.states()
            if worst > 0:
                nop = Ins('    s_nop %d' % (worst - 1))
                out.append(nop.text); hist.append(nop)
        out.append(ln); hist.append(c)
    return out


class Asm:
    def __init__(self):
        self.lines = []
        self.nlab = 0

    def __call__(self, s):
        for ln in s.strip('\n').split('\n'):
            ln = ln.strip()
            if not ln: continue
            self.lines.append(ln if ln.endswith(':') else '    ' + ln)

    def label(self, name): self.lines.append(name + ':')

    def newlab(self, base='L'):
        self.nlab += 1
        return '%s_%d' % (base, self.nlab)

    def text(self):
        return '\n'.join(pad_hazards(self.lines)) + '\n'


def vr(a, n=1):
    return 'v%d' % a if n == 1 else 'v[%d:%d]' % (a, a + n - 1)


def sr(a, n=1):
    return 's%d' % a if n == 1 else 's[%d:%d]' % (a, a + n - 1)
```

```python
import sys, math, struct
from asmlib import Asm, vr, sr

NAME = 'sequential_preLN__compressed_kv_cla__glu_gated_reglu__decode'
OPT = dict(ph0=0, ph1=6, ph15=6, rev=1, wukd=1, inf=0, pf=1, pf_nt=1, h3pre=1, kl=5, debug=0, prog0=28, prog1=24, ckv_nt=1, w_nt=1, limit=20000, ka=8, qsleep=8)
for a in sys.argv[2:]:
    k, v = a.split('='); OPT[k] = int(v)
DEBUG = OPT['debug']

H0A, H0B, H1, HS = 0x40000, 0x80000, 0xC0000, 0x100000
H4A, H4B = 0x120000, 0x130000
HCA, HCB = 0x140000, 0x180000
H3, H5, H2, DBG = 0xC00000, 0x200000, 0x400000, 0xA00000
WS_BYTES = 0x1000000
PITCH = 1056
L_P = 128 * PITCH
L_R = L_P + 4096
LDS_BYTES = 163840
L_WQ, L_WUK = 16 * PITCH, 48 * PITCH
L_QX = L_P + 2560
L_XC = L_P
L_XQ = L_R
def pad(row): return row * PITCH + 1024
L_MAX, L_QFLAG, L_PROG = pad(72), pad(96), pad(96) + 16
WP = 288
L_UV, L_WO, L_CS, L_OL, L_RED, L_WT = 0, 36864, 73728, 122880, 126976, 135168
L_G, L_U, L_D, L_FX = 0, 32768, 65536, 102400
sWV, sT, sE = 3, 4, 5
X, CKV, WQ, WUK, WUV, WO, WG, WU, WD, OUT, WS = 8, 12, 16, 20, 24, 28, 32, 36, 40, 44, 48
sH, sJ4, sB, sX8, sG, sPAIR, sV4, sR = 52, 53, 54, 55, 56, 57, 58, 59
sCNT, sA, sBt, sC, sD = 60, 61, 62, 63, 64
sP0, sP1, sP2, sP3 = 65, 66, 67, 68
sH2ST, sHSST, sFS = 72, 73, 74
sONES = 82
sST = 90
def srd(b): return sr(b, 4)
vL, vQ, vI, vB4, vU, vT = 1, 2, 3, 4, 5, 15
aL16, aVF0, aVF1, aP, aSR, aST, aSW = 228, 229, 230, 231, 233, 234, 252
aKF, aQF, aMXr, aMXw, aPw, aHS = 237, 238, 239, 240, 241, 242
vSTAMP = 255
NTC = ' nt' if OPT['ckv_nt'] else ''
NTW = ' nt' if OPT['w_nt'] else ''
def f32(x): return '0x%08x' % struct.unpack('<I', struct.pack('<f', x))[0]
A = Asm()

def stamp(i):
    if DEBUG:
        A(f'''s_memrealtime s[{sST}:{sST+1}]
              s_waitcnt lgkmcnt(0)
              v_writelane_b32 v{vSTAMP}, s{sST}, {i}''')
def stampcnt(i):
    if DEBUG: A(f's_add_u32 s{sST}, s{sCNT}, 1\nv_writelane_b32 v{vSTAMP}, s{sST}, {i}')

def endwave():
    if DEBUG:
        stamp(63)
        A(f's_memtime s[{sST}:{sST+1}]\ns_waitcnt lgkmcnt(0)\ns_sub_u32 s{sST}, s{sST}, s{sST+4}\nv_writelane_b32 v{vSTAMP}, s{sST}, 47')
        A(f'''s_mov_b64 exec, -1
              s_lshl_b32 s{sA}, s2, 3
              s_add_u32 s{sA}, s{sA}, s{sWV}
              s_lshl_b32 s{sA}, s{sA}, 8
              s_add_u32 s{sA}, s{sA}, {DBG}
              v_lshlrev_b32 v6, 2, v{vL}
              buffer_store_dword v{vSTAMP}, v6, {srd(WS)}, s{sA} offen''')
    A('s_endpgm')

def set_exec(mask32): A(f's_mov_b32 exec_lo, 0x{mask32:08x}\ns_mov_b32 exec_hi, 0x{mask32:08x}')
def full_exec(): A('s_mov_b64 exec, -1')

def check_tags(tags, tmp):
    acc, t1, t2 = tmp, tmp + 1, tmp + 2
    tags = list(tags)
    if len(tags) == 1:
        A(f'v_cmp_ne_u32 vcc, v{tags[0]}, v{vT}'); return
    if len(tags) % 2: tags.append(tags[-1])
    prs = [(tags[i], tags[i + 1]) for i in range(0, len(tags), 2)]
    A(f'v_bitop3_b32 v{acc}, v{prs[0][0]}, v{prs[0][1]}, v{vT} bitop3:0x7e')
    rest = prs[1:]
    while rest:
        if len(rest) >= 2:
            A(f'v_bitop3_b32 v{t1}, v{rest[0][0]}, v{rest[0][1]}, v{vT} bitop3:0x7e')
            A(f'v_bitop3_b32 v{t2}, v{rest[1][0]}, v{rest[1][1]}, v{vT} bitop3:0x7e')
            A(f'v_or3_b32 v{acc}, v{acc}, v{t1}, v{t2}')
            rest = rest[2:]
        else:
            A(f'v_bitop3_b32 v{t1}, v{rest[0][0]}, v{rest[0][1]}, v{vT} bitop3:0x7e')
            A(f'v_or_b32 v{acc}, v{acc}, v{t1}')
            rest = rest[1:]
    A(f'v_cmp_ne_u32 vcc, 0, v{acc}')

def poll(loads, tags, tmp, onfail='', between=None, late=None, pre_late=''):
    L, D = A.newlab('Lpoll'), A.newlab('Lpok')
    A(f's_mov_b32 s{sCNT}, 0')
    A(loads)
    if between: between()
    A.label(L)
    A('s_waitcnt vmcnt(0)')
    check_tags(tags, tmp)
    A(f'''s_cmp_eq_u64 vcc, 0
          s_cbranch_scc1 {D}
          s_add_u32 s{sCNT}, s{sCNT}, 1''')
    if late:
        l2 = A.newlab('Lnl')
        A(f's_cmp_lg_u32 s{sCNT}, {OPT["kl"]}\ns_cbranch_scc1 {l2}')
        late()
        A.label(l2)
    A(onfail)
    A(loads)
    A(f'''s_cmp_lt_u32 s{sCNT}, {OPT['limit']}
          s_cbranch_scc1 {L}
          s_waitcnt vmcnt(0)''')
    A.label(D)
    A(pre_late)
    if late: late()

def toggle(regs, x):
    lab = A.newlab('Lnt')
    return f's_cmp_lt_u32 s{sCNT}, {OPT["ka"]}\ns_cbranch_scc1 {lab}\n' + ''.join(f's_xor_b32 s{r}, s{r}, {x}\n' for r in regs) + f'{lab}:'

def lds_wait(addr, n, tmp):
    L, D = A.newlab('Llw'), A.newlab('Llok')
    A(f's_mov_b32 s{sCNT}, 0\nv_mov_b32 v{tmp+7}, {addr}')
    A.label(L)
    if n == 1:
        A(f'ds_read_b32 v{tmp}, v{tmp+7}\ns_waitcnt lgkmcnt(0)')
    else:
        A(f'ds_read_b128 {vr(tmp,4)}, v{tmp+7}\ns_waitcnt lgkmcnt(0)')
        A(f'v_bitop3_b32 v{tmp}, v{tmp}, v{tmp+1}, v{tmp+2} bitop3:0x80\nv_and_b32 v{tmp}, v{tmp}, v{tmp+3}')
    A(f'''v_cmp_ne_u32 vcc, -1, v{tmp}
          s_cmp_eq_u64 vcc, 0
          s_cbranch_scc1 {D}
          s_sleep 1
          s_add_u32 s{sCNT}, s{sCNT}, 1
          s_cmp_lt_u32 s{sCNT}, {OPT['limit']*8}
          s_cbranch_scc1 {L}''')
    A.label(D)

def make_tag():
    A(f'''s_waitcnt lgkmcnt(0)
          s_add_u32 s{sT}, s{sE}, 0x9e3779b9
          v_mov_b32 v{vT}, s{sT}''')

def swap_red(a, t, op, which):
    A(f'v_mov_b32 v{t}, v{a}\nv_permlane{which}_swap_b32 v{a}, v{t}\n{op} v{a}, v{a}, v{t}')
def row_red(a, op):
    for n in (1, 2, 4, 8):
        A(f'{op}_dpp v{a}, v{a}, v{a} row_ror:{n} row_mask:0xf bank_mask:0xf')

def mfma32(d, a, b, c=None):
    A(f'v_mfma_f32_16x16x32_bf16 {vr(d,4)}, {vr(a,4)}, {vr(b,4)}, {vr(d,4) if c is None else c}')

def sadd(dst, *terms):
    const = sum(t for t in terms if isinstance(t, int))
    first = True
    for t in terms:
        if isinstance(t, int): continue
        tgt = dst if first else sBt
        if len(t) == 3: A(f's_mul_i32 s{tgt}, s{t[0]}, {t[2]}')
        elif t[1] == 0:
            if first: A(f's_mov_b32 s{dst}, s{t[0]}')
            else: A(f's_add_u32 s{dst}, s{dst}, s{t[0]}'); continue
        else: A(f's_lshl_b32 s{tgt}, s{t[0]}, {t[1]}')
        if not first: A(f's_add_u32 s{dst}, s{dst}, s{sBt}')
        first = False
    if const: A(f's_add_u32 s{dst}, s{dst}, {const}')

if DEBUG: A(f's_memrealtime s[{sST+2}:{sST+3}]\ns_memtime s[{sST+4}:{sST+5}]')
A(f'''s_cmp_ge_u32 s2, 256
      s_cbranch_scc1 L_exit
      s_load_dwordx2 s[{CKV}:{CKV+1}], s[0:1], 8
      s_load_dwordx2 s[{X}:{X+1}], s[0:1], 0
      s_load_dwordx2 s[{WQ}:{WQ+1}], s[0:1], 16
      s_load_dwordx2 s[{WUK}:{WUK+1}], s[0:1], 24
      s_load_dwordx2 s[{WS}:{WS+1}], s[0:1], 96
      v_lshrrev_b32 v6, 6, v0
      v_and_b32 v{vL}, 63, v0
      v_readfirstlane_b32 s{sWV}, v6
      v_lshrrev_b32 v{vQ}, 4, v{vL}
      v_and_b32 v{vI}, 15, v{vL}
      v_and_b32 v{vB4}, 3, v{vL}
      v_lshrrev_b32 v{vU}, 2, v{vI}
      v_lshlrev_b32 v{aL16}, 4, v{vL}''')
for b, n in ((X, 4096), (CKV, 1 << 24), (WQ, 1 << 22), (WUK, 1 << 22), (WUV, 1 << 22), (WO, 1 << 22), (WG, 1835008),
             (WU, 1835008), (WD, 1835008), (OUT, 4096), (WS, WS_BYTES)):
    A(f's_mov_b32 s{b+2}, {n}\ns_mov_b32 s{b+3}, 0x00020000')
A(f'''s_and_b32 s{sX8}, s2, 7
      s_bfe_u32 s{sR}, s2, 0x40003
      s_and_b32 s{sC}, s{sR}, 3
      s_lshl2_add_u32 s{sH}, s{sX8}, s{sC}
      s_lshr_b32 s{sJ4}, s{sR}, 2
      s_lshl4_add_u32 s{sPAIR}, s{sX8}, s{sR}
      s_lshr_b32 s{sB}, s{sPAIR}, 5
      s_lshr_b32 s{sG}, s2, 7
      s_and_b32 s{sV4}, s{sWV}, 3
      s_mov_b32 s{sONES}, 0x3f803f80''')
if DEBUG: A(f'v_mov_b32 v{vSTAMP}, 0\ns_waitcnt lgkmcnt(0)\nv_writelane_b32 v{vSTAMP}, s{sST+2}, 62')
A(f'''s_waitcnt lgkmcnt(0)
      s_load_dword s{sE}, s[{WS}:{WS+1}], 0
      s_load_dwordx2 s[{WUV}:{WUV+1}], s[0:1], 32
      s_load_dwordx2 s[{WO}:{WO+1}], s[0:1], 40
      s_load_dwordx2 s[{WG}:{WG+1}], s[0:1], 56
      s_load_dwordx2 s[{WU}:{WU+1}], s[0:1], 64
      s_load_dwordx2 s[{WD}:{WD+1}], s[0:1], 72
      s_load_dwordx2 s[{OUT}:{OUT+1}], s[0:1], 80
      s_cmp_lt_u32 s{sWV}, 4
      s_cbranch_scc1 L_stream''')

XS, XF, TF, ACC, G1_, UF, XQ, XB = 16, 32, 80, 112, 120, 96, 128, 136
A(f'''s_setprio 3
      s_cmp_lg_u32 s{sWV}, 4
      s_cbranch_scc1 L_nox
      v_lshlrev_b32 v6, 10, v{vQ}
      v_lshl_add_u32 v6, v{vI}, 4, v6
      s_lshl_b32 s{sA}, s{sJ4}, 8''')
for k in range(4):
    A(f'buffer_load_dwordx4 {vr(XS+4*k,4)}, v6, {srd(X)}, s{sA} offen')
    if k < 3: A(f's_add_u32 s{sA}, s{sA}, 256\ns_and_b32 s{sA}, s{sA}, 1023')
A.label('L_nox')
A(f'''v_lshrrev_b32 v7, 3, v{vL}
      v_and_b32 v8, 7, v{vL}
      v_lshlrev_b32 v9, 1, v{vQ}
      v_xor_b32 v8, v8, v9
      v_lshlrev_b32 v8, 4, v8
      v_lshl_add_u32 v7, v7, 13, v8''')
sadd(sA, (sJ4, 20), (sV4, 18), (sH, 8), (sG, 7))
A(f's_lshl_b32 s{sC}, s{sV4}, 12')
for n in range(4):
    A(f's_add_u32 m0, s{sC}, {L_WQ + n*1024}')
    A(f'buffer_load_dwordx4 v7, {srd(WQ)}, s{sA} offen{NTW} lds')
    if n < 3: A(f's_add_u32 s{sA}, s{sA}, 0x10000')
A(f'''v_xor_b32 v7, v{vQ}, v{vI}
      v_lshlrev_b32 v7, 4, v7
      v_lshl_add_u32 v7, v{vQ}, 13, v7''')
sadd(sA, (sG, 21), (sJ4, 19), (sV4, 17), (sH, 8))
A(f's_mul_i32 s{sC}, s{sV4}, 4160')
if OPT['wukd']: A('s_waitcnt vmcnt(%d)' % (4 - OPT['wukd']))
for n in range(4):
    A(f's_add_u32 m0, s{sC}, {L_WUK + n*1040}')
    A(f'buffer_load_dwordx4 v7, {srd(WUK)}, s{sA} offen{NTW} lds')
    if n < 3: A(f's_add_u32 s{sA}, s{sA}, 0x8000')
sadd(sP0, (sH, 13), H0A)
sadd(sA, (sG, 12), (sJ4, 10), (sV4, 8), (sP0, 0))
A(f'''v_and_b32 v8, 1, v{vL}
      v_lshlrev_b32 v8, 7, v8
      buffer_load_dword v200, v8, {srd(WS)}, s{sA} offen sc1
      s_setprio 0''')
stamp(0)
A(f'''v_lshl_add_u32 v8, v{vQ}, 2, v{vU}
      v_bfe_u32 v9, v8, 1, 2
      v_xor_b32 v9, s{sV4}, v9
      v_lshlrev_b32 v9, 5, v9
      v_lshl_add_u32 v9, v8, 7, v9
      v_lshl_add_u32 v9, v{vB4}, 3, v9
      v_mul_u32_u24 v14, 272, v{vB4}
      v_lshl_add_u32 v14, v{vQ}, 3, v14
      v_add_u32 v14, {L_XC}, v14
      v_lshlrev_b32 v11, 8, v{vQ}
      v_lshl_add_u32 v11, v{vB4}, 4, v11''')
sadd(sP1, (sG, 12), (sV4, 10), (sJ4, 6), (sP0, 0))
A(f's_xor_b32 s{sP3}, s{sP1}, {H0A ^ H0B}')
sadd(sP0, (sP0, 0), (sV4, 11))
A(f'''v_mul_u32_u24 v8, 1040, v{vU}
      v_lshl_add_u32 v8, v{vB4}, 8, v8
      v_and_b32 v10, 1, v{vQ}
      v_lshl_add_u32 v8, v10, 3, v8
      v_add_u32 v8, s{sC}, v8
      v_lshrrev_b32 v10, 1, v{vQ}
      v_xor_b32 v10, v10, v{vB4}
      v_xor_b32 v124, 2, v10
      v_lshl_add_u32 v10, v10, 4, v8
      v_lshl_add_u32 v124, v124, 4, v8
      v_add_u32 v125, {L_XQ}, v{aL16}
      s_lshl_b32 s{sA}, s{sV4}, 10
      v_add_u32 v126, s{sA}, v125
      v_lshlrev_b32 v127, 4, v{vQ}
      v_lshl_add_u32 v127, v{vB4}, 16, v127''')
sadd(sP2, (sH, 11), (sG, 10), (sJ4, 8), (sV4, 6), H1)
make_tag()
for k in range(4): A(f'v_mov_b32 v{G1_+k}, s{sT}')
A(f'v_mov_b32 v118, s{sT}\nv_mov_b32 v119, s{sT}')
A(f's_cmp_lg_u32 s{sWV}, 4\ns_cbranch_scc1 L_noln\ns_waitcnt vmcnt(9)\nv_mov_b32 v12, 0')
for k in range(16): A(f'v_dot2c_f32_bf16 v12, s{sONES}, v{XS+k}')
A(f'v_mul_u32_u24 v6, 272, v{vQ}\nv_lshl_add_u32 v6, v{vI}, 4, v6\nv_add_u32 v6, {L_XC}, v6')
row_red(12, 'v_add_f32')
A(f'v_mul_f32 v12, {f32(-1.0/512)}, v12\nv_mov_b32 v13, v12\nv_mov_b32 v44, 0\nv_mov_b32 v45, 0')
for k in range(16):
    t = 48 + 2 * k
    A(f'''v_lshlrev_b32 v{t}, 16, v{XS+k}
          v_and_b32 v{t+1}, 0xffff0000, v{XS+k}
          v_pk_add_f32 {vr(t,2)}, {vr(t,2)}, v[12:13]''')
    if k < 4: A(f'v_cvt_pk_bf16_f32 v{40+k}, v{t}, v{t+1}')
    if k == 3: A('ds_write_b128 v6, v[40:43]')
    A(f'v_pk_fma_f32 v[44:45], {vr(t,2)}, {vr(t,2)}, v[44:45]')
A('v_add_f32 v12, v44, v45')
row_red(12, 'v_add_f32')
A(f'''v_mov_b32 v13, {f32(1e-5)}
      v_fmac_f32 v13, {f32(1.0/512)}, v12
      v_rsq_f32 v12, v13
      v_lshlrev_b32 v6, 2, v{vQ}
      v_add_u32 v6, {L_XC+2048}, v6
      v_mul_f32 v12, {f32(128**-0.5*math.log2(math.e))}, v12
      ds_write_b32 v6, v12
      s_waitcnt lgkmcnt(0)''')
stamp(21)
A.label('L_noln')
A(f'''v_lshlrev_b32 v6, 2, v{vB4}
      v_add_u32 v6, {L_XC+2048}, v6
      s_waitcnt vmcnt(5)''')
stamp(1)
A('s_barrier')
for s in range(4):
    for hf in range(2):
        A(f'ds_read_b64 {vr(XF+4*s+2*hf,2)}, v14 offset:{64*s + 32*hf}')
        A(f'ds_read_b64_tr_b16 {vr(TF+4*s+2*hf,2)}, v9 offset:{L_WQ + s*4096 + hf*2048}')
A(f's_bitcmp1_b32 s{sV4}, 0')
for s in range(4):
    A(f's_waitcnt lgkmcnt({12-4*s})')
    mfma32(ACC, TF + 4 * s, XF + 4 * s, '0' if s == 0 else None)
A(f'''ds_read_b32 v12, v6
      s_cbranch_scc1 L_s1odd
      s_nop 5
      v_cvt_pk_bf16_f32 v{G1_+2}, v{ACC}, v{ACC+1}
      v_cvt_pk_bf16_f32 v{G1_+3}, v{ACC+2}, v{ACC+3}
      s_branch L_s1done''')
A.label('L_s1odd')
A(f'''s_nop 5
      v_cvt_pk_bf16_f32 v{G1_}, v{ACC}, v{ACC+1}
      v_cvt_pk_bf16_f32 v{G1_+1}, v{ACC+2}, v{ACC+3}''')
A.label('L_s1done')
set_exec(0x000f000f)
A(f'buffer_store_dwordx4 {vr(G1_,4)}, v11, {srd(WS)}, s{sP1} offen')
full_exec()
stamp(2)
A('s_waitcnt vmcnt(1)')
for s in range(4):
    A(f'ds_read_b64 {vr(UF+4*s,2)}, v10 offset:{L_WUK + s*64}')
    A(f'ds_read_b64 {vr(UF+4*s+2,2)}, v124 offset:{L_WUK + s*64}')
def fb0():
    set_exec(0x000f000f)
    A(f'buffer_store_dwordx4 {vr(G1_,4)}, v11, {srd(WS)}, s{sP3} offen sc1')
    full_exec()
poll(f'''buffer_load_dwordx4 {vr(XQ,4)}, v{aL16}, {srd(WS)}, s{sP0} offen sc1
         buffer_load_dwordx4 {vr(XQ+4,4)}, v{aL16}, {srd(WS)}, s{sP0} offen offset:1024 sc1''',
     [XQ, XQ + 7], 44, onfail=toggle([sP0], H0A ^ H0B), late=fb0, pre_late=f'ds_write_b128 v126, {vr(XQ+2,4)}')
stampcnt(40)
stamp(3)
A('s_waitcnt lgkmcnt(0)\ns_barrier')
for s in range(4): A(f'ds_read_b128 {vr(XB+4*s,4)}, v125 offset:{1024*s}')
for s in range(4):
    A(f's_waitcnt lgkmcnt({3-s})')
    mfma32(ACC, UF + 4 * s, XB + 4 * s, '0' if s == 0 else None)
for r in range(4): A(f'v_add_f32_dpp v{ACC+r}, v{ACC+r}, v{ACC+r} row_ror:4 row_mask:0xf bank_mask:0xf')
for r in range(4): A(f'v_add_f32_dpp v{ACC+r}, v{ACC+r}, v{ACC+r} row_ror:8 row_mask:0xf bank_mask:0xf')
for r in range(4): A(f'v_mul_f32 v{ACC+r}, v12, v{ACC+r}')
set_exec(0x000f000f)
A(f'v_cvt_pk_bf16_f32 v116, v{ACC}, v{ACC+1}\nv_cvt_pk_bf16_f32 v117, v{ACC+2}, v{ACC+3}')
A(f'buffer_store_dwordx4 v[116:119], v127, {srd(WS)}, s{sP2} offen sc1')
full_exec()
A('s_barrier')
stamp(4)
A('s_branch L_qgather')

VF, PF, PA, OW, LA, ONES = 16, 80, 96, 112, 216, 220
RB = PF
def common_addr():
    A(f'''v_lshl_add_u32 v{aVF0}, v{vQ}, 2, v{vU}
          v_mul_u32_u24 v{aVF0}, {PITCH}, v{aVF0}
          v_lshl_add_u32 v{aVF0}, v{vB4}, 3, v{aVF0}
          s_lshl_b32 s{sA}, s{sWV}, 7
          v_add_u32 v{aVF0}, s{sA}, v{aVF0}
          v_add_u32 v{aVF1}, {64*PITCH}, v{aVF0}
          v_add_u32 v{aP}, {L_P}, v{aL16}
          s_mul_i32 s{sA}, s{sWV}, 3072
          s_add_u32 s{sA}, s{sA}, {L_R}
          v_add_u32 v{aSR}, s{sA}, v{aL16}
          v_mul_u32_u24 v9, 192, v{vI}
          v_add_u32 v9, s{sA}, v9
          v_lshrrev_b32 v10, 1, v{vI}''')
    for k in range(3):
        A(f'''v_mad_u32_u24 v6, v{vQ}, 3, {k}
              v_add_u32 v7, v6, v10
              v_bfi_b32 v6, 3, v7, v6
              v_lshl_add_u32 v{aSW+k}, v6, 4, v9
              v_add_u32 v6, {64*k}, v{vL}
              v_mul_u32_u24 v7, 171, v6
              v_lshrrev_b32 v7, 11, v7
              v_lshrrev_b32 v11, 1, v7
              v_sub_u32 v11, v6, v11
              v_bfi_b32 v6, 3, v11, v6
              v_mul_u32_u24 v7, {8*128*192 - 192}, v7
              v_lshl_add_u32 v{aST+k}, v6, 4, v7''')
    sadd(sH2ST, (sG, 14), (sWV, 7), (sPAIR, 0))
    A(f's_mul_i32 s{sH2ST}, s{sH2ST}, 192\ns_add_u32 s{sH2ST}, s{sH2ST}, {H2}')
def v_reads(s):
    for ct in range(4):
        for hf in range(2):
            A(f'ds_read_b64_tr_b16 {vr(VF+(s*4+ct)*4+2*hf,2)}, v{aVF0+(s>>1)} offset:{(s&1)*32*PITCH + hf*16*PITCH + ct*32}')
def p_reads():
    for s in range(4): A(f'ds_read_b128 {vr(PF+4*s,4)}, v{aP} offset:{1024*s}')
def ow_tags():
    for k in range(3): A(f'v_mov_b32 v{OW+4*k+3}, s{sT}')
    A(f'v_mov_b32 v{OW+10}, 0')

A.label('L_stream')
KF0, QF, KF1, SA, vM = 16, 80, 144, 208, 12
common_addr()
A(f'''v_mul_u32_u24 v8, {PITCH}, v{vI}
      v_add_u32 v{aMXr}, {L_MAX}, v8
      s_lshl_b32 s{sA}, s{sV4}, 2
      v_add_u32 v{aMXw}, s{sA}, v{aMXr}
      v_lshl_add_u32 v8, v{vQ}, 4, v8
      s_mul_i32 s{sA}, s{sV4}, {32*PITCH}
      v_add_u32 v{aKF}, s{sA}, v8
      v_add_u32 v{aQF}, {L_R}, v8
      s_lshl_b32 s{sA}, s{sV4}, 10
      v_add_u32 v{aPw}, s{sA}, v{aP}
      v_lshlrev_b32 v{aHS}, 11, v{vI}
      v_and_b32 v8, 7, v{vL}
      v_lshlrev_b32 v8, 2, v8
      v_add_u32 v8, {L_QFLAG}, v8
      v_mov_b32 v9, 0
      ds_write_b32 v8, v9
      v_mov_b32 v9, -1
      v_mov_b32 v8, {L_PROG}''')
for k in range(4): A(f'v_mov_b32 v{ONES+k}, s{sONES}')
sadd(sHSST, (sG, 15), (sPAIR, 4), HS)
if OPT['rev']:
    sadd(sA, (sPAIR, 17), (sV4, 15), (sG, 'mul', 31 * 1024))
    A(f's_cmp_eq_u32 s{sG}, 0\ns_cselect_b32 s{sC}, 1, -1\ns_lshl_b32 s{sC}, s{sC}, 10')
else:
    sadd(sA, (sPAIR, 17), (sV4, 15))
    A(f's_movk_i32 s{sC}, 1024')
A(f'''s_mul_i32 m0, s{sV4}, {32*PITCH}
      s_mov_b32 s{sCNT}, 0''')
def sloop(lab, lim, thr=0):
    A.label(lab)
    A(f'''buffer_load_dwordx4 v{aL16}, {srd(CKV)}, s{sA} offen{NTC} lds
          s_add_u32 s{sA}, s{sA}, s{sC}
          s_add_u32 m0, m0, {PITCH}
          s_add_u32 s{sCNT}, s{sCNT}, 1''')
    if thr: A(f's_waitcnt vmcnt({thr-1})')
    A(f'''s_cmp_lt_u32 s{sCNT}, {lim}
          s_cbranch_scc1 {lab}''')
n0 = OPT['ph0']; n1 = n0 + OPT['ph1']; n2 = n1 + OPT['ph15']
assert n1 <= 16 and n2 < OPT['prog0']
if OPT['ph0']: sloop('L_sl0', str(n0))
make_tag()
A(f'v_mov_b32 v14, s{sT}')
stamp(0)
A('s_barrier')
if OPT['ph1']: sloop('L_sl01', str(n1))
A('s_barrier')
if OPT['ph15']: sloop('L_sl05', str(n2))
stamp(3)
A('s_barrier')
sloop('L_sl1', str(OPT['prog0']), OPT['inf'])
A('ds_write_b32 v8, v9')
stamp(5)
if OPT['prog0'] < 32: sloop('L_sl2', '32', OPT['inf'])
stamp(6)
A('s_waitcnt vmcnt(16)')
for s in range(16): A(f'ds_read_b128 {vr(KF0+4*s,4)}, v{aKF} offset:{64*s}')
stamp(7)
lds_wait(L_QFLAG, 4, 244)
stamp(8)
for s in range(16): A(f'ds_read_b128 {vr(QF+4*s,4)}, v{aQF} offset:{64*s}')
for s in range(16):
    A(f's_waitcnt lgkmcnt({15-s})')
    mfma32(SA, KF0 + 4 * s, QF + 4 * s, '0' if s == 0 else None)
A('s_waitcnt vmcnt(0)')
stamp(9)
for s in range(16): A(f'ds_read_b128 {vr(KF1+4*s,4)}, v{aKF} offset:{16*PITCH + 64*s}')
A(f'v_max3_f32 v{vM}, v{SA}, v{SA+1}, v{SA+2}\nv_max_f32 v{vM}, v{vM}, v{SA+3}')
for s in range(16):
    A(f's_waitcnt lgkmcnt({15-s})')
    mfma32(SA + 4, KF1 + 4 * s, QF + 4 * s, '0' if s == 0 else None)
ow_tags()
A(f'v_max3_f32 v{vM}, v{vM}, v{SA+4}, v{SA+5}\nv_max3_f32 v{vM}, v{vM}, v{SA+6}, v{SA+7}')
swap_red(vM, 13, 'v_max_f32', 16)
swap_red(vM, 13, 'v_max_f32', 32)
stamp(23)
A(f'''ds_write_b32 v{aMXw}, v{vM}
      s_waitcnt lgkmcnt(0)
      s_barrier
      ds_read_b128 v[244:247], v{aMXr}
      s_waitcnt lgkmcnt(0)
      v_max3_f32 v{vM}, v244, v245, v246
      v_max_f32 v{vM}, v{vM}, v247''')
for k in range(8): A(f'v_sub_f32 v{SA+k}, v{SA+k}, v{vM}')
for k in range(8): A(f'v_exp_f32 v{SA+k}, v{SA+k}')
for k in range(4): A(f'v_cvt_pk_bf16_f32 v{244+k}, v{SA+2*k}, v{SA+2*k+1}')
A(f'ds_write_b128 v{aPw}, v[244:247]\ns_waitcnt lgkmcnt(0)\ns_barrier')
stamp(10)
p_reads()
v_reads(0)
A(f's_cmp_lg_u32 s{sWV}, 0\ns_cbranch_scc1 L_nol\ns_waitcnt lgkmcnt(8)')
for s in range(4): mfma32(LA, ONES, PF + 4 * s, '0' if s == 0 else None)
A.label('L_nol')
for s in range(4):
    if s < 3:
        if s == 0: A('s_waitcnt lgkmcnt(4)')
        v_reads(s + 1)
        A('s_waitcnt lgkmcnt(8)')
    else:
        A('s_waitcnt lgkmcnt(0)')
    for ct in range(4): mfma32(PA + 4 * ct, VF + (s * 4 + ct) * 4, PF + 4 * s, '0' if s == 0 else None)
    if s == 0:
        A(f'''s_cbranch_scc1 L_nolse
              v_mov_b32 v13, v{LA}
              s_mov_b64 exec, 0xffff
              buffer_store_dwordx4 v[12:15], v{aHS}, {srd(WS)}, s{sHSST} offen sc1
              s_mov_b64 exec, -1''')
        A.label('L_nolse')
A('s_branch L_pvout')

A.label('L_qgather')
QG, WR = 16, 124
common_addr()
A(f's_lshl1_add_u32 s{sC}, s{sB}, s{sG}')
sadd(sP0, (sC, 15), (sV4, 13), H1)
A(f'''s_add_u32 s{sP1}, s{sP0}, 0x1000
      s_mul_i32 s{sA}, s{sV4}, {4*PITCH}
      s_add_u32 s{sA}, s{sA}, {L_R}
      v_lshlrev_b32 v11, 3, v{vL}
      v_add_u32 v11, s{sA}, v11
      s_lshl_b32 s{sA}, s{sV4}, 2
      s_add_u32 s{sA}, s{sA}, {L_QFLAG}
      v_mov_b32 v12, s{sA}
      v_and_b32 v9, 1, v{vL}
      v_lshlrev_b32 v9, 7, v9
      v_lshrrev_b32 v13, 1, v{vL}
      v_lshl_add_u32 v10, v13, 10, v9
      v_lshl_add_u32 v9, v13, 13, v9''')
ow_tags()
sadd(sP2, (sJ4, 20), (sV4, 18), (sH, 8))
sadd(sP3, (sH, 17), (sV4, 15), (sJ4, 8))
sadd(sA, (sH, 13), (sJ4, 11), (sV4, 9), HCA)
sadd(sC, (sH, 11), (sV4, 9), HS)
A(f'''s_cmp_lg_u32 s{sG}, 0
      s_cbranch_scc1 L_nopre
      v_lshlrev_b32 v8, 7, v{vB4}
      buffer_load_dword v47, v8, {srd(WS)}, s{sA} offen sc1
      buffer_load_dword v46, v8, {srd(WS)}, s{sC} offen sc1''')
A.label('L_nopre')
lds_wait(L_PROG, 1, 48)
stamp(5)
loads = ''.join(f'buffer_load_dwordx4 {vr(QG+4*k,4)}, v{aL16}, {srd(WS)}, s{sP0+(k>>2)} offen offset:{(k&3)*1024} sc1\n' for k in range(8))
poll(loads, [QG + 4 * k + 3 for k in range(8)], 48, onfail=f's_sleep {OPT["qsleep"]}')
for k in range(8): A(f'ds_write_b64 v11, {vr(QG+4*k,2)} offset:{(k>>1)*PITCH + (k&1)*512}')
A('v_mov_b32 v48, -1\ns_waitcnt lgkmcnt(0)\nds_write_b32 v12, v48')
stampcnt(41)
stamp(8)
NTP = ' nt' if OPT['pf_nt'] else ''
A(f'''s_cmp_lg_u32 s{sG}, 0
      s_cbranch_scc1 L_nolate
      buffer_load_dword v124, v9, {srd(WUV)}, s{sP2} offen{NTP}
      s_branch L_late_done''')
A.label('L_nolate')
A(f'buffer_load_dword v124, v10, {srd(WO)}, s{sP3} offen{NTP}')
A.label('L_late_done')
stamp(9)
A('s_waitcnt lgkmcnt(0)\ns_barrier')
for s in range(4): v_reads(s)
A('s_barrier')
stamp(10)
p_reads()
for s in range(4):
    A(f's_waitcnt lgkmcnt({3-s})')
    for ct in range(4): mfma32(PA + 4 * ct, VF + (s * 4 + ct) * 4, PF + 4 * s, '0' if s == 0 else None)

A.label('L_pvout')
stamp(22)
A('s_nop 4')
for dd in range(8):
    A(f'v_cvt_pk_bf16_f32 v{OW + (dd//3)*4 + dd%3}, v{PA+2*dd}, v{PA+2*dd+1}')
    if dd in (2, 5, 7): A(f'ds_write_b128 v{aSW+dd//3}, {vr(OW+4*(dd//3),4)}')
A('s_waitcnt lgkmcnt(0)')
for k in range(3): A(f'ds_read_b128 {vr(RB+4*k,4)}, v{aSR} offset:{1024*k}')
for k in range(3):
    A(f's_waitcnt lgkmcnt({2-k})')
    A(f'buffer_store_dwordx4 {vr(RB+4*k,4)}, v{aST+k}, {srd(WS)}, s{sH2ST} offen sc1')
stamp(11)
A(f's_cmp_lg_u32 s{sG}, 0\ns_cbranch_scc1 L_g1tail')

UVF, OF = 16, 32
LS, WF, CF, CA, OLW = 48, 52, 76, 100, 120
aX = 243
A(f'''v_lshlrev_b32 v7, 1, v{vQ}
      v_xor_b32 v7, v7, v{vI}
      v_lshlrev_b32 v7, 4, v7
      v_lshl_add_u32 v8, v{vQ}, 10, v7
      v_lshl_add_u32 v7, v{vQ}, 13, v7''')
sadd(sA, (sJ4, 20), (sWV, 17), (sH, 8))
sadd(sC, (sH, 17), (sWV, 14), (sJ4, 8))
A(f's_mul_i32 s{sD}, s{sWV}, {4*1152}')
A('s_barrier')
for n in range(4):
    A(f's_add_u32 m0, s{sD}, {L_UV + n*1152}')
    A(f'buffer_load_dwordx4 v7, {srd(WUV)}, s{sA} offen{NTW} lds')
    A(f's_add_u32 m0, s{sD}, {L_WO + n*1152}')
    A(f'buffer_load_dwordx4 v8, {srd(WO)}, s{sC} offen{NTW} lds')
    if n < 3: A(f's_add_u32 s{sA}, s{sA}, 0x8000\ns_add_u32 s{sC}, s{sC}, 0x1000')
stamp(12)
A(f'''v_bfe_u32 v6, v{vL}, 2, 1
      v_lshlrev_b32 v{aX}, 10, v{vB4}
      v_lshl_add_u32 v{aX}, v6, 5, v{aX}
      s_cmp_ge_u32 s{sWV}, 4
      s_cbranch_scc1 L_dumped''')
SEL, RA, HV, RD = 192, 196, 200, 160
H3PRE = f'v_and_b32 v7, 31, v{vL}\nv_lshlrev_b32 v7, 7, v7\nbuffer_load_dword v206, v7, {srd(WS)}, s{sP3} offen sc1\n' if OPT['h3pre'] else ''
A(f's_lshl2_add_u32 s{sFS}, s{sR}, s{sWV}')
sadd(sP3, (sFS, 12), (sX8, 18), H3)
sadd(75, (sR, 6), (sWV, 3))
A(f'''      buffer_load_dwordx2 v[204:205], v{aX}, {srd(X)}, s75 offen
{H3PRE}      v_cmp_eq_u32 s[70:71], 1, v6
      v_and_b32 v9, 1, v{vB4}
      v_lshlrev_b32 v9, 4, v9
      v_mov_b32 v10, 0x3f80
      v_lshlrev_b32 v10, v9, v10
      v_cmp_gt_u32 vcc, 2, v{vB4}
      v_cndmask_b32 v{SEL}, 0, v10, vcc
      v_cndmask_b32 v{SEL+1}, v10, 0, vcc
      v_mov_b32 v{SEL+2}, v{SEL}
      v_mov_b32 v{SEL+3}, v{SEL+1}''')
A.label('L_dumped')
aLS, aCW, aCT, aOL, aWTw, aWTr, aHCs, aHCl, aRDw, aH3 = 229, 230, 231, 232, 233, 234, 235, 236, 237, 238
sadd(sP0, (sH, 11), (sV4, 9), HS)
A(f's_lshl2_add_u32 s{sC}, s{sH}, s{sJ4}\ns_lshl3_add_u32 s{sC}, s{sC}, s{sWV}')
sadd(sP1, (sC, 'mul', 6144), H2)
A(f'''s_add_u32 s{sP2}, s{sP1}, 0x1000
      v_and_b32 v6, 31, v{vL}
      v_lshlrev_b32 v{aLS}, 4, v6
      s_mul_i32 s{sA}, s{sWV}, 6144
      s_add_u32 s{sA}, s{sA}, {L_CS}
      s_mov_b32 s85, s{sA}
      s_mov_b32 s86, 0xcccccccc
      s_mov_b32 s87, 0xcccccccc
      s_pack_ll_b32_b16 s88, s{sT}, s{sT}
      s_pack_hh_b32_b16 s89, s{sT}, s{sT}
      v_mov_b32 v{aCW}, s88
      v_mov_b32 v7, s89
      v_cmp_eq_u32 vcc, 3, v{vB4}
      v_cndmask_b32 v{aCW}, v{aCW}, v7, vcc
      v_mul_u32_u24 v{aCT}, 48, v{vL}
      v_add_u32 v{aCT}, s{sA}, v{aCT}
      v_add_u32 v{aOL}, {L_OL}, v{aL16}
      s_lshl_b32 s{sA}, s{sWV}, 6
      s_add_u32 s{sA}, s{sA}, {L_WT}
      v_lshl_add_u32 v{aWTw}, v6, 1, s{sA}
      v_lshl_add_u32 v{aWTr}, v{vQ}, 3, s{sA}
      v_lshlrev_b32 v{aHCs}, 8, v{vQ}
      v_lshl_add_u32 v{aHCs}, v{vB4}, 4, v{aHCs}
      s_lshr_b32 s{sC}, s{sWV}, 1
      s_and_b32 s{sD}, s{sWV}, 1''')
sadd(76, (sH, 13), (sC, 11), HCA)
sadd(77, (sJ4, 6), (sD, 10), (76, 0))
A(f's_xor_b32 s78, s77, {HCA ^ HCB}')
sadd(sA, (sD, 12), (sC, 10), L_RED)
A(f'''v_add_u32 v{aRDw}, s{sA}, v{aL16}
      v_lshrrev_b32 v6, 1, v{vU}
      v_lshl_add_u32 v6, v6, 2, v{vQ}
      v_lshlrev_b32 v{aH3}, 12, v6
      v_and_b32 v6, 7, v{vL}
      v_lshl_add_u32 v{aH3}, v6, 4, v{aH3}''')
A(f's_and_b32 s{sA}, s{sC}, 1')
sadd(79, (sA, 20), (sJ4, 16), (sD, 15), (sH, 7), H3)
sadd(80, (sD, 12), L_RED)
A(f'''v_mul_u32_u24 v6, 1152, v{vQ}
      v_lshl_add_u32 v6, v{vU}, 8, v6
      v_lshl_add_u32 v6, v{vB4}, 3, v6
      v_xor_b32 v7, s{sWV}, v{vU}
      v_lshl_add_u32 v7, v7, 5, v6''')
sadd(sA, (sC, 'mul', 8 * 1152), (sD, 7), L_WO)
A(f'v_add_u32 v6, s{sA}, v6')
for t in range(4):
    A(f'v_xor_b32 v{10+t}, {t}, v{vU}\nv_lshl_add_u32 v{10+t}, v{10+t}, 5, v6')
A(f'''s_nop 0
      s_lshl_b32 s84, 0x11111111, s{sV4}
      s_lshr_b32 s{sA}, s{sWV}, 2
      s_lshl_b32 s{sA}, s{sA}, 11
      v_add_u32 v9, s{sA}, v{aOL}''')
W4, G4 = 128, 144
A(f'v_add_u32 v{aHCl}, s80, v{aL16}')
for k in (0, 1, 4, 5): A(f'v_mov_b32 v{W4+k}, s{sT}')
for k in range(4): A(f'v_mov_b32 v{G4+k}, s{sT}')
A('s_waitcnt vmcnt(0)\ns_barrier')
for s in range(4):
    for hf in range(2):
        A(f'ds_read_b64_tr_b16 {vr(UVF+4*s+2*hf,2)}, v7 offset:{L_UV + (8*s+4*hf)*1152}')
for t in range(4):
    for hf in range(2):
        A(f'ds_read_b64_tr_b16 {vr(OF+4*t+2*hf,2)}, v{10+t} offset:{4*hf*1152}')
stamp(13)
poll(f'buffer_load_dwordx4 {vr(LS,4)}, v{aLS}, {srd(WS)}, s{sP0} offen sc1', [LS + 3], 136)
stampcnt(42)
stamp(14)
def wmath():
    A(f'v_mov_b32 v12, v{LS}')
    row_red(12, 'v_max_f32')
    swap_red(12, 13, 'v_max_f32', 16)
    A(f'''v_sub_f32 v12, v{LS}, v12
          v_exp_f32 v12, v12
          v_mul_f32 v13, v12, v{LS+1}''')
    row_red(13, 'v_add_f32')
    swap_red(13, 14, 'v_add_f32', 16)
    A(f'''v_rcp_f32 v13, v13
          v_mul_f32 v12, v12, v13
          v_cvt_pk_bf16_f32 v12, v12, v12
          ds_write_b16 v{aWTw}, v12
          s_waitcnt lgkmcnt(0)
          ds_read_b64 {vr(WF,2)}, v{aWTr}
          ds_read_b64 {vr(WF+2,2)}, v{aWTr} offset:32''')
def dma_gather():
    A(f's_mov_b32 m0, s85')
    for k in range(6):
        if k == 4: A(f's_add_u32 m0, s85, 0x1000')
        A(f'buffer_load_dwordx4 v{aL16}, {srd(WS)}, s{sP1+(k>>2)} offen offset:{1024*(k&3)} sc1 lds')
A(f's_mov_b32 s{sCNT}, 0')
dma_gather()
wmath()
A.label('L_h2poll')
A('s_waitcnt vmcnt(0)')
stamp(15)
for t in (1, 3, 5, 0, 2, 4):
    for hf in range(2): A(f'ds_read_b64_tr_b16 {vr(CF+4*t+2*hf,2)}, v{aCT} offset:{8*t + 3072*hf}')
A('s_waitcnt lgkmcnt(6)')
mfma32(CA + 4, CF + 4, WF, '0')
mfma32(CA + 12, CF + 12, WF, '0')
for k, t in enumerate((1, 3, 5)):
    A(f'v_bitop3_b32 v{136+2*k}, v{CF+4*t}, v{CF+4*t+1}, v{aCW} bitop3:0x7e\nv_bitop3_b32 v{137+2*k}, v{CF+4*t+2}, v{CF+4*t+3}, v{aCW} bitop3:0x7e')
for k, t in enumerate((0, 2, 4)):
    A(f's_waitcnt lgkmcnt({4-2*k})')
    mfma32(CA + 4 * t, CF + 4 * t, WF, '0')
A(f'''v_or3_b32 v136, v136, v137, v138
      v_or3_b32 v139, v139, v140, v141
      v_or_b32 v136, v136, v139
      v_cmp_ne_u32 vcc, 0, v136
      s_and_b64 vcc, vcc, s[86:87]
      s_cbranch_scc0 L_h2ok
      s_add_u32 s{sCNT}, s{sCNT}, 1''')
dma_gather()
A(f'''s_cmp_lt_u32 s{sCNT}, {OPT['limit']}
      s_cbranch_scc1 L_h2poll''')
A.label('L_h2ok')
stampcnt(43)
A('s_nop 2')
A('s_mov_b32 exec_lo, s84\ns_mov_b32 exec_hi, s84')
src = [CA, CA + 2, CA + 4, CA + 8, CA + 10, CA + 12, CA + 16, CA + 18]
for dd in range(8):
    A(f'v_cvt_pk_bf16_f32 v{OLW+dd}, v{src[dd]}, v{src[dd]+1}')
    if dd in (3, 7): A(f'ds_write_b128 v9, {vr(OLW+dd-3,4)} offset:{1024*(dd//4)}')
full_exec()
A('s_waitcnt lgkmcnt(0)\ns_barrier')
stamp(16)
for s in range(4): A(f'ds_read_b128 {vr(56+4*s,4)}, v{aOL} offset:{1024*s}')
for s in range(4):
    A(f's_waitcnt lgkmcnt({3-s})')
    mfma32(72, UVF + 4 * s, 56 + 4 * s, '0' if s == 0 else None)
A(f'''s_cmp_lg_u32 s{sD}, 0
      s_cbranch_scc1 L_s4odd
      s_nop 5
      v_cvt_pk_bf16_f32 v{G4+2}, v72, v73
      v_cvt_pk_bf16_f32 v{G4+3}, v74, v75
      s_branch L_s4done''')
A.label('L_s4odd')
A(f'''s_nop 5
      v_cvt_pk_bf16_f32 v{G4}, v72, v73
      v_cvt_pk_bf16_f32 v{G4+1}, v74, v75''')
A.label('L_s4done')
set_exec(0x000f000f)
A(f'buffer_store_dwordx4 {vr(G4,4)}, v{aHCs}, {srd(WS)}, s77 offen')
full_exec()
stamp(17)
def fallback_store():
    set_exec(0x000f000f)
    A(f'buffer_store_dwordx4 {vr(G4,4)}, v{aHCs}, {srd(WS)}, s78 offen sc1')
    full_exec()
poll(f'''buffer_load_dwordx4 v[56:59], v{aL16}, {srd(WS)}, s76 offen sc1
         buffer_load_dwordx4 v[60:63], v{aL16}, {srd(WS)}, s76 offen offset:1024 sc1''', [56, 63], 136,
     onfail=toggle([76], HCA ^ HCB), late=fallback_store)
stampcnt(44)
stamp(18)
A5 = 80
for t in range(4): mfma32(A5 + 4 * t, OF + 4 * t, 58, '0')
YA, YB, YO = 64, 68, 72
for r in range(4): A(f'v_add_f32_dpp v{YA+r}, v{A5+r}, v{A5+r} row_ror:8 row_mask:0xf bank_mask:0x3')
for r in range(4): A(f'v_add_f32_dpp v{YB+r}, v{A5+4+r}, v{A5+4+r} row_ror:8 row_mask:0xf bank_mask:0x3')
for r in range(4): A(f'v_add_f32_dpp v{YA+r}, v{A5+8+r}, v{A5+8+r} row_ror:8 row_mask:0xf bank_mask:0xc')
for r in range(4): A(f'v_add_f32_dpp v{YB+r}, v{A5+12+r}, v{A5+12+r} row_ror:8 row_mask:0xf bank_mask:0xc')
for r in range(4): A(f'v_add_f32_dpp v{YO+r}, v{YA+r}, v{YA+r} row_shl:4 row_mask:0xf bank_mask:0x5')
for r in range(4): A(f'v_add_f32_dpp v{YO+r}, v{YB+r}, v{YB+r} row_shr:4 row_mask:0xf bank_mask:0xa')
A(f'''ds_write_b128 v{aRDw}, {vr(YO,4)}
      s_waitcnt lgkmcnt(0)
      s_barrier
      s_cmp_lt_u32 s{sWV}, 4
      s_cbranch_scc1 L_red
      ''')
for k in range(4): A(f'ds_read_b128 {vr(80+4*k,4)}, v{aHCl} offset:{1024*k}')
A(f'''s_add_u32 s76, s79, 0x40000
      s_add_u32 s77, s79, 0x80000
      s_add_u32 s78, s79, 0xc0000
      s_bitcmp1_b32 s{sH}, 3
      s_waitcnt lgkmcnt(0)
      v_pk_add_f32 v[80:81], v[80:81], v[84:85]
      v_pk_add_f32 v[82:83], v[82:83], v[86:87]
      v_pk_add_f32 v[88:89], v[88:89], v[92:93]
      v_pk_add_f32 v[90:91], v[90:91], v[94:95]
      v_pk_add_f32 v[80:81], v[80:81], v[88:89]
      v_pk_add_f32 v[82:83], v[82:83], v[90:91]
      v_cvt_pk_bf16_f32 v{W4+2}, v80, v81
      v_cvt_pk_bf16_f32 v{W4+3}, v82, v83
      s_cbranch_scc1 L_s5odd''')
for r in (79, 76, 77, 78): A(f'buffer_store_dwordx4 {vr(W4,4)}, v{aH3}, {srd(WS)}, s{r} offen sc1')
A('s_branch L_end')
A.label('L_s5odd')
for r in (79, 76, 77, 78): A(f'buffer_store_dwordx4 {vr(W4+2,4)}, v{aH3}, {srd(WS)}, s{r} offen sc1')
A.label('L_end')
endwave()

A.label('L_red')
def unpack_hv():
    A(f'''v_lshlrev_b32 v{HV}, 16, v204
          v_and_b32 v{HV+1}, 0xffff0000, v204
          v_lshlrev_b32 v{HV+2}, 16, v205
          v_and_b32 v{HV+3}, 0xffff0000, v205''')
def reduce_gather(nl, sbase):
    L, D = A.newlab('Lrp'), A.newlab('Lrok')
    MK = 8
    A(f's_mov_b32 s{sCNT}, 0\ns_add_u32 s{sA}, s{sbase}, 0x1000')
    for k in range(nl): A(f's_mov_b64 s[{MK+2*k}:{MK+2*k+1}], -1')
    A.label(L)
    for k in range(nl):
        sk = A.newlab('Lsk')
        A(f'''s_mov_b64 exec, s[{MK+2*k}:{MK+2*k+1}]
              s_cbranch_execz {sk}
              buffer_load_dwordx4 {vr(RD+4*k,4)}, v{aL16}, {srd(WS)}, s{sbase if k<4 else sA} offen offset:{(k&3)*1024} sc1''')
        A.label(sk)
    A('s_mov_b64 exec, -1\ns_waitcnt vmcnt(0)')
    for p in range((nl + 1) // 2):
        mfma32(RA, SEL, RD + 8 * p + 2, '0' if p == 0 else None)
    for k in range(nl):
        A(f'v_cmp_ne_u32 s[{MK+2*k}:{MK+2*k+1}], v{RD+4*k+(3 if k&1 else 0)}, v{vT}')
    A(f's_or_b64 s[6:7], s[{MK}:{MK+1}], s[{MK+2}:{MK+3}]')
    for k in range(2, nl): A(f's_or_b64 s[6:7], s[6:7], s[{MK+2*k}:{MK+2*k+1}]')
    A(f'''s_cbranch_scc0 {D}
          s_add_u32 s{sCNT}, s{sCNT}, 1
          s_cmp_lt_u32 s{sCNT}, {OPT['limit']}
          s_cbranch_scc1 {L}''')
    A.label(D)
    for r in range(4): A(f'v_add_f32_dpp v{RA+r}, v{RA+r}, v{RA+r} row_ror:8 row_mask:0xf bank_mask:0xf')
    for r in range(4): A(f'v_add_f32 v{HV+r}, v{HV+r}, v{RA+r}')
    A(f'v_cvt_pk_bf16_f32 v204, v{HV}, v{HV+1}\nv_cvt_pk_bf16_f32 v205, v{HV+2}, v{HV+3}')
unpack_hv()
sadd(sP0, (sX8, 13), (sFS, 7), H4A)
A(f's_xor_b32 s{sP1}, s{sP0}, {H4A ^ H4B}')
stamp(19)
reduce_gather(4, sP3)
A(f'''v_cndmask_b32 v208, v{vT}, v204, s[70:71]
      v_cndmask_b32 v209, v{vT}, v205, s[70:71]
      v_cndmask_b32 v210, v204, v{vT}, s[70:71]
      v_cndmask_b32 v211, v205, v{vT}, s[70:71]
      s_mov_b64 exec, 0xff
      buffer_store_dwordx4 v[208:211], v{aL16}, {srd(WS)}, s{sP0} offen
      buffer_store_dwordx4 v[208:211], v{aL16}, {srd(WS)}, s{sP1} offen sc1
      s_mov_b64 exec, -1''')
stampcnt(45)
stamp(20)
A(f'''s_and_b32 s{sA}, s{sFS}, 7
      s_cmp_lg_u32 s{sA}, s{sX8}
      s_cbranch_scc1 L_end''')
unpack_hv()
A(f'v_mov_b32 v{RD+28}, 0\nv_mov_b32 v{RD+29}, 0')
sadd(sP3, (sFS, 13), H5)
reduce_gather(7, sP3)
stampcnt(46)
A(f'''s_mov_b64 exec, 0xff
      buffer_store_dwordx2 v[204:205], v{aX}, {srd(OUT)}, s75 offen
      s_cmp_lg_u32 s{sFS}, 0
      s_cbranch_scc1 L_end
      s_mov_b64 exec, 1
      buffer_store_dword v{vT}, v{aL16}, {srd(WS)}, 0 offen sc1
      s_branch L_end''')

A.label('L_g1tail')
A(f'''v_lshrrev_b32 v9, 2, v{vI}
      v_mul_u32_u24 v9, 3584, v9
      v_lshl_add_u32 v9, v{vB4}, 7, v9
      v_lshlrev_b32 v10, 7, v{vL}''')
sadd(sA, (sR, 'mul', 32 * 3584), (sWV, 'mul', 4 * 3584), (sX8, 'mul', 448))
sadd(sC, (sX8, 'mul', 7 * 32768), (sR, 'mul', 14336), (sWV, 'mul', 1792))
A(f'''s_barrier
      s_mov_b64 exec, 0xffff
      buffer_load_dword v124, v9, {srd(WG)}, s{sA} offen{NTP}
      buffer_load_dword v125, v9, {srd(WU)}, s{sA} offen{NTP}
      s_mov_b64 exec, 0x3fff
      buffer_load_dword v126, v10, {srd(WD)}, s{sC} offen{NTP}
      s_mov_b64 exec, -1''')
A(f'''s_cmp_ge_u32 s{sR}, 7
      s_cbranch_scc1 L_end
      s_mul_i32 s{sFS}, s{sX8}, 7
      s_add_u32 s{sFS}, s{sFS}, s{sR}
      v_lshrrev_b32 v6, 2, v{vL}
      v_mul_u32_u24 v6, 3584, v6
      v_and_b32 v7, 1, v{vQ}
      v_lshlrev_b32 v7, 1, v7
      v_xor_b32 v7, v7, v{vB4}
      v_lshl_add_u32 v6, v7, 4, v6''')
sadd(sA, (sWV, 'mul', 64 * 3584), (sFS, 6))
sadd(sC, (sFS, 15), (sWV, 12))
A(f's_lshl_b32 s{sD}, s{sWV}, 12\ns_mul_i32 s{sP0}, s{sWV}, {4*PITCH}\ns_waitcnt vmcnt(0)\ns_barrier')
stamp(24)
for n in range(4):
    A(f's_add_u32 m0, s{sD}, {L_G + 1024*n}')
    A(f'buffer_load_dwordx4 v6, {srd(WG)}, s{sA} offen{NTW} lds')
    A(f's_add_u32 m0, s{sD}, {L_U + 1024*n}')
    A(f'buffer_load_dwordx4 v6, {srd(WU)}, s{sA} offen{NTW} lds')
    if n < 3: A(f's_add_u32 s{sA}, s{sA}, {16*3584}')
for n in range(4):
    A(f's_add_u32 m0, s{sP0}, {L_D + PITCH*n}')
    A(f'buffer_load_dwordx4 v{aL16}, {srd(WD)}, s{sC} offen{NTW} lds')
    if n < 3: A(f's_add_u32 s{sC}, s{sC}, 1024')
stamp(12)
A(f'''s_waitcnt vmcnt(0)
      s_barrier
      s_cmp_ge_u32 s{sWV}, 4
      s_cbranch_scc1 L_end''')
stamp(13)
FF, DF, FA, G2, G1, FO, CS, HQ, A7 = 112, 176, 208, 224, 244, 248, 96, 16, 48
A(f'''v_lshl_add_u32 v6, v{vQ}, 2, v{vU}
      v_lshlrev_b32 v6, 6, v6
      v_lshl_add_u32 v6, v{vB4}, 3, v6
      s_lshl_b32 s{sA}, s{sV4}, 13
      v_add_u32 v6, s{sA}, v6
      v_and_b32 v7, 1, v{vQ}
      v_lshl_add_u32 v6, v7, 5, v6
      v_xor_b32 v7, 32, v6
      v_lshl_add_u32 v8, v{vQ}, 2, v{vU}
      v_mul_u32_u24 v8, {PITCH}, v8
      v_lshl_add_u32 v8, v{vB4}, 3, v8
      s_lshl_b32 s{sA}, s{sV4}, 8
      s_add_u32 s{sA}, s{sA}, {L_D}
      v_add_u32 v8, s{sA}, v8''')
for k in range(4): A(f'v_mov_b32 v{FO+k}, s{sONES}')
for s in range(4):
    for u in range(4):
        for hf in range(2):
            A(f'ds_read_b64_tr_b16 {vr(FF+(u*4+s)*4+2*hf,2)}, v{6+(u&1)} offset:{(L_U if u>=2 else L_G) + s*2048 + hf*1024}')
    A('s_waitcnt lgkmcnt(0)')
    for u in range(4): mfma32(FA + 4 * u, FF + (u * 4 + s) * 4, FO, '0' if s == 0 else None)
for t in range(8):
    for hf in range(2):
        A(f'ds_read_b64_tr_b16 {vr(DF+4*t+2*hf,2)}, v8 offset:{hf*16*PITCH + 32*t}')
def compact(dst):
    for u in range(4):
        if u: set_exec(0x000f000f << (4 * u))
        for r in range(4): A(f'v_mov_b32 v{dst+r}, v{FA+4*u+r}')
    full_exec()
compact(100)
A(f'''v_add_u32 v8, {L_FX}, v{aL16}
      s_lshl_b32 s{sA}, s{sV4}, 10
      v_add_u32 v9, s{sA}, v8
      ds_write_b128 v9, v[100:103]
      s_waitcnt lgkmcnt(0)
      s_barrier''')
for k in range(4): A(f'ds_read_b128 {vr(80+4*k,4)}, v8 offset:{1024*k}')
A(f'''v_lshlrev_b32 v6, 7, v{vQ}
      v_lshl_add_u32 v6, v{vB4}, 4, v6
      v_lshrrev_b32 v7, 1, v{vU}
      v_lshl_add_u32 v7, v7, 2, v{vQ}
      v_lshlrev_b32 v7, 13, v7
      v_and_b32 v10, 7, v{vL}
      v_lshl_add_u32 v7, v10, 4, v7
      v_lshlrev_b32 v10, 3, v{vL}
      v_add_u32 v10, {L_FX + 8192}, v10
      s_lshl_b32 s{sA}, s{sV4}, 9
      v_add_u32 v11, s{sA}, v10
      v_cmp_gt_u32 vcc, 2, v{vU}
      v_mov_b32 v12, 0xff800000
      v_cndmask_b32 v12, v12, 0, vcc''')
sadd(sP0, (sX8, 13), (sV4, 11), H4A)
sadd(sP1, (sV4, 17), (sFS, 7), H5)
A(f's_add_u32 s{sP2}, s{sP1}, 0x10000\ns_waitcnt lgkmcnt(0)')
for r in range(4):
    A(f'''v_add_f32 v{CS+r}, v{80+r}, v{84+r}
          v_add_f32 v{88+r}, v{88+r}, v{92+r}
          v_add_f32 v{CS+r}, v{CS+r}, v{88+r}''')
W70, W71 = 232, 238
for k in (0, 1, 4, 5): A(f'v_mov_b32 v{W70+k}, s{sT}\nv_mov_b32 v{W71+k}, s{sT}')
stamp(19)
loads, tg = '', []
for s in range(4):
    for e in range(2):
        loads += f'buffer_load_dwordx4 {vr(HQ+8*s+4*e,4)}, v6, {srd(WS)}, s{sP0} offen offset:{512*s+64*e} sc1\n'
    tg += [HQ + 8 * s, HQ + 8 * s + 7]
lab = A.newlab('Lnt')
poll(loads, tg, 104, onfail=f'''s_and_b32 s{sA}, s{sCNT}, 7
        s_cmp_lt_u32 s{sA}, 2
        s_cselect_b32 s{sA}, {H4A ^ H4B}, 0
        s_cmp_lt_u32 s{sCNT}, 8
        s_cselect_b32 s{sA}, 0, s{sA}
        s_xor_b32 s{sP0}, s{sP0}, s{sA}''')
stampcnt(45)
stamp(20)
for s in range(4):
    c = '0' if s == 0 else None
    for u in range(4): mfma32(FA + 4 * u, FF + (u * 4 + s) * 4, HQ + 8 * s + 2, c)
    mfma32(G2, HQ + 8 * s + 2, HQ + 8 * s + 2, c)
    mfma32(G1, FO, HQ + 8 * s + 2, c)
compact(100)
A('ds_write_b128 v9, v[100:103] offset:4096')
for b in range(4):
    if b: set_exec(0x11111111 << b)
    A(f'v_mov_b32 v{G1+1}, v{G2+b}')
full_exec()
A(f'''ds_write_b64 v11, {vr(G1,2)}
      s_waitcnt lgkmcnt(0)
      s_barrier''')
for k in range(4): A(f'ds_read_b64 {vr(16+2*k,2)}, v10 offset:{512*k}')
for k in range(4): A(f'ds_read_b128 {vr(80+4*k,4)}, v8 offset:{4096+1024*k}')
A(f'''s_waitcnt lgkmcnt(4)
      v_pk_add_f32 v[16:17], v[16:17], v[18:19]
      v_pk_add_f32 v[20:21], v[20:21], v[22:23]
      v_pk_add_f32 v[16:17], v[16:17], v[20:21]
      v_mul_f32 v16, {f32(-1.0/512)}, v16
      v_mov_b32 v18, {f32(1e-5)}
      v_fmac_f32 v18, {f32(1.0/512)}, v17
      v_fma_f32 v18, -v16, v16, v18
      v_rsq_f32 v18, v18
      s_waitcnt lgkmcnt(0)''')
for r in range(0, 4, 2):
    A(f'''v_pk_add_f32 {vr(80+r,2)}, {vr(80+r,2)}, {vr(84+r,2)}
          v_pk_add_f32 {vr(88+r,2)}, {vr(88+r,2)}, {vr(92+r,2)}
          v_pk_add_f32 {vr(80+r,2)}, {vr(80+r,2)}, {vr(88+r,2)}''')
for r in range(4): A(f'v_fmac_f32 v{80+r}, v16, v{CS+r}')
for r in range(4): A(f'v_mul_f32 v{80+r}, v18, v{80+r}')
for r in range(4): A(f'v_max_f32 v{80+r}, v12, v{80+r}')
for r in range(4): A(f'v_mul_f32_dpp v{84+r}, v{80+r}, v{80+r} row_ror:8 row_mask:0xf bank_mask:0xf')
A('''v_cvt_pk_bf16_f32 v88, v84, v85
     v_cvt_pk_bf16_f32 v89, v86, v87
     v_cvt_pk_bf16_f32 v92, v84, v85
     v_cvt_pk_bf16_f32 v93, v86, v87
     v_cvt_pk_bf16_f32 v94, v84, v85
     v_cvt_pk_bf16_f32 v95, v86, v87
     v_mov_b32_dpp v92, v88 row_ror:4 row_mask:0xf bank_mask:0xa
     v_mov_b32_dpp v93, v89 row_ror:4 row_mask:0xf bank_mask:0xa
     v_mov_b32_dpp v94, v88 row_ror:4 row_mask:0xf bank_mask:0x5
     v_mov_b32_dpp v95, v89 row_ror:4 row_mask:0xf bank_mask:0x5''')
order = [0, 4, 1, 5, 2, 6, 3, 7]
for t in order: mfma32(A7 + 4 * t, DF + 4 * t, 92, '0')
A(f's_bitcmp1_b32 s{sFS}, 3')
for u in range(4):
    if u: set_exec(0x000f000f << (4 * u))
    A(f'''v_cvt_pk_bf16_f32 v{W70+2}, v{A7+4*u}, v{A7+4*u+1}
          v_cvt_pk_bf16_f32 v{W70+3}, v{A7+4*u+2}, v{A7+4*u+3}
          v_cvt_pk_bf16_f32 v{W71+2}, v{A7+16+4*u}, v{A7+16+4*u+1}
          v_cvt_pk_bf16_f32 v{W71+3}, v{A7+16+4*u+2}, v{A7+16+4*u+3}''')
full_exec()
A(f'''s_cbranch_scc1 L_s7odd
      buffer_store_dwordx4 {vr(W70,4)}, v7, {srd(WS)}, s{sP1} offen sc1
      buffer_store_dwordx4 {vr(W71,4)}, v7, {srd(WS)}, s{sP2} offen sc1
      s_branch L_end''')
A.label('L_s7odd')
A(f'''buffer_store_dwordx4 {vr(W70+2,4)}, v7, {srd(WS)}, s{sP1} offen sc1
      buffer_store_dwordx4 {vr(W71+2,4)}, v7, {srd(WS)}, s{sP2} offen sc1
      s_branch L_end''')
A.label('L_exit')
A('s_endpgm')

ref = open('cdna_kernels/%s.s.ref' % NAME).read().split('\n')
head = []
for ln in ref:
    if ln.startswith('; @launch'):
        head.append('; @launch grid=(256,1,1) block=(512,1,1) lds=%d' % LDS_BYTES); break
    head.append(ln)
out = '\n'.join(head) + f"""
.amdgcn_target "amdgcn-amd-amdhsa--gfx950"
.text
.globl {NAME}_kernel
.p2align 8
.type {NAME}_kernel,@function
{NAME}_kernel:
""" + A.text() + f""".section .rodata,"a"
.p2align 6
.amdhsa_kernel {NAME}_kernel
  .amdhsa_next_free_vgpr 256
  .amdhsa_next_free_sgpr 102
  .amdhsa_accum_offset 256
  .amdhsa_group_segment_fixed_size 0
  .amdhsa_kernarg_size 104
  .amdhsa_user_sgpr_count 2
  .amdhsa_user_sgpr_kernarg_segment_ptr 1
  .amdhsa_system_sgpr_workgroup_id_x 1
.end_amdhsa_kernel
"""
open(sys.argv[1], 'w').write(out)
```

```python
import sys, math, struct
from asmlib import Asm, vr, sr

NAME = 'sequential_preLN__compressed_kv_cla__glu_gated_reglu__decode'
OPT = dict(ph0=0, ph1=6, ph15=6, rev=1, wukd=1, inf=0, pf=1, pf_nt=1, h3pre=1, kl=5, debug=0, prog0=28, prog1=24, ckv_nt=1, w_nt=1, limit=20000, ka=8, qsleep=8)
for a in sys.argv[2:]:
    k, v = a.split('='); OPT[k] = int(v)
DEBUG = OPT['debug']

H0A, H0B, H1, HS = 0x40000, 0x80000, 0xC0000, 0x100000
H4A, H4B = 0x120000, 0x130000
HCA, HCB = 0x140000, 0x180000
H3, H5, H2, DBG = 0xC00000, 0x200000, 0x400000, 0xA00000
WS_BYTES = 0x1000000
PITCH = 1056
L_P = 128 * PITCH
L_R = L_P + 4096
LDS_BYTES = 163840
L_WQ, L_WUK = 16 * PITCH, 48 * PITCH
L_QX = L_P + 2560
L_XC = L_P
L_XQ = L_R
def pad(row): return row * PITCH + 1024
L_MAX, L_QFLAG, L_PROG = pad(72), pad(96), pad(96) + 16
WP = 288
L_UV, L_WO, L_CS, L_OL, L_RED, L_WT = 0, 36864, 73728, 122880, 126976, 135168
L_G, L_U, L_D, L_FX = 0, 32768, 65536, 102400
sWV, sT, sE = 3, 4, 5
X, CKV, WQ, WUK, WUV, WO, WG, WU, WD, OUT, WS = 8, 12, 16, 20, 24, 28, 32, 36, 40, 44, 48
sH, sJ4, sB, sX8, sG, sPAIR, sV4, sR = 52, 53, 54, 55, 56, 57, 58, 59
sCNT, sA, sBt, sC, sD = 60, 61, 62, 63, 64
sP0, sP1, sP2, sP3 = 65, 66, 67, 68
sH2ST, sHSST, sFS = 72, 73, 74
sONES = 82
sST = 90
def srd(b): return sr(b, 4)
vL, vQ, vI, vB4, vU, vT = 1, 2, 3, 4, 5, 15
aL16, aVF0, aVF1, aP, aSR, aST, aSW = 228, 229, 230, 231, 233, 234, 252
aKF, aQF, aMXr, aMXw, aPw, aHS = 237, 238, 239, 240, 241, 242
vSTAMP = 255
NTC = ' nt' if OPT['ckv_nt'] else ''
NTW = ' nt' if OPT['w_nt'] else ''
def f32(x): return '0x%08x' % struct.unpack('<I', struct.pack('<f', x))[0]
A = Asm()

def stamp(i):
    if DEBUG:
        A(f'''s_memrealtime s[{sST}:{sST+1}]
              s_waitcnt lgkmcnt(0)
              v_writelane_b32 v{vSTAMP}, s{sST}, {i}''')
def stampcnt(i):
    if DEBUG: A(f's_add_u32 s{sST}, s{sCNT}, 1\nv_writelane_b32 v{vSTAMP}, s{sST}, {i}')

def endwave():
    if DEBUG:
        stamp(63)
        A(f's_memtime s[{sST}:{sST+1}]\ns_waitcnt lgkmcnt(0)\ns_sub_u32 s{sST}, s{sST}, s{sST+4}\nv_writelane_b32 v{vSTAMP}, s{sST}, 47')
        A(f'''s_mov_b64 exec, -1
              s_lshl_b32 s{sA}, s2, 3
              s_add_u32 s{sA}, s{sA}, s{sWV}
              s_lshl_b32 s{sA}, s{sA}, 8
              s_add_u32 s{sA}, s{sA}, {DBG}
              v_lshlrev_b32 v6, 2, v{vL}
              buffer_store_dword v{vSTAMP}, v6, {srd(WS)}, s{sA} offen''')
    if DEBUG == 2:
        ids = [0, 3, 5, 6, 8, 9, 10, 11, 13, 14, 15, 16, 18, 19, 20, 63]
        A(f'''s_lshl_b32 s{sA}, s2, 3
              s_add_u32 s{sA}, s{sA}, s{sWV}
              s_cmp_lg_u32 s{sA}, 0
              s_cbranch_scc1 L_nodbg
              s_load_dwordx2 s[96:97], s[0:1], 88
              s_mov_b32 s98, 256
              s_mov_b32 s99, 0x00020000
              v_mov_b32 v7, 0''')
        for k, i in enumerate(ids):
            A(f'v_readlane_b32 s{sA}, v{vSTAMP}, {i}\ns_sub_u32 s{sA}, s{sA}, s{sST+2}\nv_writelane_b32 v7, s{sA}, {k}')
        A(f'''s_waitcnt lgkmcnt(0)
              buffer_store_dword v7, v6, s[96:99], 0 offen''')
        A.label('L_nodbg')
    A('s_endpgm')

def set_exec(mask32): A(f's_mov_b32 exec_lo, 0x{mask32:08x}\ns_mov_b32 exec_hi, 0x{mask32:08x}')
def full_exec(): A('s_mov_b64 exec, -1')

def check_tags(tags, tmp):
    acc, t1, t2 = tmp, tmp + 1, tmp + 2
    tags = list(tags)
    if len(tags) == 1:
        A(f'v_cmp_ne_u32 vcc, v{tags[0]}, v{vT}'); return
    if len(tags) % 2: tags.append(tags[-1])
    prs = [(tags[i], tags[i + 1]) for i in range(0, len(tags), 2)]
    A(f'v_bitop3_b32 v{acc}, v{prs[0][0]}, v{prs[0][1]}, v{vT} bitop3:0x7e')
    rest = prs[1:]
    while rest:
        if len(rest) >= 2:
            A(f'v_bitop3_b32 v{t1}, v{rest[0][0]}, v{rest[0][1]}, v{vT} bitop3:0x7e')
            A(f'v_bitop3_b32 v{t2}, v{rest[1][0]}, v{rest[1][1]}, v{vT} bitop3:0x7e')
            A(f'v_or3_b32 v{acc}, v{acc}, v{t1}, v{t2}')
            rest = rest[2:]
        else:
            A(f'v_bitop3_b32 v{t1}, v{rest[0][0]}, v{rest[0][1]}, v{vT} bitop3:0x7e')
            A(f'v_or_b32 v{acc}, v{acc}, v{t1}')
            rest = rest[1:]
    A(f'v_cmp_ne_u32 vcc, 0, v{acc}')

def poll(loads, tags, tmp, onfail='', between=None, late=None, pre_late=''):
    L, D = A.newlab('Lpoll'), A.newlab('Lpok')
    A(f's_mov_b32 s{sCNT}, 0')
    A(loads)
    if between: between()
    A.label(L)
    A('s_waitcnt vmcnt(0)')
    check_tags(tags, tmp)
    A(f'''s_cmp_eq_u64 vcc, 0
          s_cbranch_scc1 {D}
          s_add_u32 s{sCNT}, s{sCNT}, 1''')
    if late:
        l2 = A.newlab('Lnl')
        A(f's_cmp_lg_u32 s{sCNT}, {OPT["kl"]}\ns_cbranch_scc1 {l2}')
        late()
        A.label(l2)
    A(onfail)
    A(loads)
    A(f'''s_cmp_lt_u32 s{sCNT}, {OPT['limit']}
          s_cbranch_scc1 {L}
          s_waitcnt vmcnt(0)''')
    A.label(D)
    A(pre_late)
    if late: late()

def toggle(regs, x):
    lab = A.newlab('Lnt')
    return f's_cmp_lt_u32 s{sCNT}, {OPT["ka"]}\ns_cbranch_scc1 {lab}\n' + ''.join(f's_xor_b32 s{r}, s{r}, {x}\n' for r in regs) + f'{lab}:'

def lds_wait(addr, n, tmp):
    L, D = A.newlab('Llw'), A.newlab('Llok')
    A(f's_mov_b32 s{sCNT}, 0\nv_mov_b32 v{tmp+7}, {addr}')
    A.label(L)
    if n == 1:
        A(f'ds_read_b32 v{tmp}, v{tmp+7}\ns_waitcnt lgkmcnt(0)')
    else:
        A(f'ds_read_b128 {vr(tmp,4)}, v{tmp+7}\ns_waitcnt lgkmcnt(0)')
        A(f'v_bitop3_b32 v{tmp}, v{tmp}, v{tmp+1}, v{tmp+2} bitop3:0x80\nv_and_b32 v{tmp}, v{tmp}, v{tmp+3}')
    A(f'''v_cmp_ne_u32 vcc, -1, v{tmp}
          s_cmp_eq_u64 vcc, 0
          s_cbranch_scc1 {D}
          s_sleep 1
          s_add_u32 s{sCNT}, s{sCNT}, 1
          s_cmp_lt_u32 s{sCNT}, {OPT['limit']*8}
          s_cbranch_scc1 {L}''')
    A.label(D)

def make_tag():
    A(f'''s_waitcnt lgkmcnt(0)
          s_add_u32 s{sT}, s{sE}, 0x9e3779b9
          v_mov_b32 v{vT}, s{sT}''')

def swap_red(a, t, op, which):
    A(f'v_mov_b32 v{t}, v{a}\nv_permlane{which}_swap_b32 v{a}, v{t}\n{op} v{a}, v{a}, v{t}')
def row_red(a, op):
    for n in (1, 2, 4, 8):
        A(f'{op}_dpp v{a}, v{a}, v{a} row_ror:{n} row_mask:0xf bank_mask:0xf')

def mfma32(d, a, b, c=None):
    A(f'v_mfma_f32_16x16x32_bf16 {vr(d,4)}, {vr(a,4)}, {vr(b,4)}, {vr(d,4) if c is None else c}')

def sadd(dst, *terms):
    const = sum(t for t in terms if isinstance(t, int))
    first = True
    for t in terms:
        if isinstance(t, int): continue
        tgt = dst if first else sBt
        if len(t) == 3: A(f's_mul_i32 s{tgt}, s{t[0]}, {t[2]}')
        elif t[1] == 0:
            if first: A(f's_mov_b32 s{dst}, s{t[0]}')
            else: A(f's_add_u32 s{dst}, s{dst}, s{t[0]}'); continue
        else: A(f's_lshl_b32 s{tgt}, s{t[0]}, {t[1]}')
        if not first: A(f's_add_u32 s{dst}, s{dst}, s{sBt}')
        first = False
    if const: A(f's_add_u32 s{dst}, s{dst}, {const}')

if DEBUG: A(f's_memrealtime s[{sST+2}:{sST+3}]\ns_memtime s[{sST+4}:{sST+5}]')
A(f'''s_cmp_ge_u32 s2, 256
      s_cbranch_scc1 L_exit
      s_load_dwordx2 s[{CKV}:{CKV+1}], s[0:1], 8
      s_load_dwordx2 s[{X}:{X+1}], s[0:1], 0
      s_load_dwordx2 s[{WQ}:{WQ+1}], s[0:1], 16
      s_load_dwordx2 s[{WUK}:{WUK+1}], s[0:1], 24
      s_load_dwordx2 s[{WS}:{WS+1}], s[0:1], 96
      v_lshrrev_b32 v6, 6, v0
      v_and_b32 v{vL}, 63, v0
      v_readfirstlane_b32 s{sWV}, v6
      v_lshrrev_b32 v{vQ}, 4, v{vL}
      v_and_b32 v{vI}, 15, v{vL}
      v_and_b32 v{vB4}, 3, v{vL}
      v_lshrrev_b32 v{vU}, 2, v{vI}
      v_lshlrev_b32 v{aL16}, 4, v{vL}''')
for b, n in ((X, 4096), (CKV, 1 << 24), (WQ, 1 << 22), (WUK, 1 << 22), (WUV, 1 << 22), (WO, 1 << 22), (WG, 1835008),
             (WU, 1835008), (WD, 1835008), (OUT, 4096), (WS, WS_BYTES)):
    A(f's_mov_b32 s{b+2}, {n}\ns_mov_b32 s{b+3}, 0x00020000')
A(f'''s_and_b32 s{sX8}, s2, 7
      s_bfe_u32 s{sR}, s2, 0x40003
      s_and_b32 s{sC}, s{sR}, 3
      s_lshl2_add_u32 s{sH}, s{sX8}, s{sC}
      s_lshr_b32 s{sJ4}, s{sR}, 2
      s_lshl4_add_u32 s{sPAIR}, s{sX8}, s{sR}
      s_lshr_b32 s{sB}, s{sPAIR}, 5
      s_lshr_b32 s{sG}, s2, 7
      s_and_b32 s{sV4}, s{sWV}, 3
      s_mov_b32 s{sONES}, 0x3f803f80''')
if DEBUG: A(f'v_mov_b32 v{vSTAMP}, 0\ns_waitcnt lgkmcnt(0)\nv_writelane_b32 v{vSTAMP}, s{sST+2}, 62')
A(f'''s_waitcnt lgkmcnt(0)
      s_load_dword s{sE}, s[{WS}:{WS+1}], 0
      s_load_dwordx2 s[{WUV}:{WUV+1}], s[0:1], 32
      s_load_dwordx2 s[{WO}:{WO+1}], s[0:1], 40
      s_load_dwordx2 s[{WG}:{WG+1}], s[0:1], 56
      s_load_dwordx2 s[{WU}:{WU+1}], s[0:1], 64
      s_load_dwordx2 s[{WD}:{WD+1}], s[0:1], 72
      s_load_dwordx2 s[{OUT}:{OUT+1}], s[0:1], 80
      s_cmp_lt_u32 s{sWV}, 4
      s_cbranch_scc1 L_stream''')

XS, XF, TF, ACC, G1_, UF, XQ, XB = 16, 32, 80, 112, 120, 96, 128, 136
A(f'''s_setprio 3
      s_cmp_lg_u32 s{sWV}, 4
      s_cbranch_scc1 L_nox
      v_lshlrev_b32 v6, 10, v{vQ}
      v_lshl_add_u32 v6, v{vI}, 4, v6
      s_lshl_b32 s{sA}, s{sJ4}, 8''')
for k in range(4):
    A(f'buffer_load_dwordx4 {vr(XS+4*k,4)}, v6, {srd(X)}, s{sA} offen')
    if k < 3: A(f's_add_u32 s{sA}, s{sA}, 256\ns_and_b32 s{sA}, s{sA}, 1023')
A.label('L_nox')
A(f'''v_lshrrev_b32 v7, 3, v{vL}
      v_and_b32 v8, 7, v{vL}
      v_lshlrev_b32 v9, 1, v{vQ}
      v_xor_b32 v8, v8, v9
      v_lshlrev_b32 v8, 4, v8
      v_lshl_add_u32 v7, v7, 13, v8''')
sadd(sA, (sJ4, 20), (sV4, 18), (sH, 8), (sG, 7))
A(f's_lshl_b32 s{sC}, s{sV4}, 12')
for n in range(4):
    A(f's_add_u32 m0, s{sC}, {L_WQ + n*1024}')
    A(f'buffer_load_dwordx4 v7, {srd(WQ)}, s{sA} offen{NTW} lds')
    if n < 3: A(f's_add_u32 s{sA}, s{sA}, 0x10000')
A(f'''v_xor_b32 v7, v{vQ}, v{vI}
      v_lshlrev_b32 v7, 4, v7
      v_lshl_add_u32 v7, v{vQ}, 13, v7''')
sadd(sA, (sG, 21), (sJ4, 19), (sV4, 17), (sH, 8))
A(f's_mul_i32 s{sC}, s{sV4}, 4160')
if OPT['wukd']: A('s_waitcnt vmcnt(%d)' % (4 - OPT['wukd']))
for n in range(4):
    A(f's_add_u32 m0, s{sC}, {L_WUK + n*1040}')
    A(f'buffer_load_dwordx4 v7, {srd(WUK)}, s{sA} offen{NTW} lds')
    if n < 3: A(f's_add_u32 s{sA}, s{sA}, 0x8000')
sadd(sP0, (sH, 13), H0A)
sadd(sA, (sG, 12), (sJ4, 10), (sV4, 8), (sP0, 0))
A(f'''v_and_b32 v8, 1, v{vL}
      v_lshlrev_b32 v8, 7, v8
      buffer_load_dword v200, v8, {srd(WS)}, s{sA} offen sc1
      s_setprio 0''')
stamp(0)
A(f'''v_lshl_add_u32 v8, v{vQ}, 2, v{vU}
      v_bfe_u32 v9, v8, 1, 2
      v_xor_b32 v9, s{sV4}, v9
      v_lshlrev_b32 v9, 5, v9
      v_lshl_add_u32 v9, v8, 7, v9
      v_lshl_add_u32 v9, v{vB4}, 3, v9
      v_mul_u32_u24 v14, 272, v{vB4}
      v_lshl_add_u32 v14, v{vQ}, 3, v14
      v_add_u32 v14, {L_XC}, v14
      v_lshlrev_b32 v11, 8, v{vQ}
      v_lshl_add_u32 v11, v{vB4}, 4, v11''')
sadd(sP1, (sG, 12), (sV4, 10), (sJ4, 6), (sP0, 0))
A(f's_xor_b32 s{sP3}, s{sP1}, {H0A ^ H0B}')
sadd(sP0, (sP0, 0), (sV4, 11))
A(f'''v_mul_u32_u24 v8, 1040, v{vU}
      v_lshl_add_u32 v8, v{vB4}, 8, v8
      v_and_b32 v10, 1, v{vQ}
      v_lshl_add_u32 v8, v10, 3, v8
      v_add_u32 v8, s{sC}, v8
      v_lshrrev_b32 v10, 1, v{vQ}
      v_xor_b32 v10, v10, v{vB4}
      v_xor_b32 v124, 2, v10
      v_lshl_add_u32 v10, v10, 4, v8
      v_lshl_add_u32 v124, v124, 4, v8
      v_add_u32 v125, {L_XQ}, v{aL16}
      s_lshl_b32 s{sA}, s{sV4}, 10
      v_add_u32 v126, s{sA}, v125
      v_lshlrev_b32 v127, 4, v{vQ}
      v_lshl_add_u32 v127, v{vB4}, 16, v127''')
sadd(sP2, (sH, 11), (sG, 10), (sJ4, 8), (sV4, 6), H1)
make_tag()
for k in range(4): A(f'v_mov_b32 v{G1_+k}, s{sT}')
A(f'v_mov_b32 v118, s{sT}\nv_mov_b32 v119, s{sT}')
A(f's_cmp_lg_u32 s{sWV}, 4\ns_cbranch_scc1 L_noln\ns_waitcnt vmcnt(9)\nv_mov_b32 v12, 0')
for k in range(16): A(f'v_dot2c_f32_bf16 v12, s{sONES}, v{XS+k}')
A(f'v_mul_u32_u24 v6, 272, v{vQ}\nv_lshl_add_u32 v6, v{vI}, 4, v6\nv_add_u32 v6, {L_XC}, v6')
row_red(12, 'v_add_f32')
A(f'v_mul_f32 v12, {f32(-1.0/512)}, v12\nv_mov_b32 v13, v12\nv_mov_b32 v44, 0\nv_mov_b32 v45, 0')
for k in range(16):
    t = 48 + 2 * k
    A(f'''v_lshlrev_b32 v{t}, 16, v{XS+k}
          v_and_b32 v{t+1}, 0xffff0000, v{XS+k}
          v_pk_add_f32 {vr(t,2)}, {vr(t,2)}, v[12:13]''')
    if k < 4: A(f'v_cvt_pk_bf16_f32 v{40+k}, v{t}, v{t+1}')
    if k == 3: A('ds_write_b128 v6, v[40:43]')
    A(f'v_pk_fma_f32 v[44:45], {vr(t,2)}, {vr(t,2)}, v[44:45]')
A('v_add_f32 v12, v44, v45')
row_red(12, 'v_add_f32')
A(f'''v_mov_b32 v13, {f32(1e-5)}
      v_fmac_f32 v13, {f32(1.0/512)}, v12
      v_rsq_f32 v12, v13
      v_lshlrev_b32 v6, 2, v{vQ}
      v_add_u32 v6, {L_XC+2048}, v6
      v_mul_f32 v12, {f32(128**-0.5*math.log2(math.e))}, v12
      ds_write_b32 v6, v12
      s_waitcnt lgkmcnt(0)''')
stamp(21)
A.label('L_noln')
A(f'''v_lshlrev_b32 v6, 2, v{vB4}
      v_add_u32 v6, {L_XC+2048}, v6
      s_waitcnt vmcnt(5)''')
stamp(1)
A('s_barrier')
for s in range(4):
    for hf in range(2):
        A(f'ds_read_b64 {vr(XF+4*s+2*hf,2)}, v14 offset:{64*s + 32*hf}')
        A(f'ds_read_b64_tr_b16 {vr(TF+4*s+2*hf,2)}, v9 offset:{L_WQ + s*4096 + hf*2048}')
A(f's_bitcmp1_b32 s{sV4}, 0')
for s in range(4):
    A(f's_waitcnt lgkmcnt({12-4*s})')
    mfma32(ACC, TF + 4 * s, XF + 4 * s, '0' if s == 0 else None)
A(f'''ds_read_b32 v12, v6
      s_cbranch_scc1 L_s1odd
      s_nop 5
      v_cvt_pk_bf16_f32 v{G1_+2}, v{ACC}, v{ACC+1}
      v_cvt_pk_bf16_f32 v{G1_+3}, v{ACC+2}, v{ACC+3}
      s_branch L_s1done''')
A.label('L_s1odd')
A(f'''s_nop 5
      v_cvt_pk_bf16_f32 v{G1_}, v{ACC}, v{ACC+1}
      v_cvt_pk_bf16_f32 v{G1_+1}, v{ACC+2}, v{ACC+3}''')
A.label('L_s1done')
set_exec(0x000f000f)
A(f'buffer_store_dwordx4 {vr(G1_,4)}, v11, {srd(WS)}, s{sP1} offen')
full_exec()
stamp(2)
A('s_waitcnt vmcnt(1)')
for s in range(4):
    A(f'ds_read_b64 {vr(UF+4*s,2)}, v10 offset:{L_WUK + s*64}')
    A(f'ds_read_b64 {vr(UF+4*s+2,2)}, v124 offset:{L_WUK + s*64}')
def fb0():
    set_exec(0x000f000f)
    A(f'buffer_store_dwordx4 {vr(G1_,4)}, v11, {srd(WS)}, s{sP3} offen sc1')
    full_exec()
poll(f'''buffer_load_dwordx4 {vr(XQ,4)}, v{aL16}, {srd(WS)}, s{sP0} offen sc1
         buffer_load_dwordx4 {vr(XQ+4,4)}, v{aL16}, {srd(WS)}, s{sP0} offen offset:1024 sc1''',
     [XQ, XQ + 7], 44, onfail=toggle([sP0], H0A ^ H0B), late=fb0, pre_late=f'ds_write_b128 v126, {vr(XQ+2,4)}')
stampcnt(40)
stamp(3)
A('s_waitcnt lgkmcnt(0)\ns_barrier')
for s in range(4): A(f'ds_read_b128 {vr(XB+4*s,4)}, v125 offset:{1024*s}')
for s in range(4):
    A(f's_waitcnt lgkmcnt({3-s})')
    mfma32(ACC, UF + 4 * s, XB + 4 * s, '0' if s == 0 else None)
for r in range(4): A(f'v_add_f32_dpp v{ACC+r}, v{ACC+r}, v{ACC+r} row_ror:4 row_mask:0xf bank_mask:0xf')
for r in range(4): A(f'v_add_f32_dpp v{ACC+r}, v{ACC+r}, v{ACC+r} row_ror:8 row_mask:0xf bank_mask:0xf')
for r in range(4): A(f'v_mul_f32 v{ACC+r}, v12, v{ACC+r}')
set_exec(0x000f000f)
A(f'v_cvt_pk_bf16_f32 v116, v{ACC}, v{ACC+1}\nv_cvt_pk_bf16_f32 v117, v{ACC+2}, v{ACC+3}')
A(f'buffer_store_dwordx4 v[116:119], v127, {srd(WS)}, s{sP2} offen sc1')
full_exec()
A('s_barrier')
stamp(4)
A('s_branch L_qgather')

VF, PF, PA, OW, LA, ONES = 16, 80, 96, 112, 216, 220
RB = PF
def common_addr():
    A(f'''v_lshl_add_u32 v{aVF0}, v{vQ}, 2, v{vU}
          v_mul_u32_u24 v{aVF0}, {PITCH}, v{aVF0}
          v_lshl_add_u32 v{aVF0}, v{vB4}, 3, v{aVF0}
          s_lshl_b32 s{sA}, s{sWV}, 7
          v_add_u32 v{aVF0}, s{sA}, v{aVF0}
          v_add_u32 v{aVF1}, {64*PITCH}, v{aVF0}
          v_add_u32 v{aP}, {L_P}, v{aL16}
          s_mul_i32 s{sA}, s{sWV}, 3072
          s_add_u32 s{sA}, s{sA}, {L_R}
          v_add_u32 v{aSR}, s{sA}, v{aL16}
          v_mul_u32_u24 v9, 192, v{vI}
          v_add_u32 v9, s{sA}, v9
          v_lshrrev_b32 v10, 1, v{vI}''')
    for k in range(3):
        A(f'''v_mad_u32_u24 v6, v{vQ}, 3, {k}
              v_add_u32 v7, v6, v10
              v_bfi_b32 v6, 3, v7, v6
              v_lshl_add_u32 v{aSW+k}, v6, 4, v9
              v_add_u32 v6, {64*k}, v{vL}
              v_mul_u32_u24 v7, 171, v6
              v_lshrrev_b32 v7, 11, v7
              v_lshrrev_b32 v11, 1, v7
              v_sub_u32 v11, v6, v11
              v_bfi_b32 v6, 3, v11, v6
              v_mul_u32_u24 v7, {8*128*192 - 192}, v7
              v_lshl_add_u32 v{aST+k}, v6, 4, v7''')
    sadd(sH2ST, (sG, 14), (sWV, 7), (sPAIR, 0))
    A(f's_mul_i32 s{sH2ST}, s{sH2ST}, 192\ns_add_u32 s{sH2ST}, s{sH2ST}, {H2}')
def v_reads(s):
    for ct in range(4):
        for hf in range(2):
            A(f'ds_read_b64_tr_b16 {vr(VF+(s*4+ct)*4+2*hf,2)}, v{aVF0+(s>>1)} offset:{(s&1)*32*PITCH + hf*16*PITCH + ct*32}')
def p_reads():
    for s in range(4): A(f'ds_read_b128 {vr(PF+4*s,4)}, v{aP} offset:{1024*s}')
def ow_tags():
    for k in range(3): A(f'v_mov_b32 v{OW+4*k+3}, s{sT}')
    A(f'v_mov_b32 v{OW+10}, 0')

A.label('L_stream')
KF0, QF, KF1, SA, vM = 16, 80, 144, 208, 12
common_addr()
A(f'''v_mul_u32_u24 v8, {PITCH}, v{vI}
      v_add_u32 v{aMXr}, {L_MAX}, v8
      s_lshl_b32 s{sA}, s{sV4}, 2
      v_add_u32 v{aMXw}, s{sA}, v{aMXr}
      v_lshl_add_u32 v8, v{vQ}, 4, v8
      s_mul_i32 s{sA}, s{sV4}, {32*PITCH}
      v_add_u32 v{aKF}, s{sA}, v8
      v_add_u32 v{aQF}, {L_R}, v8
      s_lshl_b32 s{sA}, s{sV4}, 10
      v_add_u32 v{aPw}, s{sA}, v{aP}
      v_lshlrev_b32 v{aHS}, 11, v{vI}
      v_and_b32 v8, 7, v{vL}
      v_lshlrev_b32 v8, 2, v8
      v_add_u32 v8, {L_QFLAG}, v8
      v_mov_b32 v9, 0
      ds_write_b32 v8, v9
      v_mov_b32 v9, -1
      v_mov_b32 v8, {L_PROG}''')
for k in range(4): A(f'v_mov_b32 v{ONES+k}, s{sONES}')
sadd(sHSST, (sG, 15), (sPAIR, 4), HS)
if OPT['rev']:
    sadd(sA, (sPAIR, 17), (sV4, 15), (sG, 'mul', 31 * 1024))
    A(f's_cmp_eq_u32 s{sG}, 0\ns_cselect_b32 s{sC}, 1, -1\ns_lshl_b32 s{sC}, s{sC}, 10')
else:
    sadd(sA, (sPAIR, 17), (sV4, 15))
    A(f's_movk_i32 s{sC}, 1024')
A(f'''s_mul_i32 m0, s{sV4}, {32*PITCH}
      s_mov_b32 s{sCNT}, 0''')
def sloop(lab, lim, thr=0):
    A.label(lab)
    A(f'''buffer_load_dwordx4 v{aL16}, {srd(CKV)}, s{sA} offen{NTC} lds
          s_add_u32 s{sA}, s{sA}, s{sC}
          s_add_u32 m0, m0, {PITCH}
          s_add_u32 s{sCNT}, s{sCNT}, 1''')
    if thr: A(f's_waitcnt vmcnt({thr-1})')
    A(f'''s_cmp_lt_u32 s{sCNT}, {lim}
          s_cbranch_scc1 {lab}''')
n0 = OPT['ph0']; n1 = n0 + OPT['ph1']; n2 = n1 + OPT['ph15']
assert n1 <= 16 and n2 < OPT['prog0']
if OPT['ph0']: sloop('L_sl0', str(n0))
make_tag()
A(f'v_mov_b32 v14, s{sT}')
stamp(0)
A('s_barrier')
if OPT['ph1']: sloop('L_sl01', str(n1))
A('s_barrier')
if OPT['ph15']: sloop('L_sl05', str(n2))
stamp(3)
A('s_barrier')
sloop('L_sl1', str(OPT['prog0']), OPT['inf'])
A('ds_write_b32 v8, v9')
stamp(5)
if OPT['prog0'] < 32: sloop('L_sl2', '32', OPT['inf'])
stamp(6)
A('s_waitcnt vmcnt(16)')
for s in range(16): A(f'ds_read_b128 {vr(KF0+4*s,4)}, v{aKF} offset:{64*s}')
stamp(7)
lds_wait(L_QFLAG, 4, 244)
stamp(8)
for s in range(16): A(f'ds_read_b128 {vr(QF+4*s,4)}, v{aQF} offset:{64*s}')
for s in range(16):
    A(f's_waitcnt lgkmcnt({15-s})')
    mfma32(SA, KF0 + 4 * s, QF + 4 * s, '0' if s == 0 else None)
A('s_waitcnt vmcnt(0)')
stamp(9)
for s in range(16): A(f'ds_read_b128 {vr(KF1+4*s,4)}, v{aKF} offset:{16*PITCH + 64*s}')
A(f'v_max3_f32 v{vM}, v{SA}, v{SA+1}, v{SA+2}\nv_max_f32 v{vM}, v{vM}, v{SA+3}')
for s in range(16):
    A(f's_waitcnt lgkmcnt({15-s})')
    mfma32(SA + 4, KF1 + 4 * s, QF + 4 * s, '0' if s == 0 else None)
ow_tags()
A(f'v_max3_f32 v{vM}, v{vM}, v{SA+4}, v{SA+5}\nv_max3_f32 v{vM}, v{vM}, v{SA+6}, v{SA+7}')
swap_red(vM, 13, 'v_max_f32', 16)
swap_red(vM, 13, 'v_max_f32', 32)
stamp(23)
A(f'''ds_write_b32 v{aMXw}, v{vM}
      s_waitcnt lgkmcnt(0)
      s_barrier
      ds_read_b128 v[244:247], v{aMXr}
      s_waitcnt lgkmcnt(0)
      v_max3_f32 v{vM}, v244, v245, v246
      v_max_f32 v{vM}, v{vM}, v247''')
for k in range(8): A(f'v_sub_f32 v{SA+k}, v{SA+k}, v{vM}')
for k in range(8): A(f'v_exp_f32 v{SA+k}, v{SA+k}')
for k in range(4): A(f'v_cvt_pk_bf16_f32 v{244+k}, v{SA+2*k}, v{SA+2*k+1}')
A(f'ds_write_b128 v{aPw}, v[244:247]\ns_waitcnt lgkmcnt(0)\ns_barrier')
stamp(10)
p_reads()
v_reads(0)
A(f's_cmp_lg_u32 s{sWV}, 0\ns_cbranch_scc1 L_nol\ns_waitcnt lgkmcnt(8)')
for s in range(4): mfma32(LA, ONES, PF + 4 * s, '0' if s == 0 else None)
A.label('L_nol')
for s in range(4):
    if s < 3:
        if s == 0: A('s_waitcnt lgkmcnt(4)')
        v_reads(s + 1)
        A('s_waitcnt lgkmcnt(8)')
    else:
        A('s_waitcnt lgkmcnt(0)')
    for ct in range(4): mfma32(PA + 4 * ct, VF + (s * 4 + ct) * 4, PF + 4 * s, '0' if s == 0 else None)
    if s == 0:
        A(f'''s_cbranch_scc1 L_nolse
              v_mov_b32 v13, v{LA}
              s_mov_b64 exec, 0xffff
              buffer_store_dwordx4 v[12:15], v{aHS}, {srd(WS)}, s{sHSST} offen sc1
              s_mov_b64 exec, -1''')
        A.label('L_nolse')
A('s_branch L_pvout')

A.label('L_qgather')
QG, WR = 16, 124
common_addr()
A(f's_lshl1_add_u32 s{sC}, s{sB}, s{sG}')
sadd(sP0, (sC, 15), (sV4, 13), H1)
A(f'''s_add_u32 s{sP1}, s{sP0}, 0x1000
      s_mul_i32 s{sA}, s{sV4}, {4*PITCH}
      s_add_u32 s{sA}, s{sA}, {L_R}
      v_lshlrev_b32 v11, 3, v{vL}
      v_add_u32 v11, s{sA}, v11
      s_lshl_b32 s{sA}, s{sV4}, 2
      s_add_u32 s{sA}, s{sA}, {L_QFLAG}
      v_mov_b32 v12, s{sA}
      v_and_b32 v9, 1, v{vL}
      v_lshlrev_b32 v9, 7, v9
      v_lshrrev_b32 v13, 1, v{vL}
      v_lshl_add_u32 v10, v13, 10, v9
      v_lshl_add_u32 v9, v13, 13, v9''')
ow_tags()
sadd(sP2, (sJ4, 20), (sV4, 18), (sH, 8))
sadd(sP3, (sH, 17), (sV4, 15), (sJ4, 8))
sadd(sA, (sH, 13), (sJ4, 11), (sV4, 9), HCA)
sadd(sC, (sH, 11), (sV4, 9), HS)
A(f'''s_cmp_lg_u32 s{sG}, 0
      s_cbranch_scc1 L_nopre
      v_lshlrev_b32 v8, 7, v{vB4}
      buffer_load_dword v47, v8, {srd(WS)}, s{sA} offen sc1
      buffer_load_dword v46, v8, {srd(WS)}, s{sC} offen sc1''')
A.label('L_nopre')
lds_wait(L_PROG, 1, 48)
stamp(5)
loads = ''.join(f'buffer_load_dwordx4 {vr(QG+4*k,4)}, v{aL16}, {srd(WS)}, s{sP0+(k>>2)} offen offset:{(k&3)*1024} sc1\n' for k in range(8))
poll(loads, [QG + 4 * k + 3 for k in range(8)], 48, onfail=f's_sleep {OPT["qsleep"]}')
for k in range(8): A(f'ds_write_b64 v11, {vr(QG+4*k,2)} offset:{(k>>1)*PITCH + (k&1)*512}')
A('v_mov_b32 v48, -1\ns_waitcnt lgkmcnt(0)\nds_write_b32 v12, v48')
stampcnt(41)
stamp(8)
NTP = ' nt' if OPT['pf_nt'] else ''
A(f'''s_cmp_lg_u32 s{sG}, 0
      s_cbranch_scc1 L_nolate
      buffer_load_dword v124, v9, {srd(WUV)}, s{sP2} offen{NTP}
      s_branch L_late_done''')
A.label('L_nolate')
A(f'buffer_load_dword v124, v10, {srd(WO)}, s{sP3} offen{NTP}')
A.label('L_late_done')
stamp(9)
A('s_waitcnt lgkmcnt(0)\ns_barrier')
for s in range(4): v_reads(s)
A('s_barrier')
stamp(10)
p_reads()
for s in range(4):
    A(f's_waitcnt lgkmcnt({3-s})')
    for ct in range(4): mfma32(PA + 4 * ct, VF + (s * 4 + ct) * 4, PF + 4 * s, '0' if s == 0 else None)

A.label('L_pvout')
stamp(22)
A('s_nop 4')
for dd in range(8):
    A(f'v_cvt_pk_bf16_f32 v{OW + (dd//3)*4 + dd%3}, v{PA+2*dd}, v{PA+2*dd+1}')
    if dd in (2, 5, 7): A(f'ds_write_b128 v{aSW+dd//3}, {vr(OW+4*(dd//3),4)}')
A('s_waitcnt lgkmcnt(0)')
for k in range(3): A(f'ds_read_b128 {vr(RB+4*k,4)}, v{aSR} offset:{1024*k}')
for k in range(3):
    A(f's_waitcnt lgkmcnt({2-k})')
    A(f'buffer_store_dwordx4 {vr(RB+4*k,4)}, v{aST+k}, {srd(WS)}, s{sH2ST} offen sc1')
stamp(11)
A(f's_cmp_lg_u32 s{sG}, 0\ns_cbranch_scc1 L_g1tail')

UVF, OF = 16, 32
LS, WF, CF, CA, OLW = 48, 52, 76, 100, 120
aX = 243
A(f'''v_lshlrev_b32 v7, 1, v{vQ}
      v_xor_b32 v7, v7, v{vI}
      v_lshlrev_b32 v7, 4, v7
      v_lshl_add_u32 v8, v{vQ}, 10, v7
      v_lshl_add_u32 v7, v{vQ}, 13, v7''')
sadd(sA, (sJ4, 20), (sWV, 17), (sH, 8))
sadd(sC, (sH, 17), (sWV, 14), (sJ4, 8))
A(f's_mul_i32 s{sD}, s{sWV}, {4*1152}')
A('s_barrier')
for n in range(4):
    A(f's_add_u32 m0, s{sD}, {L_UV + n*1152}')
    A(f'buffer_load_dwordx4 v7, {srd(WUV)}, s{sA} offen{NTW} lds')
    A(f's_add_u32 m0, s{sD}, {L_WO + n*1152}')
    A(f'buffer_load_dwordx4 v8, {srd(WO)}, s{sC} offen{NTW} lds')
    if n < 3: A(f's_add_u32 s{sA}, s{sA}, 0x8000\ns_add_u32 s{sC}, s{sC}, 0x1000')
stamp(12)
A(f'''v_bfe_u32 v6, v{vL}, 2, 1
      v_lshlrev_b32 v{aX}, 10, v{vB4}
      v_lshl_add_u32 v{aX}, v6, 5, v{aX}
      s_cmp_ge_u32 s{sWV}, 4
      s_cbranch_scc1 L_dumped''')
SEL, RA, HV, RD = 192, 196, 200, 160
H3PRE = f'v_and_b32 v7, 31, v{vL}\nv_lshlrev_b32 v7, 7, v7\nbuffer_load_dword v206, v7, {srd(WS)}, s{sP3} offen sc1\n' if OPT['h3pre'] else ''
A(f's_lshl2_add_u32 s{sFS}, s{sR}, s{sWV}')
sadd(sP3, (sFS, 12), (sX8, 18), H3)
sadd(75, (sR, 6), (sWV, 3))
A(f'''      buffer_load_dwordx2 v[204:205], v{aX}, {srd(X)}, s75 offen
{H3PRE}      v_cmp_eq_u32 s[70:71], 1, v6
      v_and_b32 v9, 1, v{vB4}
      v_lshlrev_b32 v9, 4, v9
      v_mov_b32 v10, 0x3f80
      v_lshlrev_b32 v10, v9, v10
      v_cmp_gt_u32 vcc, 2, v{vB4}
      v_cndmask_b32 v{SEL}, 0, v10, vcc
      v_cndmask_b32 v{SEL+1}, v10, 0, vcc
      v_mov_b32 v{SEL+2}, v{SEL}
      v_mov_b32 v{SEL+3}, v{SEL+1}''')
A.label('L_dumped')
aLS, aCW, aCT, aOL, aWTw, aWTr, aHCs, aHCl, aRDw, aH3 = 229, 230, 231, 232, 233, 234, 235, 236, 237, 238
sadd(sP0, (sH, 11), (sV4, 9), HS)
A(f's_lshl2_add_u32 s{sC}, s{sH}, s{sJ4}\ns_lshl3_add_u32 s{sC}, s{sC}, s{sWV}')
sadd(sP1, (sC, 'mul', 6144), H2)
A(f'''s_add_u32 s{sP2}, s{sP1}, 0x1000
      v_and_b32 v6, 31, v{vL}
      v_lshlrev_b32 v{aLS}, 4, v6
      s_mul_i32 s{sA}, s{sWV}, 6144
      s_add_u32 s{sA}, s{sA}, {L_CS}
      s_mov_b32 s85, s{sA}
      s_mov_b32 s86, 0xcccccccc
      s_mov_b32 s87, 0xcccccccc
      s_pack_ll_b32_b16 s88, s{sT}, s{sT}
      s_pack_hh_b32_b16 s89, s{sT}, s{sT}
      v_mov_b32 v{aCW}, s88
      v_mov_b32 v7, s89
      v_cmp_eq_u32 vcc, 3, v{vB4}
      v_cndmask_b32 v{aCW}, v{aCW}, v7, vcc
      v_mul_u32_u24 v{aCT}, 48, v{vL}
      v_add_u32 v{aCT}, s{sA}, v{aCT}
      v_add_u32 v{aOL}, {L_OL}, v{aL16}
      s_lshl_b32 s{sA}, s{sWV}, 6
      s_add_u32 s{sA}, s{sA}, {L_WT}
      v_lshl_add_u32 v{aWTw}, v6, 1, s{sA}
      v_lshl_add_u32 v{aWTr}, v{vQ}, 3, s{sA}
      v_lshlrev_b32 v{aHCs}, 8, v{vQ}
      v_lshl_add_u32 v{aHCs}, v{vB4}, 4, v{aHCs}
      s_lshr_b32 s{sC}, s{sWV}, 1
      s_and_b32 s{sD}, s{sWV}, 1''')
sadd(76, (sH, 13), (sC, 11), HCA)
sadd(77, (sJ4, 6), (sD, 10), (76, 0))
A(f's_xor_b32 s78, s77, {HCA ^ HCB}')
sadd(sA, (sD, 12), (sC, 10), L_RED)
A(f'''v_add_u32 v{aRDw}, s{sA}, v{aL16}
      v_lshrrev_b32 v6, 1, v{vU}
      v_lshl_add_u32 v6, v6, 2, v{vQ}
      v_lshlrev_b32 v{aH3}, 12, v6
      v_and_b32 v6, 7, v{vL}
      v_lshl_add_u32 v{aH3}, v6, 4, v{aH3}''')
A(f's_and_b32 s{sA}, s{sC}, 1')
sadd(79, (sA, 20), (sJ4, 16), (sD, 15), (sH, 7), H3)
sadd(80, (sD, 12), L_RED)
A(f'''v_mul_u32_u24 v6, 1152, v{vQ}
      v_lshl_add_u32 v6, v{vU}, 8, v6
      v_lshl_add_u32 v6, v{vB4}, 3, v6
      v_xor_b32 v7, s{sWV}, v{vU}
      v_lshl_add_u32 v7, v7, 5, v6''')
sadd(sA, (sC, 'mul', 8 * 1152), (sD, 7), L_WO)
A(f'v_add_u32 v6, s{sA}, v6')
for t in range(4):
    A(f'v_xor_b32 v{10+t}, {t}, v{vU}\nv_lshl_add_u32 v{10+t}, v{10+t}, 5, v6')
A(f'''s_nop 0
      s_lshl_b32 s84, 0x11111111, s{sV4}
      s_lshr_b32 s{sA}, s{sWV}, 2
      s_lshl_b32 s{sA}, s{sA}, 11
      v_add_u32 v9, s{sA}, v{aOL}''')
W4, G4 = 128, 144
A(f'v_add_u32 v{aHCl}, s80, v{aL16}')
for k in (0, 1, 4, 5): A(f'v_mov_b32 v{W4+k}, s{sT}')
for k in range(4): A(f'v_mov_b32 v{G4+k}, s{sT}')
A('s_waitcnt vmcnt(0)\ns_barrier')
for s in range(4):
    for hf in range(2):
        A(f'ds_read_b64_tr_b16 {vr(UVF+4*s+2*hf,2)}, v7 offset:{L_UV + (8*s+4*hf)*1152}')
for t in range(4):
    for hf in range(2):
        A(f'ds_read_b64_tr_b16 {vr(OF+4*t+2*hf,2)}, v{10+t} offset:{4*hf*1152}')
stamp(13)
poll(f'buffer_load_dwordx4 {vr(LS,4)}, v{aLS}, {srd(WS)}, s{sP0} offen sc1', [LS + 3], 136)
stampcnt(42)
stamp(14)
def wmath():
    A(f'v_mov_b32 v12, v{LS}')
    row_red(12, 'v_max_f32')
    swap_red(12, 13, 'v_max_f32', 16)
    A(f'''v_sub_f32 v12, v{LS}, v12
          v_exp_f32 v12, v12
          v_mul_f32 v13, v12, v{LS+1}''')
    row_red(13, 'v_add_f32')
    swap_red(13, 14, 'v_add_f32', 16)
    A(f'''v_rcp_f32 v13, v13
          v_mul_f32 v12, v12, v13
          v_cvt_pk_bf16_f32 v12, v12, v12
          ds_write_b16 v{aWTw}, v12
          s_waitcnt lgkmcnt(0)
          ds_read_b64 {vr(WF,2)}, v{aWTr}
          ds_read_b64 {vr(WF+2,2)}, v{aWTr} offset:32''')
def dma_gather():
    A(f's_mov_b32 m0, s85')
    for k in range(6):
        if k == 4: A(f's_add_u32 m0, s85, 0x1000')
        A(f'buffer_load_dwordx4 v{aL16}, {srd(WS)}, s{sP1+(k>>2)} offen offset:{1024*(k&3)} sc1 lds')
A(f's_mov_b32 s{sCNT}, 0')
dma_gather()
wmath()
A.label('L_h2poll')
A('s_waitcnt vmcnt(0)')
stamp(15)
for t in (1, 3, 5, 0, 2, 4):
    for hf in range(2): A(f'ds_read_b64_tr_b16 {vr(CF+4*t+2*hf,2)}, v{aCT} offset:{8*t + 3072*hf}')
A('s_waitcnt lgkmcnt(6)')
mfma32(CA + 4, CF + 4, WF, '0')
mfma32(CA + 12, CF + 12, WF, '0')
for k, t in enumerate((1, 3, 5)):
    A(f'v_bitop3_b32 v{136+2*k}, v{CF+4*t}, v{CF+4*t+1}, v{aCW} bitop3:0x7e\nv_bitop3_b32 v{137+2*k}, v{CF+4*t+2}, v{CF+4*t+3}, v{aCW} bitop3:0x7e')
for k, t in enumerate((0, 2, 4)):
    A(f's_waitcnt lgkmcnt({4-2*k})')
    mfma32(CA + 4 * t, CF + 4 * t, WF, '0')
A(f'''v_or3_b32 v136, v136, v137, v138
      v_or3_b32 v139, v139, v140, v141
      v_or_b32 v136, v136, v139
      v_cmp_ne_u32 vcc, 0, v136
      s_and_b64 vcc, vcc, s[86:87]
      s_cbranch_scc0 L_h2ok
      s_add_u32 s{sCNT}, s{sCNT}, 1''')
dma_gather()
A(f'''s_cmp_lt_u32 s{sCNT}, {OPT['limit']}
      s_cbranch_scc1 L_h2poll''')
A.label('L_h2ok')
stampcnt(43)
A('s_nop 2')
A('s_mov_b32 exec_lo, s84\ns_mov_b32 exec_hi, s84')
src = [CA, CA + 2, CA + 4, CA + 8, CA + 10, CA + 12, CA + 16, CA + 18]
for dd in range(8):
    A(f'v_cvt_pk_bf16_f32 v{OLW+dd}, v{src[dd]}, v{src[dd]+1}')
    if dd in (3, 7): A(f'ds_write_b128 v9, {vr(OLW+dd-3,4)} offset:{1024*(dd//4)}')
full_exec()
A('s_waitcnt lgkmcnt(0)\ns_barrier')
stamp(16)
for s in range(4): A(f'ds_read_b128 {vr(56+4*s,4)}, v{aOL} offset:{1024*s}')
for s in range(4):
    A(f's_waitcnt lgkmcnt({3-s})')
    mfma32(72, UVF + 4 * s, 56 + 4 * s, '0' if s == 0 else None)
A(f'''s_cmp_lg_u32 s{sD}, 0
      s_cbranch_scc1 L_s4odd
      s_nop 5
      v_cvt_pk_bf16_f32 v{G4+2}, v72, v73
      v_cvt_pk_bf16_f32 v{G4+3}, v74, v75
      s_branch L_s4done''')
A.label('L_s4odd')
A(f'''s_nop 5
      v_cvt_pk_bf16_f32 v{G4}, v72, v73
      v_cvt_pk_bf16_f32 v{G4+1}, v74, v75''')
A.label('L_s4done')
set_exec(0x000f000f)
A(f'buffer_store_dwordx4 {vr(G4,4)}, v{aHCs}, {srd(WS)}, s77 offen')
full_exec()
stamp(17)
def fallback_store():
    set_exec(0x000f000f)
    A(f'buffer_store_dwordx4 {vr(G4,4)}, v{aHCs}, {srd(WS)}, s78 offen sc1')
    full_exec()
poll(f'''buffer_load_dwordx4 v[56:59], v{aL16}, {srd(WS)}, s76 offen sc1
         buffer_load_dwordx4 v[60:63], v{aL16}, {srd(WS)}, s76 offen offset:1024 sc1''', [56, 63], 136,
     onfail=toggle([76], HCA ^ HCB), late=fallback_store)
stampcnt(44)
stamp(18)
A5 = 80
for t in range(4): mfma32(A5 + 4 * t, OF + 4 * t, 58, '0')
YA, YB, YO = 64, 68, 72
for r in range(4): A(f'v_add_f32_dpp v{YA+r}, v{A5+r}, v{A5+r} row_ror:8 row_mask:0xf bank_mask:0x3')
for r in range(4): A(f'v_add_f32_dpp v{YB+r}, v{A5+4+r}, v{A5+4+r} row_ror:8 row_mask:0xf bank_mask:0x3')
for r in range(4): A(f'v_add_f32_dpp v{YA+r}, v{A5+8+r}, v{A5+8+r} row_ror:8 row_mask:0xf bank_mask:0xc')
for r in range(4): A(f'v_add_f32_dpp v{YB+r}, v{A5+12+r}, v{A5+12+r} row_ror:8 row_mask:0xf bank_mask:0xc')
for r in range(4): A(f'v_add_f32_dpp v{YO+r}, v{YA+r}, v{YA+r} row_shl:4 row_mask:0xf bank_mask:0x5')
for r in range(4): A(f'v_add_f32_dpp v{YO+r}, v{YB+r}, v{YB+r} row_shr:4 row_mask:0xf bank_mask:0xa')
A(f'''ds_write_b128 v{aRDw}, {vr(YO,4)}
      s_waitcnt lgkmcnt(0)
      s_barrier
      s_cmp_lt_u32 s{sWV}, 4
      s_cbranch_scc1 L_red
      ''')
for k in range(4): A(f'ds_read_b128 {vr(80+4*k,4)}, v{aHCl} offset:{1024*k}')
A(f'''s_add_u32 s76, s79, 0x40000
      s_add_u32 s77, s79, 0x80000
      s_add_u32 s78, s79, 0xc0000
      s_bitcmp1_b32 s{sH}, 3
      s_waitcnt lgkmcnt(0)
      v_pk_add_f32 v[80:81], v[80:81], v[84:85]
      v_pk_add_f32 v[82:83], v[82:83], v[86:87]
      v_pk_add_f32 v[88:89], v[88:89], v[92:93]
      v_pk_add_f32 v[90:91], v[90:91], v[94:95]
      v_pk_add_f32 v[80:81], v[80:81], v[88:89]
      v_pk_add_f32 v[82:83], v[82:83], v[90:91]
      v_cvt_pk_bf16_f32 v{W4+2}, v80, v81
      v_cvt_pk_bf16_f32 v{W4+3}, v82, v83
      s_cbranch_scc1 L_s5odd''')
for r in (79, 76, 77, 78): A(f'buffer_store_dwordx4 {vr(W4,4)}, v{aH3}, {srd(WS)}, s{r} offen sc1')
A('s_branch L_end')
A.label('L_s5odd')
for r in (79, 76, 77, 78): A(f'buffer_store_dwordx4 {vr(W4+2,4)}, v{aH3}, {srd(WS)}, s{r} offen sc1')
A.label('L_end')
endwave()

A.label('L_red')
def unpack_hv():
    A(f'''v_lshlrev_b32 v{HV}, 16, v204
          v_and_b32 v{HV+1}, 0xffff0000, v204
          v_lshlrev_b32 v{HV+2}, 16, v205
          v_and_b32 v{HV+3}, 0xffff0000, v205''')
def reduce_gather(nl, sbase):
    L, D = A.newlab('Lrp'), A.newlab('Lrok')
    MK = 8
    A(f's_mov_b32 s{sCNT}, 0\ns_add_u32 s{sA}, s{sbase}, 0x1000')
    for k in range(nl): A(f's_mov_b64 s[{MK+2*k}:{MK+2*k+1}], -1')
    A.label(L)
    for k in range(nl):
        sk = A.newlab('Lsk')
        A(f'''s_mov_b64 exec, s[{MK+2*k}:{MK+2*k+1}]
              s_cbranch_execz {sk}
              buffer_load_dwordx4 {vr(RD+4*k,4)}, v{aL16}, {srd(WS)}, s{sbase if k<4 else sA} offen offset:{(k&3)*1024} sc1''')
        A.label(sk)
    A('s_mov_b64 exec, -1\ns_waitcnt vmcnt(0)')
    for p in range((nl + 1) // 2):
        mfma32(RA, SEL, RD + 8 * p + 2, '0' if p == 0 else None)
    for k in range(nl):
        A(f'v_cmp_ne_u32 s[{MK+2*k}:{MK+2*k+1}], v{RD+4*k+(3 if k&1 else 0)}, v{vT}')
    A(f's_or_b64 s[6:7], s[{MK}:{MK+1}], s[{MK+2}:{MK+3}]')
    for k in range(2, nl): A(f's_or_b64 s[6:7], s[6:7], s[{MK+2*k}:{MK+2*k+1}]')
    A(f'''s_cbranch_scc0 {D}
          s_add_u32 s{sCNT}, s{sCNT}, 1
          s_cmp_lt_u32 s{sCNT}, {OPT['limit']}
          s_cbranch_scc1 {L}''')
    A.label(D)
    for r in range(4): A(f'v_add_f32_dpp v{RA+r}, v{RA+r}, v{RA+r} row_ror:8 row_mask:0xf bank_mask:0xf')
    for r in range(4): A(f'v_add_f32 v{HV+r}, v{HV+r}, v{RA+r}')
    A(f'v_cvt_pk_bf16_f32 v204, v{HV}, v{HV+1}\nv_cvt_pk_bf16_f32 v205, v{HV+2}, v{HV+3}')
unpack_hv()
sadd(sP0, (sX8, 13), (sFS, 7), H4A)
A(f's_xor_b32 s{sP1}, s{sP0}, {H4A ^ H4B}')
stamp(19)
reduce_gather(4, sP3)
A(f'''v_cndmask_b32 v208, v{vT}, v204, s[70:71]
      v_cndmask_b32 v209, v{vT}, v205, s[70:71]
      v_cndmask_b32 v210, v204, v{vT}, s[70:71]
      v_cndmask_b32 v211, v205, v{vT}, s[70:71]
      s_mov_b64 exec, 0xff
      buffer_store_dwordx4 v[208:211], v{aL16}, {srd(WS)}, s{sP0} offen
      buffer_store_dwordx4 v[208:211], v{aL16}, {srd(WS)}, s{sP1} offen sc1
      s_mov_b64 exec, -1''')
stampcnt(45)
stamp(20)
A(f'''s_and_b32 s{sA}, s{sFS}, 7
      s_cmp_lg_u32 s{sA}, s{sX8}
      s_cbranch_scc1 L_end''')
unpack_hv()
A(f'v_mov_b32 v{RD+28}, 0\nv_mov_b32 v{RD+29}, 0')
sadd(sP3, (sFS, 13), H5)
reduce_gather(7, sP3)
stampcnt(46)
A(f'''s_mov_b64 exec, 0xff
      buffer_store_dwordx2 v[204:205], v{aX}, {srd(OUT)}, s75 offen
      s_cmp_lg_u32 s{sFS}, 0
      s_cbranch_scc1 L_end
      s_mov_b64 exec, 1
      buffer_store_dword v{vT}, v{aL16}, {srd(WS)}, 0 offen sc1
      s_branch L_end''')

A.label('L_g1tail')
A(f'''v_lshrrev_b32 v9, 2, v{vI}
      v_mul_u32_u24 v9, 3584, v9
      v_lshl_add_u32 v9, v{vB4}, 7, v9
      v_lshlrev_b32 v10, 7, v{vL}''')
sadd(sA, (sR, 'mul', 32 * 3584), (sWV, 'mul', 4 * 3584), (sX8, 'mul', 448))
sadd(sC, (sX8, 'mul', 7 * 32768), (sR, 'mul', 14336), (sWV, 'mul', 1792))
A(f'''s_barrier
      s_mov_b64 exec, 0xffff
      buffer_load_dword v124, v9, {srd(WG)}, s{sA} offen{NTP}
      buffer_load_dword v125, v9, {srd(WU)}, s{sA} offen{NTP}
      s_mov_b64 exec, 0x3fff
      buffer_load_dword v126, v10, {srd(WD)}, s{sC} offen{NTP}
      s_mov_b64 exec, -1''')
A(f'''s_cmp_ge_u32 s{sR}, 7
      s_cbranch_scc1 L_end
      s_mul_i32 s{sFS}, s{sX8}, 7
      s_add_u32 s{sFS}, s{sFS}, s{sR}
      v_lshrrev_b32 v6, 2, v{vL}
      v_mul_u32_u24 v6, 3584, v6
      v_and_b32 v7, 1, v{vQ}
      v_lshlrev_b32 v7, 1, v7
      v_xor_b32 v7, v7, v{vB4}
      v_lshl_add_u32 v6, v7, 4, v6''')
sadd(sA, (sWV, 'mul', 64 * 3584), (sFS, 6))
sadd(sC, (sFS, 15), (sWV, 12))
A(f's_lshl_b32 s{sD}, s{sWV}, 12\ns_mul_i32 s{sP0}, s{sWV}, {4*PITCH}\ns_waitcnt vmcnt(0)\ns_barrier')
stamp(24)
for n in range(4):
    A(f's_add_u32 m0, s{sD}, {L_G + 1024*n}')
    A(f'buffer_load_dwordx4 v6, {srd(WG)}, s{sA} offen{NTW} lds')
    A(f's_add_u32 m0, s{sD}, {L_U + 1024*n}')
    A(f'buffer_load_dwordx4 v6, {srd(WU)}, s{sA} offen{NTW} lds')
    if n < 3: A(f's_add_u32 s{sA}, s{sA}, {16*3584}')
for n in range(4):
    A(f's_add_u32 m0, s{sP0}, {L_D + PITCH*n}')
    A(f'buffer_load_dwordx4 v{aL16}, {srd(WD)}, s{sC} offen{NTW} lds')
    if n < 3: A(f's_add_u32 s{sC}, s{sC}, 1024')
stamp(12)
A(f'''s_waitcnt vmcnt(0)
      s_barrier
      s_cmp_ge_u32 s{sWV}, 4
      s_cbranch_scc1 L_end''')
stamp(13)
FF, DF, FA, G2, G1, FO, CS, HQ, A7 = 112, 176, 208, 224, 244, 248, 96, 16, 48
A(f'''v_lshl_add_u32 v6, v{vQ}, 2, v{vU}
      v_lshlrev_b32 v6, 6, v6
      v_lshl_add_u32 v6, v{vB4}, 3, v6
      s_lshl_b32 s{sA}, s{sV4}, 13
      v_add_u32 v6, s{sA}, v6
      v_and_b32 v7, 1, v{vQ}
      v_lshl_add_u32 v6, v7, 5, v6
      v_xor_b32 v7, 32, v6
      v_lshl_add_u32 v8, v{vQ}, 2, v{vU}
      v_mul_u32_u24 v8, {PITCH}, v8
      v_lshl_add_u32 v8, v{vB4}, 3, v8
      s_lshl_b32 s{sA}, s{sV4}, 8
      s_add_u32 s{sA}, s{sA}, {L_D}
      v_add_u32 v8, s{sA}, v8''')
for k in range(4): A(f'v_mov_b32 v{FO+k}, s{sONES}')
for s in range(4):
    for u in range(4):
        for hf in range(2):
            A(f'ds_read_b64_tr_b16 {vr(FF+(u*4+s)*4+2*hf,2)}, v{6+(u&1)} offset:{(L_U if u>=2 else L_G) + s*2048 + hf*1024}')
    A('s_waitcnt lgkmcnt(0)')
    for u in range(4): mfma32(FA + 4 * u, FF + (u * 4 + s) * 4, FO, '0' if s == 0 else None)
for t in range(8):
    for hf in range(2):
        A(f'ds_read_b64_tr_b16 {vr(DF+4*t+2*hf,2)}, v8 offset:{hf*16*PITCH + 32*t}')
def compact(dst):
    for u in range(4):
        if u: set_exec(0x000f000f << (4 * u))
        for r in range(4): A(f'v_mov_b32 v{dst+r}, v{FA+4*u+r}')
    full_exec()
compact(100)
A(f'''v_add_u32 v8, {L_FX}, v{aL16}
      s_lshl_b32 s{sA}, s{sV4}, 10
      v_add_u32 v9, s{sA}, v8
      ds_write_b128 v9, v[100:103]
      s_waitcnt lgkmcnt(0)
      s_barrier''')
for k in range(4): A(f'ds_read_b128 {vr(80+4*k,4)}, v8 offset:{1024*k}')
A(f'''v_lshlrev_b32 v6, 7, v{vQ}
      v_lshl_add_u32 v6, v{vB4}, 4, v6
      v_lshrrev_b32 v7, 1, v{vU}
      v_lshl_add_u32 v7, v7, 2, v{vQ}
      v_lshlrev_b32 v7, 13, v7
      v_and_b32 v10, 7, v{vL}
      v_lshl_add_u32 v7, v10, 4, v7
      v_lshlrev_b32 v10, 3, v{vL}
      v_add_u32 v10, {L_FX + 8192}, v10
      s_lshl_b32 s{sA}, s{sV4}, 9
      v_add_u32 v11, s{sA}, v10
      v_cmp_gt_u32 vcc, 2, v{vU}
      v_mov_b32 v12, 0xff800000
      v_cndmask_b32 v12, v12, 0, vcc''')
sadd(sP0, (sX8, 13), (sV4, 11), H4A)
sadd(sP1, (sV4, 17), (sFS, 7), H5)
A(f's_add_u32 s{sP2}, s{sP1}, 0x10000\ns_waitcnt lgkmcnt(0)')
for r in range(4):
    A(f'''v_add_f32 v{CS+r}, v{80+r}, v{84+r}
          v_add_f32 v{88+r}, v{88+r}, v{92+r}
          v_add_f32 v{CS+r}, v{CS+r}, v{88+r}''')
W70, W71 = 232, 238
for k in (0, 1, 4, 5): A(f'v_mov_b32 v{W70+k}, s{sT}\nv_mov_b32 v{W71+k}, s{sT}')
stamp(19)
loads, tg = '', []
for s in range(4):
    for e in range(2):
        loads += f'buffer_load_dwordx4 {vr(HQ+8*s+4*e,4)}, v6, {srd(WS)}, s{sP0} offen offset:{512*s+64*e} sc1\n'
    tg += [HQ + 8 * s, HQ + 8 * s + 7]
lab = A.newlab('Lnt')
poll(loads, tg, 104, onfail=f'''s_and_b32 s{sA}, s{sCNT}, 7
        s_cmp_lt_u32 s{sA}, 2
        s_cselect_b32 s{sA}, {H4A ^ H4B}, 0
        s_cmp_lt_u32 s{sCNT}, 8
        s_cselect_b32 s{sA}, 0, s{sA}
        s_xor_b32 s{sP0}, s{sP0}, s{sA}''')
stampcnt(45)
stamp(20)
for s in range(4):
    c = '0' if s == 0 else None
    for u in range(4): mfma32(FA + 4 * u, FF + (u * 4 + s) * 4, HQ + 8 * s + 2, c)
    mfma32(G2, HQ + 8 * s + 2, HQ + 8 * s + 2, c)
    mfma32(G1, FO, HQ + 8 * s + 2, c)
compact(100)
A('ds_write_b128 v9, v[100:103] offset:4096')
for b in range(4):
    if b: set_exec(0x11111111 << b)
    A(f'v_mov_b32 v{G1+1}, v{G2+b}')
full_exec()
A(f'''ds_write_b64 v11, {vr(G1,2)}
      s_waitcnt lgkmcnt(0)
      s_barrier''')
for k in range(4): A(f'ds_read_b64 {vr(16+2*k,2)}, v10 offset:{512*k}')
for k in range(4): A(f'ds_read_b128 {vr(80+4*k,4)}, v8 offset:{4096+1024*k}')
A(f'''s_waitcnt lgkmcnt(4)
      v_pk_add_f32 v[16:17], v[16:17], v[18:19]
      v_pk_add_f32 v[20:21], v[20:21], v[22:23]
      v_pk_add_f32 v[16:17], v[16:17], v[20:21]
      v_mul_f32 v16, {f32(-1.0/512)}, v16
      v_mov_b32 v18, {f32(1e-5)}
      v_fmac_f32 v18, {f32(1.0/512)}, v17
      v_fma_f32 v18, -v16, v16, v18
      v_rsq_f32 v18, v18
      s_waitcnt lgkmcnt(0)''')
for r in range(0, 4, 2):
    A(f'''v_pk_add_f32 {vr(80+r,2)}, {vr(80+r,2)}, {vr(84+r,2)}
          v_pk_add_f32 {vr(88+r,2)}, {vr(88+r,2)}, {vr(92+r,2)}
          v_pk_add_f32 {vr(80+r,2)}, {vr(80+r,2)}, {vr(88+r,2)}''')
for r in range(4): A(f'v_fmac_f32 v{80+r}, v16, v{CS+r}')
for r in range(4): A(f'v_mul_f32 v{80+r}, v18, v{80+r}')
for r in range(4): A(f'v_max_f32 v{80+r}, v12, v{80+r}')
for r in range(4): A(f'v_mul_f32_dpp v{84+r}, v{80+r}, v{80+r} row_ror:8 row_mask:0xf bank_mask:0xf')
A('''v_cvt_pk_bf16_f32 v88, v84, v85
     v_cvt_pk_bf16_f32 v89, v86, v87
     v_cvt_pk_bf16_f32 v92, v84, v85
     v_cvt_pk_bf16_f32 v93, v86, v87
     v_cvt_pk_bf16_f32 v94, v84, v85
     v_cvt_pk_bf16_f32 v95, v86, v87
     v_mov_b32_dpp v92, v88 row_ror:4 row_mask:0xf bank_mask:0xa
     v_mov_b32_dpp v93, v89 row_ror:4 row_mask:0xf bank_mask:0xa
     v_mov_b32_dpp v94, v88 row_ror:4 row_mask:0xf bank_mask:0x5
     v_mov_b32_dpp v95, v89 row_ror:4 row_mask:0xf bank_mask:0x5''')
order = [0, 4, 1, 5, 2, 6, 3, 7]
for t in order: mfma32(A7 + 4 * t, DF + 4 * t, 92, '0')
A(f's_bitcmp1_b32 s{sFS}, 3')
for u in range(4):
    if u: set_exec(0x000f000f << (4 * u))
    A(f'''v_cvt_pk_bf16_f32 v{W70+2}, v{A7+4*u}, v{A7+4*u+1}
          v_cvt_pk_bf16_f32 v{W70+3}, v{A7+4*u+2}, v{A7+4*u+3}
          v_cvt_pk_bf16_f32 v{W71+2}, v{A7+16+4*u}, v{A7+16+4*u+1}
          v_cvt_pk_bf16_f32 v{W71+3}, v{A7+16+4*u+2}, v{A7+16+4*u+3}''')
full_exec()
A(f'''s_cbranch_scc1 L_s7odd
      buffer_store_dwordx4 {vr(W70,4)}, v7, {srd(WS)}, s{sP1} offen sc1
      buffer_store_dwordx4 {vr(W71,4)}, v7, {srd(WS)}, s{sP2} offen sc1
      s_branch L_end''')
A.label('L_s7odd')
A(f'''buffer_store_dwordx4 {vr(W70+2,4)}, v7, {srd(WS)}, s{sP1} offen sc1
      buffer_store_dwordx4 {vr(W71+2,4)}, v7, {srd(WS)}, s{sP2} offen sc1
      s_branch L_end''')
A.label('L_exit')
A('s_endpgm')

ref = open('cdna_kernels/%s.s.ref' % NAME).read().split('\n')
head = []
for ln in ref:
    if ln.startswith('; @launch'):
        head.append('; @launch grid=(256,1,1) block=(512,1,1) lds=%d' % LDS_BYTES); break
    head.append(ln)
out = '\n'.join(head) + f"""
.amdgcn_target "amdgcn-amd-amdhsa--gfx950"
.text
.globl {NAME}_kernel
.p2align 8
.type {NAME}_kernel,@function
{NAME}_kernel:
""" + A.text() + f""".section .rodata,"a"
.p2align 6
.amdhsa_kernel {NAME}_kernel
  .amdhsa_next_free_vgpr 256
  .amdhsa_next_free_sgpr 102
  .amdhsa_accum_offset 256
  .amdhsa_group_segment_fixed_size 0
  .amdhsa_kernarg_size 104
  .amdhsa_user_sgpr_count 2
  .amdhsa_user_sgpr_kernarg_segment_ptr 1
  .amdhsa_system_sgpr_workgroup_id_x 1
.end_amdhsa_kernel
"""
open(sys.argv[1], 'w').write(out)
```

```python
import sys, math, struct
from asmlib import Asm, vr, sr

NAME = 'sequential_preLN__compressed_kv_cla__glu_gated_reglu__decode'
OPT = dict(fix=0, fixat=63, ph0=0, ph1=6, ph15=6, rev=1, wukd=1, inf=0, pf=1, pf_nt=1, h3pre=1, kl=5, debug=0, prog0=28, prog1=24, ckv_nt=1, w_nt=1, limit=20000, ka=8, qsleep=8)
for a in sys.argv[2:]:
    k, v = a.split('='); OPT[k] = int(v)
DEBUG = OPT['debug']

H0A, H0B, H1, HS = 0x40000, 0x80000, 0xC0000, 0x100000
H4A, H4B = 0x120000, 0x130000
HCA, HCB = 0x140000, 0x180000
H3, H5, H2, DBG = 0xC00000, 0x200000, 0x400000, 0xA00000
WS_BYTES = 0x1000000
PITCH = 1056
L_P = 128 * PITCH
L_R = L_P + 4096
LDS_BYTES = 163840
L_WQ, L_WUK = 16 * PITCH, 48 * PITCH
L_QX = L_P + 2560
L_XC = L_P
L_XQ = L_R
def pad(row): return row * PITCH + 1024
L_MAX, L_QFLAG, L_PROG = pad(72), pad(96), pad(96) + 16
WP = 288
L_UV, L_WO, L_CS, L_OL, L_RED, L_WT = 0, 36864, 73728, 122880, 126976, 135168
L_G, L_U, L_D, L_FX = 0, 32768, 65536, 102400
sWV, sT, sE = 3, 4, 5
X, CKV, WQ, WUK, WUV, WO, WG, WU, WD, OUT, WS = 8, 12, 16, 20, 24, 28, 32, 36, 40, 44, 48
sH, sJ4, sB, sX8, sG, sPAIR, sV4, sR = 52, 53, 54, 55, 56, 57, 58, 59
sCNT, sA, sBt, sC, sD = 60, 61, 62, 63, 64
sP0, sP1, sP2, sP3 = 65, 66, 67, 68
sH2ST, sHSST, sFS = 72, 73, 74
sONES = 82
sST = 90
def srd(b): return sr(b, 4)
vL, vQ, vI, vB4, vU, vT = 1, 2, 3, 4, 5, 15
aL16, aVF0, aVF1, aP, aSR, aST, aSW = 228, 229, 230, 231, 233, 234, 252
aKF, aQF, aMXr, aMXw, aPw, aHS = 237, 238, 239, 240, 241, 242
vSTAMP = 255
NTC = ' nt' if OPT['ckv_nt'] else ''
NTW = ' nt' if OPT['w_nt'] else ''
def f32(x): return '0x%08x' % struct.unpack('<I', struct.pack('<f', x))[0]
A = Asm()

def stamp(i):
    if OPT['fix'] and i == OPT['fixat']:
        lab = A.newlab('Lfix')
        A.label(lab)
        A(f'''s_memrealtime s[{sST}:{sST+1}]
              s_waitcnt lgkmcnt(0)
              s_sub_u32 s{sST}, s{sST}, s{sST+2}
              s_cmp_lt_u32 s{sST}, {OPT['fix']}
              s_cbranch_scc1 {lab}''')
    if DEBUG:
        A(f'''s_memrealtime s[{sST}:{sST+1}]
              s_waitcnt lgkmcnt(0)
              v_writelane_b32 v{vSTAMP}, s{sST}, {i}''')
def stampcnt(i):
    if DEBUG: A(f's_add_u32 s{sST}, s{sCNT}, 1\nv_writelane_b32 v{vSTAMP}, s{sST}, {i}')

def endwave():
    if not DEBUG: stamp(63)
    if DEBUG:
        stamp(63)
        A(f's_memtime s[{sST}:{sST+1}]\ns_waitcnt lgkmcnt(0)\ns_sub_u32 s{sST}, s{sST}, s{sST+4}\nv_writelane_b32 v{vSTAMP}, s{sST}, 47')
        A(f'''s_mov_b64 exec, -1
              s_lshl_b32 s{sA}, s2, 3
              s_add_u32 s{sA}, s{sA}, s{sWV}
              s_lshl_b32 s{sA}, s{sA}, 8
              s_add_u32 s{sA}, s{sA}, {DBG}
              v_lshlrev_b32 v6, 2, v{vL}
              buffer_store_dword v{vSTAMP}, v6, {srd(WS)}, s{sA} offen''')
    if DEBUG == 2:
        ids = [0, 3, 5, 6, 8, 9, 10, 11, 13, 14, 15, 16, 18, 19, 20, 63]
        A(f'''s_lshl_b32 s{sA}, s2, 3
              s_add_u32 s{sA}, s{sA}, s{sWV}
              s_cmp_lg_u32 s{sA}, 0
              s_cbranch_scc1 L_nodbg
              s_load_dwordx2 s[96:97], s[0:1], 88
              s_mov_b32 s98, 256
              s_mov_b32 s99, 0x00020000
              v_mov_b32 v7, 0''')
        for k, i in enumerate(ids):
            A(f'v_readlane_b32 s{sA}, v{vSTAMP}, {i}\ns_sub_u32 s{sA}, s{sA}, s{sST+2}\nv_writelane_b32 v7, s{sA}, {k}')
        A(f'''s_waitcnt lgkmcnt(0)
              buffer_store_dword v7, v6, s[96:99], 0 offen''')
        A.label('L_nodbg')
    A('s_endpgm')

def set_exec(mask32): A(f's_mov_b32 exec_lo, 0x{mask32:08x}\ns_mov_b32 exec_hi, 0x{mask32:08x}')
def full_exec(): A('s_mov_b64 exec, -1')

def check_tags(tags, tmp):
    acc, t1, t2 = tmp, tmp + 1, tmp + 2
    tags = list(tags)
    if len(tags) == 1:
        A(f'v_cmp_ne_u32 vcc, v{tags[0]}, v{vT}'); return
    if len(tags) % 2: tags.append(tags[-1])
    prs = [(tags[i], tags[i + 1]) for i in range(0, len(tags), 2)]
    A(f'v_bitop3_b32 v{acc}, v{prs[0][0]}, v{prs[0][1]}, v{vT} bitop3:0x7e')
    rest = prs[1:]
    while rest:
        if len(rest) >= 2:
            A(f'v_bitop3_b32 v{t1}, v{rest[0][0]}, v{rest[0][1]}, v{vT} bitop3:0x7e')
            A(f'v_bitop3_b32 v{t2}, v{rest[1][0]}, v{rest[1][1]}, v{vT} bitop3:0x7e')
            A(f'v_or3_b32 v{acc}, v{acc}, v{t1}, v{t2}')
            rest = rest[2:]
        else:
            A(f'v_bitop3_b32 v{t1}, v{rest[0][0]}, v{rest[0][1]}, v{vT} bitop3:0x7e')
            A(f'v_or_b32 v{acc}, v{acc}, v{t1}')
            rest = rest[1:]
    A(f'v_cmp_ne_u32 vcc, 0, v{acc}')

def poll(loads, tags, tmp, onfail='', between=None, late=None, pre_late=''):
    L, D = A.newlab('Lpoll'), A.newlab('Lpok')
    A(f's_mov_b32 s{sCNT}, 0')
    A(loads)
    if between: between()
    A.label(L)
    A('s_waitcnt vmcnt(0)')
    check_tags(tags, tmp)
    A(f'''s_cmp_eq_u64 vcc, 0
          s_cbranch_scc1 {D}
          s_add_u32 s{sCNT}, s{sCNT}, 1''')
    if late:
        l2 = A.newlab('Lnl')
        A(f's_cmp_lg_u32 s{sCNT}, {OPT["kl"]}\ns_cbranch_scc1 {l2}')
        late()
        A.label(l2)
    A(onfail)
    A(loads)
    A(f'''s_cmp_lt_u32 s{sCNT}, {OPT['limit']}
          s_cbranch_scc1 {L}
          s_waitcnt vmcnt(0)''')
    A.label(D)
    A(pre_late)
    if late: late()

def toggle(regs, x):
    lab = A.newlab('Lnt')
    return f's_cmp_lt_u32 s{sCNT}, {OPT["ka"]}\ns_cbranch_scc1 {lab}\n' + ''.join(f's_xor_b32 s{r}, s{r}, {x}\n' for r in regs) + f'{lab}:'

def lds_wait(addr, n, tmp):
    L, D = A.newlab('Llw'), A.newlab('Llok')
    A(f's_mov_b32 s{sCNT}, 0\nv_mov_b32 v{tmp+7}, {addr}')
    A.label(L)
    if n == 1:
        A(f'ds_read_b32 v{tmp}, v{tmp+7}\ns_waitcnt lgkmcnt(0)')
    else:
        A(f'ds_read_b128 {vr(tmp,4)}, v{tmp+7}\ns_waitcnt lgkmcnt(0)')
        A(f'v_bitop3_b32 v{tmp}, v{tmp}, v{tmp+1}, v{tmp+2} bitop3:0x80\nv_and_b32 v{tmp}, v{tmp}, v{tmp+3}')
    A(f'''v_cmp_ne_u32 vcc, -1, v{tmp}
          s_cmp_eq_u64 vcc, 0
          s_cbranch_scc1 {D}
          s_sleep 1
          s_add_u32 s{sCNT}, s{sCNT}, 1
          s_cmp_lt_u32 s{sCNT}, {OPT['limit']*8}
          s_cbranch_scc1 {L}''')
    A.label(D)

def make_tag():
    A(f'''s_waitcnt lgkmcnt(0)
          s_add_u32 s{sT}, s{sE}, 0x9e3779b9
          v_mov_b32 v{vT}, s{sT}''')

def swap_red(a, t, op, which):
    A(f'v_mov_b32 v{t}, v{a}\nv_permlane{which}_swap_b32 v{a}, v{t}\n{op} v{a}, v{a}, v{t}')
def row_red(a, op):
    for n in (1, 2, 4, 8):
        A(f'{op}_dpp v{a}, v{a}, v{a} row_ror:{n} row_mask:0xf bank_mask:0xf')

def mfma32(d, a, b, c=None):
    A(f'v_mfma_f32_16x16x32_bf16 {vr(d,4)}, {vr(a,4)}, {vr(b,4)}, {vr(d,4) if c is None else c}')

def sadd(dst, *terms):
    const = sum(t for t in terms if isinstance(t, int))
    first = True
    for t in terms:
        if isinstance(t, int): continue
        tgt = dst if first else sBt
        if len(t) == 3: A(f's_mul_i32 s{tgt}, s{t[0]}, {t[2]}')
        elif t[1] == 0:
            if first: A(f's_mov_b32 s{dst}, s{t[0]}')
            else: A(f's_add_u32 s{dst}, s{dst}, s{t[0]}'); continue
        else: A(f's_lshl_b32 s{tgt}, s{t[0]}, {t[1]}')
        if not first: A(f's_add_u32 s{dst}, s{dst}, s{sBt}')
        first = False
    if const: A(f's_add_u32 s{dst}, s{dst}, {const}')

if DEBUG or OPT['fix']: A(f's_memrealtime s[{sST+2}:{sST+3}]\ns_memtime s[{sST+4}:{sST+5}]')
A(f'''s_cmp_ge_u32 s2, 256
      s_cbranch_scc1 L_exit
      s_load_dwordx2 s[{CKV}:{CKV+1}], s[0:1], 8
      s_load_dwordx2 s[{X}:{X+1}], s[0:1], 0
      s_load_dwordx2 s[{WQ}:{WQ+1}], s[0:1], 16
      s_load_dwordx2 s[{WUK}:{WUK+1}], s[0:1], 24
      s_load_dwordx2 s[{WS}:{WS+1}], s[0:1], 96
      v_lshrrev_b32 v6, 6, v0
      v_and_b32 v{vL}, 63, v0
      v_readfirstlane_b32 s{sWV}, v6
      v_lshrrev_b32 v{vQ}, 4, v{vL}
      v_and_b32 v{vI}, 15, v{vL}
      v_and_b32 v{vB4}, 3, v{vL}
      v_lshrrev_b32 v{vU}, 2, v{vI}
      v_lshlrev_b32 v{aL16}, 4, v{vL}''')
for b, n in ((X, 4096), (CKV, 1 << 24), (WQ, 1 << 22), (WUK, 1 << 22), (WUV, 1 << 22), (WO, 1 << 22), (WG, 1835008),
             (WU, 1835008), (WD, 1835008), (OUT, 4096), (WS, WS_BYTES)):
    A(f's_mov_b32 s{b+2}, {n}\ns_mov_b32 s{b+3}, 0x00020000')
A(f'''s_and_b32 s{sX8}, s2, 7
      s_bfe_u32 s{sR}, s2, 0x40003
      s_and_b32 s{sC}, s{sR}, 3
      s_lshl2_add_u32 s{sH}, s{sX8}, s{sC}
      s_lshr_b32 s{sJ4}, s{sR}, 2
      s_lshl4_add_u32 s{sPAIR}, s{sX8}, s{sR}
      s_lshr_b32 s{sB}, s{sPAIR}, 5
      s_lshr_b32 s{sG}, s2, 7
      s_and_b32 s{sV4}, s{sWV}, 3
      s_mov_b32 s{sONES}, 0x3f803f80''')
if DEBUG: A(f'v_mov_b32 v{vSTAMP}, 0\ns_waitcnt lgkmcnt(0)\nv_writelane_b32 v{vSTAMP}, s{sST+2}, 62')
A(f'''s_waitcnt lgkmcnt(0)
      s_load_dword s{sE}, s[{WS}:{WS+1}], 0
      s_load_dwordx2 s[{WUV}:{WUV+1}], s[0:1], 32
      s_load_dwordx2 s[{WO}:{WO+1}], s[0:1], 40
      s_load_dwordx2 s[{WG}:{WG+1}], s[0:1], 56
      s_load_dwordx2 s[{WU}:{WU+1}], s[0:1], 64
      s_load_dwordx2 s[{WD}:{WD+1}], s[0:1], 72
      s_load_dwordx2 s[{OUT}:{OUT+1}], s[0:1], 80
      s_cmp_lt_u32 s{sWV}, 4
      s_cbranch_scc1 L_stream''')

XS, XF, TF, ACC, G1_, UF, XQ, XB = 16, 32, 80, 112, 120, 96, 128, 136
A(f'''s_setprio 3
      s_cmp_lg_u32 s{sWV}, 4
      s_cbranch_scc1 L_nox
      v_lshlrev_b32 v6, 10, v{vQ}
      v_lshl_add_u32 v6, v{vI}, 4, v6
      s_lshl_b32 s{sA}, s{sJ4}, 8''')
for k in range(4):
    A(f'buffer_load_dwordx4 {vr(XS+4*k,4)}, v6, {srd(X)}, s{sA} offen')
    if k < 3: A(f's_add_u32 s{sA}, s{sA}, 256\ns_and_b32 s{sA}, s{sA}, 1023')
A.label('L_nox')
A(f'''v_lshrrev_b32 v7, 3, v{vL}
      v_and_b32 v8, 7, v{vL}
      v_lshlrev_b32 v9, 1, v{vQ}
      v_xor_b32 v8, v8, v9
      v_lshlrev_b32 v8, 4, v8
      v_lshl_add_u32 v7, v7, 13, v8''')
sadd(sA, (sJ4, 20), (sV4, 18), (sH, 8), (sG, 7))
A(f's_lshl_b32 s{sC}, s{sV4}, 12')
for n in range(4):
    A(f's_add_u32 m0, s{sC}, {L_WQ + n*1024}')
    A(f'buffer_load_dwordx4 v7, {srd(WQ)}, s{sA} offen{NTW} lds')
    if n < 3: A(f's_add_u32 s{sA}, s{sA}, 0x10000')
A(f'''v_xor_b32 v7, v{vQ}, v{vI}
      v_lshlrev_b32 v7, 4, v7
      v_lshl_add_u32 v7, v{vQ}, 13, v7''')
sadd(sA, (sG, 21), (sJ4, 19), (sV4, 17), (sH, 8))
A(f's_mul_i32 s{sC}, s{sV4}, 4160')
if OPT['wukd']: A('s_waitcnt vmcnt(%d)' % (4 - OPT['wukd']))
for n in range(4):
    A(f's_add_u32 m0, s{sC}, {L_WUK + n*1040}')
    A(f'buffer_load_dwordx4 v7, {srd(WUK)}, s{sA} offen{NTW} lds')
    if n < 3: A(f's_add_u32 s{sA}, s{sA}, 0x8000')
sadd(sP0, (sH, 13), H0A)
sadd(sA, (sG, 12), (sJ4, 10), (sV4, 8), (sP0, 0))
A(f'''v_and_b32 v8, 1, v{vL}
      v_lshlrev_b32 v8, 7, v8
      buffer_load_dword v200, v8, {srd(WS)}, s{sA} offen sc1
      s_setprio 0''')
stamp(0)
A(f'''v_lshl_add_u32 v8, v{vQ}, 2, v{vU}
      v_bfe_u32 v9, v8, 1, 2
      v_xor_b32 v9, s{sV4}, v9
      v_lshlrev_b32 v9, 5, v9
      v_lshl_add_u32 v9, v8, 7, v9
      v_lshl_add_u32 v9, v{vB4}, 3, v9
      v_mul_u32_u24 v14, 272, v{vB4}
      v_lshl_add_u32 v14, v{vQ}, 3, v14
      v_add_u32 v14, {L_XC}, v14
      v_lshlrev_b32 v11, 8, v{vQ}
      v_lshl_add_u32 v11, v{vB4}, 4, v11''')
sadd(sP1, (sG, 12), (sV4, 10), (sJ4, 6), (sP0, 0))
A(f's_xor_b32 s{sP3}, s{sP1}, {H0A ^ H0B}')
sadd(sP0, (sP0, 0), (sV4, 11))
A(f'''v_mul_u32_u24 v8, 1040, v{vU}
      v_lshl_add_u32 v8, v{vB4}, 8, v8
      v_and_b32 v10, 1, v{vQ}
      v_lshl_add_u32 v8, v10, 3, v8
      v_add_u32 v8, s{sC}, v8
      v_lshrrev_b32 v10, 1, v{vQ}
      v_xor_b32 v10, v10, v{vB4}
      v_xor_b32 v124, 2, v10
      v_lshl_add_u32 v10, v10, 4, v8
      v_lshl_add_u32 v124, v124, 4, v8
      v_add_u32 v125, {L_XQ}, v{aL16}
      s_lshl_b32 s{sA}, s{sV4}, 10
      v_add_u32 v126, s{sA}, v125
      v_lshlrev_b32 v127, 4, v{vQ}
      v_lshl_add_u32 v127, v{vB4}, 16, v127''')
sadd(sP2, (sH, 11), (sG, 10), (sJ4, 8), (sV4, 6), H1)
make_tag()
for k in range(4): A(f'v_mov_b32 v{G1_+k}, s{sT}')
A(f'v_mov_b32 v118, s{sT}\nv_mov_b32 v119, s{sT}')
A(f's_cmp_lg_u32 s{sWV}, 4\ns_cbranch_scc1 L_noln\ns_waitcnt vmcnt(9)\nv_mov_b32 v12, 0')
for k in range(16): A(f'v_dot2c_f32_bf16 v12, s{sONES}, v{XS+k}')
A(f'v_mul_u32_u24 v6, 272, v{vQ}\nv_lshl_add_u32 v6, v{vI}, 4, v6\nv_add_u32 v6, {L_XC}, v6')
row_red(12, 'v_add_f32')
A(f'v_mul_f32 v12, {f32(-1.0/512)}, v12\nv_mov_b32 v13, v12\nv_mov_b32 v44, 0\nv_mov_b32 v45, 0')
for k in range(16):
    t = 48 + 2 * k
    A(f'''v_lshlrev_b32 v{t}, 16, v{XS+k}
          v_and_b32 v{t+1}, 0xffff0000, v{XS+k}
          v_pk_add_f32 {vr(t,2)}, {vr(t,2)}, v[12:13]''')
    if k < 4: A(f'v_cvt_pk_bf16_f32 v{40+k}, v{t}, v{t+1}')
    if k == 3: A('ds_write_b128 v6, v[40:43]')
    A(f'v_pk_fma_f32 v[44:45], {vr(t,2)}, {vr(t,2)}, v[44:45]')
A('v_add_f32 v12, v44, v45')
row_red(12, 'v_add_f32')
A(f'''v_mov_b32 v13, {f32(1e-5)}
      v_fmac_f32 v13, {f32(1.0/512)}, v12
      v_rsq_f32 v12, v13
      v_lshlrev_b32 v6, 2, v{vQ}
      v_add_u32 v6, {L_XC+2048}, v6
      v_mul_f32 v12, {f32(128**-0.5*math.log2(math.e))}, v12
      ds_write_b32 v6, v12
      s_waitcnt lgkmcnt(0)''')
stamp(21)
A.label('L_noln')
A(f'''v_lshlrev_b32 v6, 2, v{vB4}
      v_add_u32 v6, {L_XC+2048}, v6
      s_waitcnt vmcnt(5)''')
stamp(1)
A('s_barrier')
for s in range(4):
    for hf in range(2):
        A(f'ds_read_b64 {vr(XF+4*s+2*hf,2)}, v14 offset:{64*s + 32*hf}')
        A(f'ds_read_b64_tr_b16 {vr(TF+4*s+2*hf,2)}, v9 offset:{L_WQ + s*4096 + hf*2048}')
A(f's_bitcmp1_b32 s{sV4}, 0')
for s in range(4):
    A(f's_waitcnt lgkmcnt({12-4*s})')
    mfma32(ACC, TF + 4 * s, XF + 4 * s, '0' if s == 0 else None)
A(f'''ds_read_b32 v12, v6
      s_cbranch_scc1 L_s1odd
      s_nop 5
      v_cvt_pk_bf16_f32 v{G1_+2}, v{ACC}, v{ACC+1}
      v_cvt_pk_bf16_f32 v{G1_+3}, v{ACC+2}, v{ACC+3}
      s_branch L_s1done''')
A.label('L_s1odd')
A(f'''s_nop 5
      v_cvt_pk_bf16_f32 v{G1_}, v{ACC}, v{ACC+1}
      v_cvt_pk_bf16_f32 v{G1_+1}, v{ACC+2}, v{ACC+3}''')
A.label('L_s1done')
set_exec(0x000f000f)
A(f'buffer_store_dwordx4 {vr(G1_,4)}, v11, {srd(WS)}, s{sP1} offen')
full_exec()
stamp(2)
A('s_waitcnt vmcnt(1)')
for s in range(4):
    A(f'ds_read_b64 {vr(UF+4*s,2)}, v10 offset:{L_WUK + s*64}')
    A(f'ds_read_b64 {vr(UF+4*s+2,2)}, v124 offset:{L_WUK + s*64}')
def fb0():
    set_exec(0x000f000f)
    A(f'buffer_store_dwordx4 {vr(G1_,4)}, v11, {srd(WS)}, s{sP3} offen sc1')
    full_exec()
poll(f'''buffer_load_dwordx4 {vr(XQ,4)}, v{aL16}, {srd(WS)}, s{sP0} offen sc1
         buffer_load_dwordx4 {vr(XQ+4,4)}, v{aL16}, {srd(WS)}, s{sP0} offen offset:1024 sc1''',
     [XQ, XQ + 7], 44, onfail=toggle([sP0], H0A ^ H0B), late=fb0, pre_late=f'ds_write_b128 v126, {vr(XQ+2,4)}')
stampcnt(40)
stamp(3)
A('s_waitcnt lgkmcnt(0)\ns_barrier')
for s in range(4): A(f'ds_read_b128 {vr(XB+4*s,4)}, v125 offset:{1024*s}')
for s in range(4):
    A(f's_waitcnt lgkmcnt({3-s})')
    mfma32(ACC, UF + 4 * s, XB + 4 * s, '0' if s == 0 else None)
for r in range(4): A(f'v_add_f32_dpp v{ACC+r}, v{ACC+r}, v{ACC+r} row_ror:4 row_mask:0xf bank_mask:0xf')
for r in range(4): A(f'v_add_f32_dpp v{ACC+r}, v{ACC+r}, v{ACC+r} row_ror:8 row_mask:0xf bank_mask:0xf')
for r in range(4): A(f'v_mul_f32 v{ACC+r}, v12, v{ACC+r}')
set_exec(0x000f000f)
A(f'v_cvt_pk_bf16_f32 v116, v{ACC}, v{ACC+1}\nv_cvt_pk_bf16_f32 v117, v{ACC+2}, v{ACC+3}')
A(f'buffer_store_dwordx4 v[116:119], v127, {srd(WS)}, s{sP2} offen sc1')
full_exec()
A('s_barrier')
stamp(4)
A('s_branch L_qgather')

VF, PF, PA, OW, LA, ONES = 16, 80, 96, 112, 216, 220
RB = PF
def common_addr():
    A(f'''v_lshl_add_u32 v{aVF0}, v{vQ}, 2, v{vU}
          v_mul_u32_u24 v{aVF0}, {PITCH}, v{aVF0}
          v_lshl_add_u32 v{aVF0}, v{vB4}, 3, v{aVF0}
          s_lshl_b32 s{sA}, s{sWV}, 7
          v_add_u32 v{aVF0}, s{sA}, v{aVF0}
          v_add_u32 v{aVF1}, {64*PITCH}, v{aVF0}
          v_add_u32 v{aP}, {L_P}, v{aL16}
          s_mul_i32 s{sA}, s{sWV}, 3072
          s_add_u32 s{sA}, s{sA}, {L_R}
          v_add_u32 v{aSR}, s{sA}, v{aL16}
          v_mul_u32_u24 v9, 192, v{vI}
          v_add_u32 v9, s{sA}, v9
          v_lshrrev_b32 v10, 1, v{vI}''')
    for k in range(3):
        A(f'''v_mad_u32_u24 v6, v{vQ}, 3, {k}
              v_add_u32 v7, v6, v10
              v_bfi_b32 v6, 3, v7, v6
              v_lshl_add_u32 v{aSW+k}, v6, 4, v9
              v_add_u32 v6, {64*k}, v{vL}
              v_mul_u32_u24 v7, 171, v6
              v_lshrrev_b32 v7, 11, v7
              v_lshrrev_b32 v11, 1, v7
              v_sub_u32 v11, v6, v11
              v_bfi_b32 v6, 3, v11, v6
              v_mul_u32_u24 v7, {8*128*192 - 192}, v7
              v_lshl_add_u32 v{aST+k}, v6, 4, v7''')
    sadd(sH2ST, (sG, 14), (sWV, 7), (sPAIR, 0))
    A(f's_mul_i32 s{sH2ST}, s{sH2ST}, 192\ns_add_u32 s{sH2ST}, s{sH2ST}, {H2}')
def v_reads(s):
    for ct in range(4):
        for hf in range(2):
            A(f'ds_read_b64_tr_b16 {vr(VF+(s*4+ct)*4+2*hf,2)}, v{aVF0+(s>>1)} offset:{(s&1)*32*PITCH + hf*16*PITCH + ct*32}')
def p_reads():
    for s in range(4): A(f'ds_read_b128 {vr(PF+4*s,4)}, v{aP} offset:{1024*s}')
def ow_tags():
    for k in range(3): A(f'v_mov_b32 v{OW+4*k+3}, s{sT}')
    A(f'v_mov_b32 v{OW+10}, 0')

A.label('L_stream')
KF0, QF, KF1, SA, vM = 16, 80, 144, 208, 12
common_addr()
A(f'''v_mul_u32_u24 v8, {PITCH}, v{vI}
      v_add_u32 v{aMXr}, {L_MAX}, v8
      s_lshl_b32 s{sA}, s{sV4}, 2
      v_add_u32 v{aMXw}, s{sA}, v{aMXr}
      v_lshl_add_u32 v8, v{vQ}, 4, v8
      s_mul_i32 s{sA}, s{sV4}, {32*PITCH}
      v_add_u32 v{aKF}, s{sA}, v8
      v_add_u32 v{aQF}, {L_R}, v8
      s_lshl_b32 s{sA}, s{sV4}, 10
      v_add_u32 v{aPw}, s{sA}, v{aP}
      v_lshlrev_b32 v{aHS}, 11, v{vI}
      v_and_b32 v8, 7, v{vL}
      v_lshlrev_b32 v8, 2, v8
      v_add_u32 v8, {L_QFLAG}, v8
      v_mov_b32 v9, 0
      ds_write_b32 v8, v9
      v_mov_b32 v9, -1
      v_mov_b32 v8, {L_PROG}''')
for k in range(4): A(f'v_mov_b32 v{ONES+k}, s{sONES}')
sadd(sHSST, (sG, 15), (sPAIR, 4), HS)
if OPT['rev']:
    sadd(sA, (sPAIR, 17), (sV4, 15), (sG, 'mul', 31 * 1024))
    A(f's_cmp_eq_u32 s{sG}, 0\ns_cselect_b32 s{sC}, 1, -1\ns_lshl_b32 s{sC}, s{sC}, 10')
else:
    sadd(sA, (sPAIR, 17), (sV4, 15))
    A(f's_movk_i32 s{sC}, 1024')
A(f'''s_mul_i32 m0, s{sV4}, {32*PITCH}
      s_mov_b32 s{sCNT}, 0''')
def sloop(lab, lim, thr=0):
    A.label(lab)
    A(f'''buffer_load_dwordx4 v{aL16}, {srd(CKV)}, s{sA} offen{NTC} lds
          s_add_u32 s{sA}, s{sA}, s{sC}
          s_add_u32 m0, m0, {PITCH}
          s_add_u32 s{sCNT}, s{sCNT}, 1''')
    if thr: A(f's_waitcnt vmcnt({thr-1})')
    A(f'''s_cmp_lt_u32 s{sCNT}, {lim}
          s_cbranch_scc1 {lab}''')
n0 = OPT['ph0']; n1 = n0 + OPT['ph1']; n2 = n1 + OPT['ph15']
assert n1 <= 16 and n2 < OPT['prog0']
if OPT['ph0']: sloop('L_sl0', str(n0))
make_tag()
A(f'v_mov_b32 v14, s{sT}')
stamp(0)
A('s_barrier')
if OPT['ph1']: sloop('L_sl01', str(n1))
A('s_barrier')
if OPT['ph15']: sloop('L_sl05', str(n2))
stamp(3)
A('s_barrier')
sloop('L_sl1', str(OPT['prog0']), OPT['inf'])
A('ds_write_b32 v8, v9')
stamp(5)
if OPT['prog0'] < 32: sloop('L_sl2', '32', OPT['inf'])
stamp(6)
A('s_waitcnt vmcnt(16)')
for s in range(16): A(f'ds_read_b128 {vr(KF0+4*s,4)}, v{aKF} offset:{64*s}')
stamp(7)
lds_wait(L_QFLAG, 4, 244)
stamp(8)
for s in range(16): A(f'ds_read_b128 {vr(QF+4*s,4)}, v{aQF} offset:{64*s}')
for s in range(16):
    A(f's_waitcnt lgkmcnt({15-s})')
    mfma32(SA, KF0 + 4 * s, QF + 4 * s, '0' if s == 0 else None)
A('s_waitcnt vmcnt(0)')
stamp(9)
for s in range(16): A(f'ds_read_b128 {vr(KF1+4*s,4)}, v{aKF} offset:{16*PITCH + 64*s}')
A(f'v_max3_f32 v{vM}, v{SA}, v{SA+1}, v{SA+2}\nv_max_f32 v{vM}, v{vM}, v{SA+3}')
for s in range(16):
    A(f's_waitcnt lgkmcnt({15-s})')
    mfma32(SA + 4, KF1 + 4 * s, QF + 4 * s, '0' if s == 0 else None)
ow_tags()
A(f'v_max3_f32 v{vM}, v{vM}, v{SA+4}, v{SA+5}\nv_max3_f32 v{vM}, v{vM}, v{SA+6}, v{SA+7}')
swap_red(vM, 13, 'v_max_f32', 16)
swap_red(vM, 13, 'v_max_f32', 32)
stamp(23)
A(f'''ds_write_b32 v{aMXw}, v{vM}
      s_waitcnt lgkmcnt(0)
      s_barrier
      ds_read_b128 v[244:247], v{aMXr}
      s_waitcnt lgkmcnt(0)
      v_max3_f32 v{vM}, v244, v245, v246
      v_max_f32 v{vM}, v{vM}, v247''')
for k in range(8): A(f'v_sub_f32 v{SA+k}, v{SA+k}, v{vM}')
for k in range(8): A(f'v_exp_f32 v{SA+k}, v{SA+k}')
for k in range(4): A(f'v_cvt_pk_bf16_f32 v{244+k}, v{SA+2*k}, v{SA+2*k+1}')
A(f'ds_write_b128 v{aPw}, v[244:247]\ns_waitcnt lgkmcnt(0)\ns_barrier')
stamp(10)
p_reads()
v_reads(0)
A(f's_cmp_lg_u32 s{sWV}, 0\ns_cbranch_scc1 L_nol\ns_waitcnt lgkmcnt(8)')
for s in range(4): mfma32(LA, ONES, PF + 4 * s, '0' if s == 0 else None)
A.label('L_nol')
for s in range(4):
    if s < 3:
        if s == 0: A('s_waitcnt lgkmcnt(4)')
        v_reads(s + 1)
        A('s_waitcnt lgkmcnt(8)')
    else:
        A('s_waitcnt lgkmcnt(0)')
    for ct in range(4): mfma32(PA + 4 * ct, VF + (s * 4 + ct) * 4, PF + 4 * s, '0' if s == 0 else None)
    if s == 0:
        A(f'''s_cbranch_scc1 L_nolse
              v_mov_b32 v13, v{LA}
              s_mov_b64 exec, 0xffff
              buffer_store_dwordx4 v[12:15], v{aHS}, {srd(WS)}, s{sHSST} offen sc1
              s_mov_b64 exec, -1''')
        A.label('L_nolse')
A('s_branch L_pvout')

A.label('L_qgather')
QG, WR = 16, 124
common_addr()
A(f's_lshl1_add_u32 s{sC}, s{sB}, s{sG}')
sadd(sP0, (sC, 15), (sV4, 13), H1)
A(f'''s_add_u32 s{sP1}, s{sP0}, 0x1000
      s_mul_i32 s{sA}, s{sV4}, {4*PITCH}
      s_add_u32 s{sA}, s{sA}, {L_R}
      v_lshlrev_b32 v11, 3, v{vL}
      v_add_u32 v11, s{sA}, v11
      s_lshl_b32 s{sA}, s{sV4}, 2
      s_add_u32 s{sA}, s{sA}, {L_QFLAG}
      v_mov_b32 v12, s{sA}
      v_and_b32 v9, 1, v{vL}
      v_lshlrev_b32 v9, 7, v9
      v_lshrrev_b32 v13, 1, v{vL}
      v_lshl_add_u32 v10, v13, 10, v9
      v_lshl_add_u32 v9, v13, 13, v9''')
ow_tags()
sadd(sP2, (sJ4, 20), (sV4, 18), (sH, 8))
sadd(sP3, (sH, 17), (sV4, 15), (sJ4, 8))
sadd(sA, (sH, 13), (sJ4, 11), (sV4, 9), HCA)
sadd(sC, (sH, 11), (sV4, 9), HS)
A(f'''s_cmp_lg_u32 s{sG}, 0
      s_cbranch_scc1 L_nopre
      v_lshlrev_b32 v8, 7, v{vB4}
      buffer_load_dword v47, v8, {srd(WS)}, s{sA} offen sc1
      buffer_load_dword v46, v8, {srd(WS)}, s{sC} offen sc1''')
A.label('L_nopre')
lds_wait(L_PROG, 1, 48)
stamp(5)
loads = ''.join(f'buffer_load_dwordx4 {vr(QG+4*k,4)}, v{aL16}, {srd(WS)}, s{sP0+(k>>2)} offen offset:{(k&3)*1024} sc1\n' for k in range(8))
poll(loads, [QG + 4 * k + 3 for k in range(8)], 48, onfail=f's_sleep {OPT["qsleep"]}')
for k in range(8): A(f'ds_write_b64 v11, {vr(QG+4*k,2)} offset:{(k>>1)*PITCH + (k&1)*512}')
A('v_mov_b32 v48, -1\ns_waitcnt lgkmcnt(0)\nds_write_b32 v12, v48')
stampcnt(41)
stamp(8)
NTP = ' nt' if OPT['pf_nt'] else ''
A(f'''s_cmp_lg_u32 s{sG}, 0
      s_cbranch_scc1 L_nolate
      buffer_load_dword v124, v9, {srd(WUV)}, s{sP2} offen{NTP}
      s_branch L_late_done''')
A.label('L_nolate')
A(f'buffer_load_dword v124, v10, {srd(WO)}, s{sP3} offen{NTP}')
A.label('L_late_done')
stamp(9)
A('s_waitcnt lgkmcnt(0)\ns_barrier')
for s in range(4): v_reads(s)
A('s_barrier')
stamp(10)
p_reads()
for s in range(4):
    A(f's_waitcnt lgkmcnt({3-s})')
    for ct in range(4): mfma32(PA + 4 * ct, VF + (s * 4 + ct) * 4, PF + 4 * s, '0' if s == 0 else None)

A.label('L_pvout')
stamp(22)
A('s_nop 4')
for dd in range(8):
    A(f'v_cvt_pk_bf16_f32 v{OW + (dd//3)*4 + dd%3}, v{PA+2*dd}, v{PA+2*dd+1}')
    if dd in (2, 5, 7): A(f'ds_write_b128 v{aSW+dd//3}, {vr(OW+4*(dd//3),4)}')
A('s_waitcnt lgkmcnt(0)')
for k in range(3): A(f'ds_read_b128 {vr(RB+4*k,4)}, v{aSR} offset:{1024*k}')
for k in range(3):
    A(f's_waitcnt lgkmcnt({2-k})')
    A(f'buffer_store_dwordx4 {vr(RB+4*k,4)}, v{aST+k}, {srd(WS)}, s{sH2ST} offen sc1')
stamp(11)
A(f's_cmp_lg_u32 s{sG}, 0\ns_cbranch_scc1 L_g1tail')

UVF, OF = 16, 32
LS, WF, CF, CA, OLW = 48, 52, 76, 100, 120
aX = 243
A(f'''v_lshlrev_b32 v7, 1, v{vQ}
      v_xor_b32 v7, v7, v{vI}
      v_lshlrev_b32 v7, 4, v7
      v_lshl_add_u32 v8, v{vQ}, 10, v7
      v_lshl_add_u32 v7, v{vQ}, 13, v7''')
sadd(sA, (sJ4, 20), (sWV, 17), (sH, 8))
sadd(sC, (sH, 17), (sWV, 14), (sJ4, 8))
A(f's_mul_i32 s{sD}, s{sWV}, {4*1152}')
A('s_barrier')
for n in range(4):
    A(f's_add_u32 m0, s{sD}, {L_UV + n*1152}')
    A(f'buffer_load_dwordx4 v7, {srd(WUV)}, s{sA} offen{NTW} lds')
    A(f's_add_u32 m0, s{sD}, {L_WO + n*1152}')
    A(f'buffer_load_dwordx4 v8, {srd(WO)}, s{sC} offen{NTW} lds')
    if n < 3: A(f's_add_u32 s{sA}, s{sA}, 0x8000\ns_add_u32 s{sC}, s{sC}, 0x1000')
stamp(12)
A(f'''v_bfe_u32 v6, v{vL}, 2, 1
      v_lshlrev_b32 v{aX}, 10, v{vB4}
      v_lshl_add_u32 v{aX}, v6, 5, v{aX}
      s_cmp_ge_u32 s{sWV}, 4
      s_cbranch_scc1 L_dumped''')
SEL, RA, HV, RD = 192, 196, 200, 160
H3PRE = f'v_and_b32 v7, 31, v{vL}\nv_lshlrev_b32 v7, 7, v7\nbuffer_load_dword v206, v7, {srd(WS)}, s{sP3} offen sc1\n' if OPT['h3pre'] else ''
A(f's_lshl2_add_u32 s{sFS}, s{sR}, s{sWV}')
sadd(sP3, (sFS, 12), (sX8, 18), H3)
sadd(75, (sR, 6), (sWV, 3))
A(f'''      buffer_load_dwordx2 v[204:205], v{aX}, {srd(X)}, s75 offen
{H3PRE}      v_cmp_eq_u32 s[70:71], 1, v6
      v_and_b32 v9, 1, v{vB4}
      v_lshlrev_b32 v9, 4, v9
      v_mov_b32 v10, 0x3f80
      v_lshlrev_b32 v10, v9, v10
      v_cmp_gt_u32 vcc, 2, v{vB4}
      v_cndmask_b32 v{SEL}, 0, v10, vcc
      v_cndmask_b32 v{SEL+1}, v10, 0, vcc
      v_mov_b32 v{SEL+2}, v{SEL}
      v_mov_b32 v{SEL+3}, v{SEL+1}''')
A.label('L_dumped')
aLS, aCW, aCT, aOL, aWTw, aWTr, aHCs, aHCl, aRDw, aH3 = 229, 230, 231, 232, 233, 234, 235, 236, 237, 238
sadd(sP0, (sH, 11), (sV4, 9), HS)
A(f's_lshl2_add_u32 s{sC}, s{sH}, s{sJ4}\ns_lshl3_add_u32 s{sC}, s{sC}, s{sWV}')
sadd(sP1, (sC, 'mul', 6144), H2)
A(f'''s_add_u32 s{sP2}, s{sP1}, 0x1000
      v_and_b32 v6, 31, v{vL}
      v_lshlrev_b32 v{aLS}, 4, v6
      s_mul_i32 s{sA}, s{sWV}, 6144
      s_add_u32 s{sA}, s{sA}, {L_CS}
      s_mov_b32 s85, s{sA}
      s_mov_b32 s86, 0xcccccccc
      s_mov_b32 s87, 0xcccccccc
      s_pack_ll_b32_b16 s88, s{sT}, s{sT}
      s_pack_hh_b32_b16 s89, s{sT}, s{sT}
      v_mov_b32 v{aCW}, s88
      v_mov_b32 v7, s89
      v_cmp_eq_u32 vcc, 3, v{vB4}
      v_cndmask_b32 v{aCW}, v{aCW}, v7, vcc
      v_mul_u32_u24 v{aCT}, 48, v{vL}
      v_add_u32 v{aCT}, s{sA}, v{aCT}
      v_add_u32 v{aOL}, {L_OL}, v{aL16}
      s_lshl_b32 s{sA}, s{sWV}, 6
      s_add_u32 s{sA}, s{sA}, {L_WT}
      v_lshl_add_u32 v{aWTw}, v6, 1, s{sA}
      v_lshl_add_u32 v{aWTr}, v{vQ}, 3, s{sA}
      v_lshlrev_b32 v{aHCs}, 8, v{vQ}
      v_lshl_add_u32 v{aHCs}, v{vB4}, 4, v{aHCs}
      s_lshr_b32 s{sC}, s{sWV}, 1
      s_and_b32 s{sD}, s{sWV}, 1''')
sadd(76, (sH, 13), (sC, 11), HCA)
sadd(77, (sJ4, 6), (sD, 10), (76, 0))
A(f's_xor_b32 s78, s77, {HCA ^ HCB}')
sadd(sA, (sD, 12), (sC, 10), L_RED)
A(f'''v_add_u32 v{aRDw}, s{sA}, v{aL16}
      v_lshrrev_b32 v6, 1, v{vU}
      v_lshl_add_u32 v6, v6, 2, v{vQ}
      v_lshlrev_b32 v{aH3}, 12, v6
      v_and_b32 v6, 7, v{vL}
      v_lshl_add_u32 v{aH3}, v6, 4, v{aH3}''')
A(f's_and_b32 s{sA}, s{sC}, 1')
sadd(79, (sA, 20), (sJ4, 16), (sD, 15), (sH, 7), H3)
sadd(80, (sD, 12), L_RED)
A(f'''v_mul_u32_u24 v6, 1152, v{vQ}
      v_lshl_add_u32 v6, v{vU}, 8, v6
      v_lshl_add_u32 v6, v{vB4}, 3, v6
      v_xor_b32 v7, s{sWV}, v{vU}
      v_lshl_add_u32 v7, v7, 5, v6''')
sadd(sA, (sC, 'mul', 8 * 1152), (sD, 7), L_WO)
A(f'v_add_u32 v6, s{sA}, v6')
for t in range(4):
    A(f'v_xor_b32 v{10+t}, {t}, v{vU}\nv_lshl_add_u32 v{10+t}, v{10+t}, 5, v6')
A(f'''s_nop 0
      s_lshl_b32 s84, 0x11111111, s{sV4}
      s_lshr_b32 s{sA}, s{sWV}, 2
      s_lshl_b32 s{sA}, s{sA}, 11
      v_add_u32 v9, s{sA}, v{aOL}''')
W4, G4 = 128, 144
A(f'v_add_u32 v{aHCl}, s80, v{aL16}')
for k in (0, 1, 4, 5): A(f'v_mov_b32 v{W4+k}, s{sT}')
for k in range(4): A(f'v_mov_b32 v{G4+k}, s{sT}')
A('s_waitcnt vmcnt(0)\ns_barrier')
for s in range(4):
    for hf in range(2):
        A(f'ds_read_b64_tr_b16 {vr(UVF+4*s+2*hf,2)}, v7 offset:{L_UV + (8*s+4*hf)*1152}')
for t in range(4):
    for hf in range(2):
        A(f'ds_read_b64_tr_b16 {vr(OF+4*t+2*hf,2)}, v{10+t} offset:{4*hf*1152}')
stamp(13)
poll(f'buffer_load_dwordx4 {vr(LS,4)}, v{aLS}, {srd(WS)}, s{sP0} offen sc1', [LS + 3], 136)
stampcnt(42)
stamp(14)
def wmath():
    A(f'v_mov_b32 v12, v{LS}')
    row_red(12, 'v_max_f32')
    swap_red(12, 13, 'v_max_f32', 16)
    A(f'''v_sub_f32 v12, v{LS}, v12
          v_exp_f32 v12, v12
          v_mul_f32 v13, v12, v{LS+1}''')
    row_red(13, 'v_add_f32')
    swap_red(13, 14, 'v_add_f32', 16)
    A(f'''v_rcp_f32 v13, v13
          v_mul_f32 v12, v12, v13
          v_cvt_pk_bf16_f32 v12, v12, v12
          ds_write_b16 v{aWTw}, v12
          s_waitcnt lgkmcnt(0)
          ds_read_b64 {vr(WF,2)}, v{aWTr}
          ds_read_b64 {vr(WF+2,2)}, v{aWTr} offset:32''')
def dma_gather():
    A(f's_mov_b32 m0, s85')
    for k in range(6):
        if k == 4: A(f's_add_u32 m0, s85, 0x1000')
        A(f'buffer_load_dwordx4 v{aL16}, {srd(WS)}, s{sP1+(k>>2)} offen offset:{1024*(k&3)} sc1 lds')
A(f's_mov_b32 s{sCNT}, 0')
dma_gather()
wmath()
A.label('L_h2poll')
A('s_waitcnt vmcnt(0)')
stamp(15)
for t in (1, 3, 5, 0, 2, 4):
    for hf in range(2): A(f'ds_read_b64_tr_b16 {vr(CF+4*t+2*hf,2)}, v{aCT} offset:{8*t + 3072*hf}')
A('s_waitcnt lgkmcnt(6)')
mfma32(CA + 4, CF + 4, WF, '0')
mfma32(CA + 12, CF + 12, WF, '0')
for k, t in enumerate((1, 3, 5)):
    A(f'v_bitop3_b32 v{136+2*k}, v{CF+4*t}, v{CF+4*t+1}, v{aCW} bitop3:0x7e\nv_bitop3_b32 v{137+2*k}, v{CF+4*t+2}, v{CF+4*t+3}, v{aCW} bitop3:0x7e')
for k, t in enumerate((0, 2, 4)):
    A(f's_waitcnt lgkmcnt({4-2*k})')
    mfma32(CA + 4 * t, CF + 4 * t, WF, '0')
A(f'''v_or3_b32 v136, v136, v137, v138
      v_or3_b32 v139, v139, v140, v141
      v_or_b32 v136, v136, v139
      v_cmp_ne_u32 vcc, 0, v136
      s_and_b64 vcc, vcc, s[86:87]
      s_cbranch_scc0 L_h2ok
      s_add_u32 s{sCNT}, s{sCNT}, 1''')
dma_gather()
A(f'''s_cmp_lt_u32 s{sCNT}, {OPT['limit']}
      s_cbranch_scc1 L_h2poll''')
A.label('L_h2ok')
stampcnt(43)
A('s_nop 2')
A('s_mov_b32 exec_lo, s84\ns_mov_b32 exec_hi, s84')
src = [CA, CA + 2, CA + 4, CA + 8, CA + 10, CA + 12, CA + 16, CA + 18]
for dd in range(8):
    A(f'v_cvt_pk_bf16_f32 v{OLW+dd}, v{src[dd]}, v{src[dd]+1}')
    if dd in (3, 7): A(f'ds_write_b128 v9, {vr(OLW+dd-3,4)} offset:{1024*(dd//4)}')
full_exec()
A('s_waitcnt lgkmcnt(0)\ns_barrier')
stamp(16)
for s in range(4): A(f'ds_read_b128 {vr(56+4*s,4)}, v{aOL} offset:{1024*s}')
for s in range(4):
    A(f's_waitcnt lgkmcnt({3-s})')
    mfma32(72, UVF + 4 * s, 56 + 4 * s, '0' if s == 0 else None)
A(f'''s_cmp_lg_u32 s{sD}, 0
      s_cbranch_scc1 L_s4odd
      s_nop 5
      v_cvt_pk_bf16_f32 v{G4+2}, v72, v73
      v_cvt_pk_bf16_f32 v{G4+3}, v74, v75
      s_branch L_s4done''')
A.label('L_s4odd')
A(f'''s_nop 5
      v_cvt_pk_bf16_f32 v{G4}, v72, v73
      v_cvt_pk_bf16_f32 v{G4+1}, v74, v75''')
A.label('L_s4done')
set_exec(0x000f000f)
A(f'buffer_store_dwordx4 {vr(G4,4)}, v{aHCs}, {srd(WS)}, s77 offen')
full_exec()
stamp(17)
def fallback_store():
    set_exec(0x000f000f)
    A(f'buffer_store_dwordx4 {vr(G4,4)}, v{aHCs}, {srd(WS)}, s78 offen sc1')
    full_exec()
poll(f'''buffer_load_dwordx4 v[56:59], v{aL16}, {srd(WS)}, s76 offen sc1
         buffer_load_dwordx4 v[60:63], v{aL16}, {srd(WS)}, s76 offen offset:1024 sc1''', [56, 63], 136,
     onfail=toggle([76], HCA ^ HCB), late=fallback_store)
stampcnt(44)
stamp(18)
A5 = 80
for t in range(4): mfma32(A5 + 4 * t, OF + 4 * t, 58, '0')
YA, YB, YO = 64, 68, 72
for r in range(4): A(f'v_add_f32_dpp v{YA+r}, v{A5+r}, v{A5+r} row_ror:8 row_mask:0xf bank_mask:0x3')
for r in range(4): A(f'v_add_f32_dpp v{YB+r}, v{A5+4+r}, v{A5+4+r} row_ror:8 row_mask:0xf bank_mask:0x3')
for r in range(4): A(f'v_add_f32_dpp v{YA+r}, v{A5+8+r}, v{A5+8+r} row_ror:8 row_mask:0xf bank_mask:0xc')
for r in range(4): A(f'v_add_f32_dpp v{YB+r}, v{A5+12+r}, v{A5+12+r} row_ror:8 row_mask:0xf bank_mask:0xc')
for r in range(4): A(f'v_add_f32_dpp v{YO+r}, v{YA+r}, v{YA+r} row_shl:4 row_mask:0xf bank_mask:0x5')
for r in range(4): A(f'v_add_f32_dpp v{YO+r}, v{YB+r}, v{YB+r} row_shr:4 row_mask:0xf bank_mask:0xa')
A(f'''ds_write_b128 v{aRDw}, {vr(YO,4)}
      s_waitcnt lgkmcnt(0)
      s_barrier
      s_cmp_lt_u32 s{sWV}, 4
      s_cbranch_scc1 L_red
      ''')
for k in range(4): A(f'ds_read_b128 {vr(80+4*k,4)}, v{aHCl} offset:{1024*k}')
A(f'''s_add_u32 s76, s79, 0x40000
      s_add_u32 s77, s79, 0x80000
      s_add_u32 s78, s79, 0xc0000
      s_bitcmp1_b32 s{sH}, 3
      s_waitcnt lgkmcnt(0)
      v_pk_add_f32 v[80:81], v[80:81], v[84:85]
      v_pk_add_f32 v[82:83], v[82:83], v[86:87]
      v_pk_add_f32 v[88:89], v[88:89], v[92:93]
      v_pk_add_f32 v[90:91], v[90:91], v[94:95]
      v_pk_add_f32 v[80:81], v[80:81], v[88:89]
      v_pk_add_f32 v[82:83], v[82:83], v[90:91]
      v_cvt_pk_bf16_f32 v{W4+2}, v80, v81
      v_cvt_pk_bf16_f32 v{W4+3}, v82, v83
      s_cbranch_scc1 L_s5odd''')
for r in (79, 76, 77, 78): A(f'buffer_store_dwordx4 {vr(W4,4)}, v{aH3}, {srd(WS)}, s{r} offen sc1')
A('s_branch L_end')
A.label('L_s5odd')
for r in (79, 76, 77, 78): A(f'buffer_store_dwordx4 {vr(W4+2,4)}, v{aH3}, {srd(WS)}, s{r} offen sc1')
A.label('L_end')
endwave()

A.label('L_red')
def unpack_hv():
    A(f'''v_lshlrev_b32 v{HV}, 16, v204
          v_and_b32 v{HV+1}, 0xffff0000, v204
          v_lshlrev_b32 v{HV+2}, 16, v205
          v_and_b32 v{HV+3}, 0xffff0000, v205''')
def reduce_gather(nl, sbase):
    L, D = A.newlab('Lrp'), A.newlab('Lrok')
    MK = 8
    A(f's_mov_b32 s{sCNT}, 0\ns_add_u32 s{sA}, s{sbase}, 0x1000')
    for k in range(nl): A(f's_mov_b64 s[{MK+2*k}:{MK+2*k+1}], -1')
    A.label(L)
    for k in range(nl):
        sk = A.newlab('Lsk')
        A(f'''s_mov_b64 exec, s[{MK+2*k}:{MK+2*k+1}]
              s_cbranch_execz {sk}
              buffer_load_dwordx4 {vr(RD+4*k,4)}, v{aL16}, {srd(WS)}, s{sbase if k<4 else sA} offen offset:{(k&3)*1024} sc1''')
        A.label(sk)
    A('s_mov_b64 exec, -1\ns_waitcnt vmcnt(0)')
    for p in range((nl + 1) // 2):
        mfma32(RA, SEL, RD + 8 * p + 2, '0' if p == 0 else None)
    for k in range(nl):
        A(f'v_cmp_ne_u32 s[{MK+2*k}:{MK+2*k+1}], v{RD+4*k+(3 if k&1 else 0)}, v{vT}')
    A(f's_or_b64 s[6:7], s[{MK}:{MK+1}], s[{MK+2}:{MK+3}]')
    for k in range(2, nl): A(f's_or_b64 s[6:7], s[6:7], s[{MK+2*k}:{MK+2*k+1}]')
    A(f'''s_cbranch_scc0 {D}
          s_add_u32 s{sCNT}, s{sCNT}, 1
          s_cmp_lt_u32 s{sCNT}, {OPT['limit']}
          s_cbranch_scc1 {L}''')
    A.label(D)
    for r in range(4): A(f'v_add_f32_dpp v{RA+r}, v{RA+r}, v{RA+r} row_ror:8 row_mask:0xf bank_mask:0xf')
    for r in range(4): A(f'v_add_f32 v{HV+r}, v{HV+r}, v{RA+r}')
    A(f'v_cvt_pk_bf16_f32 v204, v{HV}, v{HV+1}\nv_cvt_pk_bf16_f32 v205, v{HV+2}, v{HV+3}')
unpack_hv()
sadd(sP0, (sX8, 13), (sFS, 7), H4A)
A(f's_xor_b32 s{sP1}, s{sP0}, {H4A ^ H4B}')
stamp(19)
reduce_gather(4, sP3)
A(f'''v_cndmask_b32 v208, v{vT}, v204, s[70:71]
      v_cndmask_b32 v209, v{vT}, v205, s[70:71]
      v_cndmask_b32 v210, v204, v{vT}, s[70:71]
      v_cndmask_b32 v211, v205, v{vT}, s[70:71]
      s_mov_b64 exec, 0xff
      buffer_store_dwordx4 v[208:211], v{aL16}, {srd(WS)}, s{sP0} offen
      buffer_store_dwordx4 v[208:211], v{aL16}, {srd(WS)}, s{sP1} offen sc1
      s_mov_b64 exec, -1''')
stampcnt(45)
stamp(20)
A(f'''s_and_b32 s{sA}, s{sFS}, 7
      s_cmp_lg_u32 s{sA}, s{sX8}
      s_cbranch_scc1 L_end''')
unpack_hv()
A(f'v_mov_b32 v{RD+28}, 0\nv_mov_b32 v{RD+29}, 0')
sadd(sP3, (sFS, 13), H5)
reduce_gather(7, sP3)
stampcnt(46)
stamp(30)
A(f'''s_mov_b64 exec, 0xff
      buffer_store_dwordx2 v[204:205], v{aX}, {srd(OUT)}, s75 offen
      s_cmp_lg_u32 s{sFS}, 0
      s_cbranch_scc1 L_end
      s_mov_b64 exec, 1
      buffer_store_dword v{vT}, v{aL16}, {srd(WS)}, 0 offen sc1
      s_branch L_end''')

A.label('L_g1tail')
A(f'''v_lshrrev_b32 v9, 2, v{vI}
      v_mul_u32_u24 v9, 3584, v9
      v_lshl_add_u32 v9, v{vB4}, 7, v9
      v_lshlrev_b32 v10, 7, v{vL}''')
sadd(sA, (sR, 'mul', 32 * 3584), (sWV, 'mul', 4 * 3584), (sX8, 'mul', 448))
sadd(sC, (sX8, 'mul', 7 * 32768), (sR, 'mul', 14336), (sWV, 'mul', 1792))
A(f'''s_barrier
      s_mov_b64 exec, 0xffff
      buffer_load_dword v124, v9, {srd(WG)}, s{sA} offen{NTP}
      buffer_load_dword v125, v9, {srd(WU)}, s{sA} offen{NTP}
      s_mov_b64 exec, 0x3fff
      buffer_load_dword v126, v10, {srd(WD)}, s{sC} offen{NTP}
      s_mov_b64 exec, -1''')
A(f'''s_cmp_ge_u32 s{sR}, 7
      s_cbranch_scc1 L_end
      s_mul_i32 s{sFS}, s{sX8}, 7
      s_add_u32 s{sFS}, s{sFS}, s{sR}
      v_lshrrev_b32 v6, 2, v{vL}
      v_mul_u32_u24 v6, 3584, v6
      v_and_b32 v7, 1, v{vQ}
      v_lshlrev_b32 v7, 1, v7
      v_xor_b32 v7, v7, v{vB4}
      v_lshl_add_u32 v6, v7, 4, v6''')
sadd(sA, (sWV, 'mul', 64 * 3584), (sFS, 6))
sadd(sC, (sFS, 15), (sWV, 12))
A(f's_lshl_b32 s{sD}, s{sWV}, 12\ns_mul_i32 s{sP0}, s{sWV}, {4*PITCH}\ns_waitcnt vmcnt(0)\ns_barrier')
stamp(24)
for n in range(4):
    A(f's_add_u32 m0, s{sD}, {L_G + 1024*n}')
    A(f'buffer_load_dwordx4 v6, {srd(WG)}, s{sA} offen{NTW} lds')
    A(f's_add_u32 m0, s{sD}, {L_U + 1024*n}')
    A(f'buffer_load_dwordx4 v6, {srd(WU)}, s{sA} offen{NTW} lds')
    if n < 3: A(f's_add_u32 s{sA}, s{sA}, {16*3584}')
for n in range(4):
    A(f's_add_u32 m0, s{sP0}, {L_D + PITCH*n}')
    A(f'buffer_load_dwordx4 v{aL16}, {srd(WD)}, s{sC} offen{NTW} lds')
    if n < 3: A(f's_add_u32 s{sC}, s{sC}, 1024')
stamp(12)
A(f'''s_waitcnt vmcnt(0)
      s_barrier
      s_cmp_ge_u32 s{sWV}, 4
      s_cbranch_scc1 L_end''')
stamp(13)
FF, DF, FA, G2, G1, FO, CS, HQ, A7 = 112, 176, 208, 224, 244, 248, 96, 16, 48
A(f'''v_lshl_add_u32 v6, v{vQ}, 2, v{vU}
      v_lshlrev_b32 v6, 6, v6
      v_lshl_add_u32 v6, v{vB4}, 3, v6
      s_lshl_b32 s{sA}, s{sV4}, 13
      v_add_u32 v6, s{sA}, v6
      v_and_b32 v7, 1, v{vQ}
      v_lshl_add_u32 v6, v7, 5, v6
      v_xor_b32 v7, 32, v6
      v_lshl_add_u32 v8, v{vQ}, 2, v{vU}
      v_mul_u32_u24 v8, {PITCH}, v8
      v_lshl_add_u32 v8, v{vB4}, 3, v8
      s_lshl_b32 s{sA}, s{sV4}, 8
      s_add_u32 s{sA}, s{sA}, {L_D}
      v_add_u32 v8, s{sA}, v8''')
for k in range(4): A(f'v_mov_b32 v{FO+k}, s{sONES}')
for s in range(4):
    for u in range(4):
        for hf in range(2):
            A(f'ds_read_b64_tr_b16 {vr(FF+(u*4+s)*4+2*hf,2)}, v{6+(u&1)} offset:{(L_U if u>=2 else L_G) + s*2048 + hf*1024}')
    A('s_waitcnt lgkmcnt(0)')
    for u in range(4): mfma32(FA + 4 * u, FF + (u * 4 + s) * 4, FO, '0' if s == 0 else None)
for t in range(8):
    for hf in range(2):
        A(f'ds_read_b64_tr_b16 {vr(DF+4*t+2*hf,2)}, v8 offset:{hf*16*PITCH + 32*t}')
def compact(dst):
    for u in range(4):
        if u: set_exec(0x000f000f << (4 * u))
        for r in range(4): A(f'v_mov_b32 v{dst+r}, v{FA+4*u+r}')
    full_exec()
compact(100)
A(f'''v_add_u32 v8, {L_FX}, v{aL16}
      s_lshl_b32 s{sA}, s{sV4}, 10
      v_add_u32 v9, s{sA}, v8
      ds_write_b128 v9, v[100:103]
      s_waitcnt lgkmcnt(0)
      s_barrier''')
for k in range(4): A(f'ds_read_b128 {vr(80+4*k,4)}, v8 offset:{1024*k}')
A(f'''v_lshlrev_b32 v6, 7, v{vQ}
      v_lshl_add_u32 v6, v{vB4}, 4, v6
      v_lshrrev_b32 v7, 1, v{vU}
      v_lshl_add_u32 v7, v7, 2, v{vQ}
      v_lshlrev_b32 v7, 13, v7
      v_and_b32 v10, 7, v{vL}
      v_lshl_add_u32 v7, v10, 4, v7
      v_lshlrev_b32 v10, 3, v{vL}
      v_add_u32 v10, {L_FX + 8192}, v10
      s_lshl_b32 s{sA}, s{sV4}, 9
      v_add_u32 v11, s{sA}, v10
      v_cmp_gt_u32 vcc, 2, v{vU}
      v_mov_b32 v12, 0xff800000
      v_cndmask_b32 v12, v12, 0, vcc''')
sadd(sP0, (sX8, 13), (sV4, 11), H4A)
sadd(sP1, (sV4, 17), (sFS, 7), H5)
A(f's_add_u32 s{sP2}, s{sP1}, 0x10000\ns_waitcnt lgkmcnt(0)')
for r in range(4):
    A(f'''v_add_f32 v{CS+r}, v{80+r}, v{84+r}
          v_add_f32 v{88+r}, v{88+r}, v{92+r}
          v_add_f32 v{CS+r}, v{CS+r}, v{88+r}''')
W70, W71 = 232, 238
for k in (0, 1, 4, 5): A(f'v_mov_b32 v{W70+k}, s{sT}\nv_mov_b32 v{W71+k}, s{sT}')
stamp(19)
loads, tg = '', []
for s in range(4):
    for e in range(2):
        loads += f'buffer_load_dwordx4 {vr(HQ+8*s+4*e,4)}, v6, {srd(WS)}, s{sP0} offen offset:{512*s+64*e} sc1\n'
    tg += [HQ + 8 * s, HQ + 8 * s + 7]
lab = A.newlab('Lnt')
poll(loads, tg, 104, onfail=f'''s_and_b32 s{sA}, s{sCNT}, 7
        s_cmp_lt_u32 s{sA}, 2
        s_cselect_b32 s{sA}, {H4A ^ H4B}, 0
        s_cmp_lt_u32 s{sCNT}, 8
        s_cselect_b32 s{sA}, 0, s{sA}
        s_xor_b32 s{sP0}, s{sP0}, s{sA}''')
stampcnt(45)
stamp(20)
for s in range(4):
    c = '0' if s == 0 else None
    for u in range(4): mfma32(FA + 4 * u, FF + (u * 4 + s) * 4, HQ + 8 * s + 2, c)
    mfma32(G2, HQ + 8 * s + 2, HQ + 8 * s + 2, c)
    mfma32(G1, FO, HQ + 8 * s + 2, c)
compact(100)
A('ds_write_b128 v9, v[100:103] offset:4096')
for b in range(4):
    if b: set_exec(0x11111111 << b)
    A(f'v_mov_b32 v{G1+1}, v{G2+b}')
full_exec()
A(f'''ds_write_b64 v11, {vr(G1,2)}
      s_waitcnt lgkmcnt(0)
      s_barrier''')
for k in range(4): A(f'ds_read_b64 {vr(16+2*k,2)}, v10 offset:{512*k}')
for k in range(4): A(f'ds_read_b128 {vr(80+4*k,4)}, v8 offset:{4096+1024*k}')
A(f'''s_waitcnt lgkmcnt(4)
      v_pk_add_f32 v[16:17], v[16:17], v[18:19]
      v_pk_add_f32 v[20:21], v[20:21], v[22:23]
      v_pk_add_f32 v[16:17], v[16:17], v[20:21]
      v_mul_f32 v16, {f32(-1.0/512)}, v16
      v_mov_b32 v18, {f32(1e-5)}
      v_fmac_f32 v18, {f32(1.0/512)}, v17
      v_fma_f32 v18, -v16, v16, v18
      v_rsq_f32 v18, v18
      s_waitcnt lgkmcnt(0)''')
for r in range(0, 4, 2):
    A(f'''v_pk_add_f32 {vr(80+r,2)}, {vr(80+r,2)}, {vr(84+r,2)}
          v_pk_add_f32 {vr(88+r,2)}, {vr(88+r,2)}, {vr(92+r,2)}
          v_pk_add_f32 {vr(80+r,2)}, {vr(80+r,2)}, {vr(88+r,2)}''')
for r in range(4): A(f'v_fmac_f32 v{80+r}, v16, v{CS+r}')
for r in range(4): A(f'v_mul_f32 v{80+r}, v18, v{80+r}')
for r in range(4): A(f'v_max_f32 v{80+r}, v12, v{80+r}')
for r in range(4): A(f'v_mul_f32_dpp v{84+r}, v{80+r}, v{80+r} row_ror:8 row_mask:0xf bank_mask:0xf')
A('''v_cvt_pk_bf16_f32 v88, v84, v85
     v_cvt_pk_bf16_f32 v89, v86, v87
     v_cvt_pk_bf16_f32 v92, v84, v85
     v_cvt_pk_bf16_f32 v93, v86, v87
     v_cvt_pk_bf16_f32 v94, v84, v85
     v_cvt_pk_bf16_f32 v95, v86, v87
     v_mov_b32_dpp v92, v88 row_ror:4 row_mask:0xf bank_mask:0xa
     v_mov_b32_dpp v93, v89 row_ror:4 row_mask:0xf bank_mask:0xa
     v_mov_b32_dpp v94, v88 row_ror:4 row_mask:0xf bank_mask:0x5
     v_mov_b32_dpp v95, v89 row_ror:4 row_mask:0xf bank_mask:0x5''')
order = [0, 4, 1, 5, 2, 6, 3, 7]
for t in order: mfma32(A7 + 4 * t, DF + 4 * t, 92, '0')
A(f's_bitcmp1_b32 s{sFS}, 3')
for u in range(4):
    if u: set_exec(0x000f000f << (4 * u))
    A(f'''v_cvt_pk_bf16_f32 v{W70+2}, v{A7+4*u}, v{A7+4*u+1}
          v_cvt_pk_bf16_f32 v{W70+3}, v{A7+4*u+2}, v{A7+4*u+3}
          v_cvt_pk_bf16_f32 v{W71+2}, v{A7+16+4*u}, v{A7+16+4*u+1}
          v_cvt_pk_bf16_f32 v{W71+3}, v{A7+16+4*u+2}, v{A7+16+4*u+3}''')
full_exec()
A(f'''s_cbranch_scc1 L_s7odd
      buffer_store_dwordx4 {vr(W70,4)}, v7, {srd(WS)}, s{sP1} offen sc1
      buffer_store_dwordx4 {vr(W71,4)}, v7, {srd(WS)}, s{sP2} offen sc1
      s_branch L_end''')
A.label('L_s7odd')
A(f'''buffer_store_dwordx4 {vr(W70+2,4)}, v7, {srd(WS)}, s{sP1} offen sc1
      buffer_store_dwordx4 {vr(W71+2,4)}, v7, {srd(WS)}, s{sP2} offen sc1
      s_branch L_end''')
A.label('L_exit')
A('s_endpgm')

ref = open('cdna_kernels/%s.s.ref' % NAME).read().split('\n')
head = []
for ln in ref:
    if ln.startswith('; @launch'):
        head.append('; @launch grid=(256,1,1) block=(512,1,1) lds=%d' % LDS_BYTES); break
    head.append(ln)
out = '\n'.join(head) + f"""
.amdgcn_target "amdgcn-amd-amdhsa--gfx950"
.text
.globl {NAME}_kernel
.p2align 8
.type {NAME}_kernel,@function
{NAME}_kernel:
""" + A.text() + f""".section .rodata,"a"
.p2align 6
.amdhsa_kernel {NAME}_kernel
  .amdhsa_next_free_vgpr 256
  .amdhsa_next_free_sgpr 102
  .amdhsa_accum_offset 256
  .amdhsa_group_segment_fixed_size 0
  .amdhsa_kernarg_size 104
  .amdhsa_user_sgpr_count 2
  .amdhsa_user_sgpr_kernarg_segment_ptr 1
  .amdhsa_system_sgpr_workgroup_id_x 1
.end_amdhsa_kernel
"""
open(sys.argv[1], 'w').write(out)
```

```python
import sys, math, struct
from asmlib import Asm, vr, sr

NAME = 'sequential_preLN__compressed_kv_cla__glu_gated_reglu__decode'
OPT = dict(late=1, statlate=3, helper=0, trig=0, pd=3, pd3=3, ffnpf=0, qrot=1, cpf=1, ffnwait=0, fix=0, fixat=63, rev=0, wukd=0, inf1=5, inf2=0, pf_nt=0, h3pre=1, kl=5, debug=0, prog0=26, ckv_nt=0, w_nt=0, limit=20000, ka=8, qsleep=4)
for a in sys.argv[2:]:
    k, v = a.split('='); OPT[k] = int(v)
DEBUG = OPT['debug']

H0A, H0B, H1, HS = 0x40000, 0x80000, 0xC0000, 0x100000
H4A, HX = 0x120000, 0x130000
HCA = 0x140000
H3, H5, H2, DBG = 0x110000, 0x200000, 0x400000, 0xA00000
WS_BYTES = 0x1000000
PITCH = 1056
L_P = 128 * PITCH
L_R = L_P + 4096
LDS_BYTES = 163840
L_WQ, L_WUK = 24 * PITCH, 24 * PITCH + 4096
L_XC = L_P
L_XQ = L_R + 17408
def pad(row): return row * PITCH + 1024
L_MAX, L_QFLAG, L_PROG, L_FA, L_FB = pad(72), pad(96), pad(96) + 16, pad(97), pad(97) + 16
WP = 288
L_UV, L_WO, L_CS, L_OL, L_RED, L_WT = 0, 40960, 73728, 122880, 126976, 135168
L_G, L_U, L_D, L_FX = 0, 32768, 65536, 102400
sWV, sT, sE = 3, 4, 5
X, CKV, WQ, WUK, WUV, WO, WG, WU, WD, OUT, WS = 8, 12, 16, 20, 24, 28, 32, 36, 40, 44, 48
sH, sJ4, sB, sX8, sG, sPAIR, sV4, sR = 52, 53, 54, 55, 56, 57, 58, 59
sCNT, sA, sBt, sC, sD = 60, 61, 62, 63, 64
sP0, sP1, sP2, sP3 = 65, 66, 67, 68
sH2ST, sHSST, sFS = 72, 73, 74
sONES = 82
sLOC, sXCC = 88, 89
sST = 90
def srd(b): return sr(b, 4)
vL, vQ, vI, vB4, vU, vT = 1, 2, 3, 4, 5, 15
aL16, aVF0, aVF1, aP, aSR, aST, aSW = 228, 229, 230, 231, 233, 234, 252
aKF, aQF, aMXr, aMXw, aPw, aHS = 237, 238, 239, 240, 241, 242
vSTAMP = 255
NTC = ' nt' if OPT['ckv_nt'] else ''
NTW = ' nt' if OPT['w_nt'] else ''
def f32(x): return '0x%08x' % struct.unpack('<I', struct.pack('<f', x))[0]
A = Asm()

def stamp(i):
    if OPT['fix'] and i == OPT['fixat']:
        lab = A.newlab('Lfix')
        A.label(lab)
        A(f'''s_memrealtime s[{sST}:{sST+1}]
              s_waitcnt lgkmcnt(0)
              s_sub_u32 s{sST}, s{sST}, s{sST+2}
              s_cmp_lt_u32 s{sST}, {OPT['fix']}
              s_cbranch_scc1 {lab}''')
    if DEBUG:
        A(f'''s_memrealtime s[{sST}:{sST+1}]
              s_waitcnt lgkmcnt(0)
              v_writelane_b32 v{vSTAMP}, s{sST}, {i}''')
def stampcnt(i):
    if DEBUG: A(f's_add_u32 s{sST}, s{sCNT}, 1\nv_writelane_b32 v{vSTAMP}, s{sST}, {i}')

def endwave():
    if not DEBUG: stamp(63)
    if DEBUG:
        stamp(63)
        A(f's_memtime s[{sST}:{sST+1}]\ns_waitcnt lgkmcnt(0)\ns_sub_u32 s{sST}, s{sST}, s{sST+4}\nv_writelane_b32 v{vSTAMP}, s{sST}, 47')
        A(f'''s_mov_b64 exec, -1
              s_lshl_b32 s{sA}, s2, 3
              s_add_u32 s{sA}, s{sA}, s{sWV}
              s_lshl_b32 s{sA}, s{sA}, 8
              s_add_u32 s{sA}, s{sA}, {DBG}
              v_lshlrev_b32 v6, 2, v{vL}
              buffer_store_dword v{vSTAMP}, v6, {srd(WS)}, s{sA} offen''')
    if DEBUG == 2:
        ids = [0, 3, 5, 6, 8, 9, 10, 11, 13, 14, 15, 16, 18, 19, 20, 63]
        A(f'''s_lshl_b32 s{sA}, s2, 3
              s_add_u32 s{sA}, s{sA}, s{sWV}
              s_cmp_lg_u32 s{sA}, 0
              s_cbranch_scc1 L_nodbg
              s_load_dwordx2 s[96:97], s[0:1], 88
              s_mov_b32 s98, 256
              s_mov_b32 s99, 0x00020000
              v_mov_b32 v7, 0''')
        for k, i in enumerate(ids):
            A(f'v_readlane_b32 s{sA}, v{vSTAMP}, {i}\ns_sub_u32 s{sA}, s{sA}, s{sST+2}\nv_writelane_b32 v7, s{sA}, {k}')
        A(f'''s_waitcnt lgkmcnt(0)
              buffer_store_dword v7, v6, s[96:99], 0 offen''')
        A.label('L_nodbg')
    A('s_endpgm')

def set_exec(mask32): A(f's_mov_b32 exec_lo, 0x{mask32:08x}\ns_mov_b32 exec_hi, 0x{mask32:08x}')
def full_exec(): A('s_mov_b64 exec, -1')

def check_tags(tags, tmp):
    acc, t1, t2 = tmp, tmp + 1, tmp + 2
    tags = list(tags)
    if len(tags) == 1:
        A(f'v_cmp_ne_u32 vcc, v{tags[0]}, v{vT}'); return
    if len(tags) % 2: tags.append(tags[-1])
    prs = [(tags[i], tags[i + 1]) for i in range(0, len(tags), 2)]
    A(f'v_bitop3_b32 v{acc}, v{prs[0][0]}, v{prs[0][1]}, v{vT} bitop3:0x7e')
    rest = prs[1:]
    while rest:
        if len(rest) >= 2:
            A(f'v_bitop3_b32 v{t1}, v{rest[0][0]}, v{rest[0][1]}, v{vT} bitop3:0x7e')
            A(f'v_bitop3_b32 v{t2}, v{rest[1][0]}, v{rest[1][1]}, v{vT} bitop3:0x7e')
            A(f'v_or3_b32 v{acc}, v{acc}, v{t1}, v{t2}')
            rest = rest[2:]
        else:
            A(f'v_bitop3_b32 v{t1}, v{rest[0][0]}, v{rest[0][1]}, v{vT} bitop3:0x7e')
            A(f'v_or_b32 v{acc}, v{acc}, v{t1}')
            rest = rest[1:]
    A(f'v_cmp_ne_u32 vcc, 0, v{acc}')

def poll(loads, tags, tmp, onfail='', between=None, late=None, pre_late='', late_ok=None):
    L, D = A.newlab('Lpoll'), A.newlab('Lpok')
    A(f's_mov_b32 s{sCNT}, 0')
    A(loads)
    if between: between()
    A.label(L)
    A('s_waitcnt vmcnt(0)')
    check_tags(tags, tmp)
    A(f'''s_cmp_eq_u64 vcc, 0
          s_cbranch_scc1 {D}
          s_add_u32 s{sCNT}, s{sCNT}, 1''')
    if late:
        l2 = A.newlab('Lnl')
        A(f's_cmp_lg_u32 s{sCNT}, {OPT["kl"]}\ns_cbranch_scc1 {l2}')
        late()
        A.label(l2)
    A(onfail)
    A(loads)
    A(f'''s_cmp_lt_u32 s{sCNT}, {OPT['limit']}
          s_cbranch_scc1 {L}
          s_waitcnt vmcnt(0)''')
    A.label(D)
    A(pre_late)
    if late_ok: late_ok()
    elif late: late()

def mpoll(groups, init, MK, tmp, between=None):
    L, D = A.newlab('Lmp'), A.newlab('Lmok')
    A(f's_mov_b32 s{sCNT}, 0\ns_mov_b32 exec_lo, {init[0]}\ns_mov_b32 exec_hi, {init[1]}')
    for ld, tg in groups: A(ld)
    if between:
        full_exec(); between(); A(f's_mov_b32 exec_lo, {init[0]}\ns_mov_b32 exec_hi, {init[1]}')
    A.label(L)
    A('s_waitcnt vmcnt(0)')
    for k, (ld, tg) in enumerate(groups):
        if len(tg) == 2: A(f'v_bitop3_b32 v{tmp+k}, v{tg[0]}, v{tg[1]}, v{vT} bitop3:0x7e')
    for k, (ld, tg) in enumerate(groups):
        if len(tg) == 2: A(f'v_cmp_ne_u32 s[{MK+2*k}:{MK+2*k+1}], 0, v{tmp+k}')
        else: A(f'v_cmp_ne_u32 s[{MK+2*k}:{MK+2*k+1}], v{tg[0]}, v{vT}')
    n = len(groups)
    A(f's_or_b64 s[6:7], s[{MK}:{MK+1}], s[{MK+2*(n>1)}:{MK+2*(n>1)+1}]')
    for k in range(2, n): A(f's_or_b64 s[6:7], s[6:7], s[{MK+2*k}:{MK+2*k+1}]')
    A(f's_cbranch_scc0 {D}')
    for k, (ld, tg) in enumerate(groups):
        sk = A.newlab('Lsk')
        A(f's_mov_b64 exec, s[{MK+2*k}:{MK+2*k+1}]\ns_cbranch_execz {sk}')
        A(ld)
        A.label(sk)
    A(f'''s_mov_b32 exec_lo, {init[0]}
          s_mov_b32 exec_hi, {init[1]}
          s_add_u32 s{sCNT}, s{sCNT}, 1
          s_cmp_lt_u32 s{sCNT}, {OPT['limit']}
          s_cbranch_scc1 {L}
          s_waitcnt vmcnt(0)''')
    A.label(D)
    full_exec()

def ppoll(load, sets, tagoff, dst, ncopy, exec_hi='-1'):
    L, D = A.newlab('Lpp'), A.newlab('Lppok')
    nd = len(sets)
    A(f's_mov_b32 s{sCNT}, 0\ns_mov_b32 exec_hi, {exec_hi}')
    for k, r in enumerate(sets):
        A(load.format(r=vr(r, 4)))
        if k < nd - 1: A('s_sleep 2')
    A.label(L)
    oks = [A.newlab('Lppk') for _ in sets]
    for k, r in enumerate(sets):
        A(f'''s_waitcnt vmcnt({nd-1})
              v_cmp_ne_u32 vcc, v{r+tagoff}, v{vT}
              s_cmp_eq_u64 vcc, 0
              s_cbranch_scc1 {oks[k] if r != dst else D}''')
        A(load.format(r=vr(r, 4)))
    A(f'''s_add_u32 s{sCNT}, s{sCNT}, 1
          s_cmp_lt_u32 s{sCNT}, {OPT['limit']}
          s_cbranch_scc1 {L}
          s_waitcnt vmcnt(0)
          s_branch {D}''')
    for k, r in enumerate(sets):
        if r == dst: continue
        A.label(oks[k])
        for c in ncopy: A(f'v_mov_b32 v{dst+c}, v{r+c}')
        if k < nd - 1: A(f's_branch {D}')
    A.label(D)
    A('s_mov_b32 exec_hi, -1')

def loc_issue(reg):
    sadd(sA, (sX8, 8), HX)
    A(f'''v_and_b32 v6, 31, v{vL}
          v_lshlrev_b32 v6, 3, v6
          buffer_load_dwordx2 {vr(reg,2)}, v6, {srd(WS)}, s{sA} offen sc1''')
def loc_eval(reg):
    A(f'''v_cmp_ne_u32 vcc, s{sXCC}, v{reg}
          v_cmp_ne_u32 s[6:7], v{reg+1}, v{vT}
          s_or_b64 vcc, vcc, s[6:7]
          s_cselect_b32 s{sLOC}, 0, 1''')
def loc_store(text):
    a, b = A.newlab('Lls'), A.newlab('Lle')
    A(f's_cmp_eq_u32 s{sLOC}, 0\ns_cbranch_scc1 {a}\n{text}\ns_branch {b}')
    A.label(a)
    A(text + ' sc1')
    A.label(b)

def toggle(regs, x):
    lab = A.newlab('Lnt')
    return f's_cmp_lt_u32 s{sCNT}, {OPT["ka"]}\ns_cbranch_scc1 {lab}\n' + ''.join(f's_xor_b32 s{r}, s{r}, {x}\n' for r in regs) + f'{lab}:'

def lds_wait(addr, n, tmp, sleep=1, cnt=None):
    sCNT = cnt or globals()['sCNT']
    L, D = A.newlab('Llw'), A.newlab('Llok')
    A(f's_mov_b32 s{sCNT}, 0\nv_mov_b32 v{tmp+7}, {addr}')
    A.label(L)
    if n == 1:
        A(f'ds_read_b32 v{tmp}, v{tmp+7}\ns_waitcnt lgkmcnt(0)')
    else:
        A(f'ds_read_b128 {vr(tmp,4)}, v{tmp+7}\ns_waitcnt lgkmcnt(0)')
        A(f'v_bitop3_b32 v{tmp}, v{tmp}, v{tmp+1}, v{tmp+2} bitop3:0x80\nv_and_b32 v{tmp}, v{tmp}, v{tmp+3}')
    A(f'''v_cmp_ne_u32 vcc, -1, v{tmp}
          s_cmp_eq_u64 vcc, 0
          s_cbranch_scc1 {D}
          {'s_sleep %d' % sleep if sleep else ''}
          s_add_u32 s{sCNT}, s{sCNT}, 1
          s_cmp_lt_u32 s{sCNT}, {OPT['limit']*8}
          s_cbranch_scc1 {L}''')
    A.label(D)

def make_tag():
    A(f'''s_waitcnt lgkmcnt(0)
          s_add_u32 s{sT}, s{sE}, 0x9e3779b9
          v_mov_b32 v{vT}, s{sT}''')

def swap_red(a, t, op, which):
    A(f'v_mov_b32 v{t}, v{a}\nv_permlane{which}_swap_b32 v{a}, v{t}\n{op} v{a}, v{a}, v{t}')
def row_red(a, op):
    for n in (1, 2, 4, 8):
        A(f'{op}_dpp v{a}, v{a}, v{a} row_ror:{n} row_mask:0xf bank_mask:0xf')

def mfma32(d, a, b, c=None):
    A(f'v_mfma_f32_16x16x32_bf16 {vr(d,4)}, {vr(a,4)}, {vr(b,4)}, {vr(d,4) if c is None else c}')

def sadd(dst, *terms):
    const = sum(t for t in terms if isinstance(t, int))
    first = True
    for t in terms:
        if isinstance(t, int): continue
        tgt = dst if first else sBt
        if len(t) == 3: A(f's_mul_i32 s{tgt}, s{t[0]}, {t[2]}')
        elif t[1] == 0:
            if first: A(f's_mov_b32 s{dst}, s{t[0]}')
            else: A(f's_add_u32 s{dst}, s{dst}, s{t[0]}'); continue
        else: A(f's_lshl_b32 s{tgt}, s{t[0]}, {t[1]}')
        if not first: A(f's_add_u32 s{dst}, s{dst}, s{sBt}')
        first = False
    if const: A(f's_add_u32 s{dst}, s{dst}, {const}')

if DEBUG or OPT['fix']: A(f's_memrealtime s[{sST+2}:{sST+3}]\ns_memtime s[{sST+4}:{sST+5}]')
A(f'''s_cmp_ge_u32 s2, 256
      s_cbranch_scc1 L_exit
      s_load_dwordx2 s[{CKV}:{CKV+1}], s[0:1], 8
      s_load_dwordx2 s[{X}:{X+1}], s[0:1], 0
      s_load_dwordx2 s[{WQ}:{WQ+1}], s[0:1], 16
      s_load_dwordx2 s[{WUK}:{WUK+1}], s[0:1], 24
      s_load_dwordx2 s[{WS}:{WS+1}], s[0:1], 96
      v_lshrrev_b32 v6, 6, v0
      v_and_b32 v{vL}, 63, v0
      v_readfirstlane_b32 s{sWV}, v6
      v_lshrrev_b32 v{vQ}, 4, v{vL}
      v_and_b32 v{vI}, 15, v{vL}
      v_and_b32 v{vB4}, 3, v{vL}
      v_lshrrev_b32 v{vU}, 2, v{vI}
      v_lshlrev_b32 v{aL16}, 4, v{vL}
      v_and_b32 v8, 7, v{vL}
      v_bfe_u32 v9, v{vL}, 3, 1
      v_mul_u32_u24 v9, {PITCH}, v9
      v_lshl_add_u32 v8, v8, 2, v9
      v_add_u32 v8, {L_QFLAG}, v8
      v_mov_b32 v9, 0
      ds_write_b32 v8, v9''')
if OPT['cpf']:
    A(f'''s_getpc_b64 s[6:7]
          L_pc:
          s_bfe_u32 s{sA}, s2, 0x10003
          s_lshl_b32 s{sA}, s{sA}, 13
          v_lshl_add_u32 v8, v{vL}, 7, s{sA}
          s_cmp_lg_u32 s{sWV}, 3
          s_cbranch_scc1 L_nocpf
          s_cmp_ge_u32 s2, 32
          s_cbranch_scc1 L_nocpf
          v_cmp_gt_u32 vcc, CODE_BYTES, v8
          s_and_b64 exec, exec, vcc
          s_cbranch_execz L_nocpf2
          global_load_dword v201, v8, s[6:7]''')
    A.label('L_nocpf2')
    A('s_mov_b64 exec, -1')
    A.label('L_nocpf')
for b, n in ((X, 4096), (CKV, 1 << 24), (WQ, 1 << 22), (WUK, 1 << 22), (WUV, 1 << 22), (WO, 1 << 22), (WG, 1835008),
             (WU, 1835008), (WD, 1835008), (OUT, 4096), (WS, WS_BYTES)):
    A(f's_mov_b32 s{b+2}, {n}\ns_mov_b32 s{b+3}, 0x00020000')
A(f'''s_and_b32 s{sX8}, s2, 7
      s_bfe_u32 s{sR}, s2, 0x40003
      s_and_b32 s{sC}, s{sR}, 3
      s_lshl2_add_u32 s{sH}, s{sX8}, s{sC}
      s_lshr_b32 s{sJ4}, s{sR}, 2
      s_lshl4_add_u32 s{sPAIR}, s{sX8}, s{sR}
      s_lshr_b32 s{sB}, s{sPAIR}, 5
      s_lshr_b32 s{sG}, s2, 7
      s_and_b32 s{sV4}, s{sWV}, 3
      s_mov_b32 s{sONES}, 0x3f803f80
      s_getreg_b32 s{sXCC}, hwreg(HW_REG_XCC_ID, 0, 4)''')
if DEBUG: A(f'v_mov_b32 v{vSTAMP}, 0\ns_waitcnt lgkmcnt(0)\nv_writelane_b32 v{vSTAMP}, s{sST+2}, 62')
A(f'''s_waitcnt lgkmcnt(0)
      s_load_dword s{sE}, s[{WS}:{WS+1}], 0
      s_load_dwordx2 s[{WUV}:{WUV+1}], s[0:1], 32
      s_load_dwordx2 s[{WO}:{WO+1}], s[0:1], 40
      s_load_dwordx2 s[{WG}:{WG+1}], s[0:1], 56
      s_load_dwordx2 s[{WU}:{WU+1}], s[0:1], 64
      s_load_dwordx2 s[{WD}:{WD+1}], s[0:1], 72
      s_load_dwordx2 s[{OUT}:{OUT+1}], s[0:1], 80
      s_cmp_lt_u32 s{sWV}, 4
      s_cbranch_scc1 L_stream''')

XS, XF, TF, ACC, G1_, UF, XQ, XB = 16, 32, 80, 112, 120, 96, 128, 136
A(f'''s_setprio 3
      s_cmp_lg_u32 s{sWV}, 4
      s_cbranch_scc1 L_nox
      v_lshlrev_b32 v6, 10, v{vQ}
      v_lshl_add_u32 v6, v{vI}, 4, v6
      s_lshl_b32 s{sA}, s{sJ4}, 8''')
for k in range(4):
    A(f'buffer_load_dwordx4 {vr(XS+4*k,4)}, v6, {srd(X)}, s{sA} offen')
    if k < 3: A(f's_add_u32 s{sA}, s{sA}, 256\ns_and_b32 s{sA}, s{sA}, 1023')
A.label('L_nox')
A(f'''v_lshrrev_b32 v7, 3, v{vL}
      v_and_b32 v8, 7, v{vL}
      v_lshlrev_b32 v9, 1, v{vQ}
      v_xor_b32 v8, v8, v9
      v_lshlrev_b32 v8, 4, v8
      v_lshl_add_u32 v7, v7, 13, v8''')
sadd(sA, (sJ4, 20), (sV4, 18), (sH, 8), (sG, 7))
A(f's_mul_i32 s{sC}, s{sV4}, {32*PITCH}')
for n in range(4):
    A(f's_add_u32 m0, s{sC}, {L_WQ + n*1024}')
    A(f'buffer_load_dwordx4 v7, {srd(WQ)}, s{sA} offen{NTW} lds')
    if n < 3: A(f's_add_u32 s{sA}, s{sA}, 0x10000')
A('s_barrier')
A(f'''v_xor_b32 v7, v{vQ}, v{vI}
      v_lshlrev_b32 v7, 4, v7
      v_lshl_add_u32 v7, v{vQ}, 13, v7''')
sadd(sA, (sG, 21), (sJ4, 19), (sV4, 17), (sH, 8))
if OPT['wukd']: A('s_waitcnt vmcnt(%d)' % (4 - OPT['wukd']))
for n in range(4):
    A(f's_add_u32 m0, s{sC}, {L_WUK + n*1040}')
    A(f'buffer_load_dwordx4 v7, {srd(WUK)}, s{sA} offen{NTW} lds')
    if n < 3: A(f's_add_u32 s{sA}, s{sA}, 0x8000')
sadd(sP0, (sH, 13), H0A)
sadd(sA, (sG, 12), (sJ4, 10), (sV4, 8), (sP0, 0))
A(f'''v_and_b32 v8, 1, v{vL}
      v_lshlrev_b32 v8, 7, v8
      buffer_load_dword v200, v8, {srd(WS)}, s{sA} offen sc1
      s_setprio 0''')
stamp(0)
A(f'''v_lshl_add_u32 v8, v{vQ}, 2, v{vU}
      v_bfe_u32 v9, v8, 1, 2
      v_xor_b32 v9, s{sV4}, v9
      v_lshlrev_b32 v9, 5, v9
      v_lshl_add_u32 v9, v8, 7, v9
      v_lshl_add_u32 v9, v{vB4}, 3, v9
      v_add_u32 v154, {64*PITCH}, v9
      v_mul_u32_u24 v14, 272, v{vB4}
      v_lshl_add_u32 v14, v{vQ}, 3, v14
      v_add_u32 v14, {L_XC}, v14
      v_lshlrev_b32 v11, 8, v{vQ}
      v_lshl_add_u32 v11, v{vB4}, 4, v11''')
sadd(sP1, (sG, 12), (sV4, 10), (sJ4, 6), (sP0, 0))
A(f's_xor_b32 s{sP3}, s{sP1}, {H0A ^ H0B}')
sadd(sP0, (sP0, 0), (sV4, 11))
A(f'''v_mul_u32_u24 v8, 1040, v{vU}
      v_lshl_add_u32 v8, v{vB4}, 8, v8
      v_and_b32 v10, 1, v{vQ}
      v_lshl_add_u32 v8, v10, 3, v8
      v_add_u32 v8, s{sC}, v8
      v_lshrrev_b32 v10, 1, v{vQ}
      v_xor_b32 v10, v10, v{vB4}
      v_xor_b32 v124, 2, v10
      v_lshl_add_u32 v10, v10, 4, v8
      v_lshl_add_u32 v124, v124, 4, v8
      v_add_u32 v125, {L_XQ}, v{aL16}
      s_lshl_b32 s{sA}, s{sV4}, 10
      v_add_u32 v126, s{sA}, v125
      v_lshlrev_b32 v127, 4, v{vQ}
      v_lshl_add_u32 v127, v{vB4}, 16, v127''')
sadd(sP2, (sH, 11), (sG, 10), (sJ4, 8), (sV4, 6), H1)
make_tag()
for k in range(4): A(f'v_mov_b32 v{G1_+k}, s{sT}')
A(f'v_mov_b32 v118, s{sT}\nv_mov_b32 v119, s{sT}')
A(f's_cmp_lg_u32 s{sWV}, 4\ns_cbranch_scc1 L_noln\ns_waitcnt vmcnt(9)\nv_mov_b32 v12, 0')
for k in range(16): A(f'v_dot2c_f32_bf16 v12, s{sONES}, v{XS+k}')
A(f'v_mul_u32_u24 v6, 272, v{vQ}\nv_lshl_add_u32 v6, v{vI}, 4, v6\nv_add_u32 v6, {L_XC}, v6')
row_red(12, 'v_add_f32')
A(f'v_mul_f32 v12, {f32(-1.0/512)}, v12\nv_mov_b32 v13, v12\nv_mov_b32 v44, 0\nv_mov_b32 v45, 0')
for k in range(16):
    t = 48 + 2 * k
    A(f'''v_lshlrev_b32 v{t}, 16, v{XS+k}
          v_and_b32 v{t+1}, 0xffff0000, v{XS+k}
          v_pk_add_f32 {vr(t,2)}, {vr(t,2)}, v[12:13]''')
    if k < 4: A(f'v_cvt_pk_bf16_f32 v{40+k}, v{t}, v{t+1}')
    if k == 3: A('ds_write_b128 v6, v[40:43]')
    A(f'v_pk_fma_f32 v[44:45], {vr(t,2)}, {vr(t,2)}, v[44:45]')
A('v_add_f32 v12, v44, v45')
row_red(12, 'v_add_f32')
A(f'''v_mov_b32 v13, {f32(1e-5)}
      v_fmac_f32 v13, {f32(1.0/512)}, v12
      v_rsq_f32 v12, v13
      v_lshlrev_b32 v6, 2, v{vQ}
      v_add_u32 v6, {L_XC+2048}, v6
      v_mul_f32 v12, {f32(128**-0.5*math.log2(math.e))}, v12
      ds_write_b32 v6, v12
      s_waitcnt lgkmcnt(0)''')
stamp(21)
A.label('L_noln')
A(f'''v_lshlrev_b32 v6, 2, v{vB4}
      v_add_u32 v6, {L_XC+2048}, v6
      s_lshl_b32 s{sA}, s{sV4}, 2
      s_add_u32 s{sA}, s{sA}, {L_FA}
      v_mov_b32 v152, s{sA}
      v_mov_b32 v153, -1
      s_waitcnt vmcnt(5)
      ds_write_b32 v152, v153''')
stamp(1)
lds_wait(L_FA, 4, 156, sleep=0)
for s in range(4):
    for hf in range(2):
        A(f'ds_read_b64 {vr(XF+4*s+2*hf,2)}, v14 offset:{64*s + 32*hf}')
        A(f'ds_read_b64_tr_b16 {vr(TF+4*s+2*hf,2)}, v{9 if s<2 else 154} offset:{L_WQ + (s&1)*32*PITCH + hf*2048}')
A(f's_bitcmp1_b32 s{sV4}, 0')
for s in range(4):
    A(f's_waitcnt lgkmcnt({12-4*s})')
    mfma32(ACC, TF + 4 * s, XF + 4 * s, '0' if s == 0 else None)
A(f'''ds_read_b32 v12, v6
      s_cbranch_scc1 L_s1odd
      s_nop 5
      v_cvt_pk_bf16_f32 v{G1_+2}, v{ACC}, v{ACC+1}
      v_cvt_pk_bf16_f32 v{G1_+3}, v{ACC+2}, v{ACC+3}
      s_branch L_s1done''')
A.label('L_s1odd')
A(f'''s_nop 5
      v_cvt_pk_bf16_f32 v{G1_}, v{ACC}, v{ACC+1}
      v_cvt_pk_bf16_f32 v{G1_+1}, v{ACC+2}, v{ACC+3}''')
A.label('L_s1done')
set_exec(0x000f000f)
A(f'buffer_store_dwordx4 {vr(G1_,4)}, v11, {srd(WS)}, s{sP1} offen')
full_exec()
stamp(2)
A('s_waitcnt vmcnt(1)')
for s in range(4):
    A(f'ds_read_b64 {vr(UF+4*s,2)}, v10 offset:{L_WUK + s*64}')
    A(f'ds_read_b64 {vr(UF+4*s+2,2)}, v124 offset:{L_WUK + s*64}')
def fb0():
    set_exec(0x000f000f)
    A(f'buffer_store_dwordx4 {vr(G1_,4)}, v11, {srd(WS)}, s{sP3} offen sc1')
    full_exec()
poll(f'''buffer_load_dwordx4 {vr(XQ,4)}, v{aL16}, {srd(WS)}, s{sP0} offen sc1
         buffer_load_dwordx4 {vr(XQ+4,4)}, v{aL16}, {srd(WS)}, s{sP0} offen offset:1024 sc1''',
     [XQ, XQ + 7], 44, onfail=toggle([sP0], H0A ^ H0B), late=fb0, pre_late=f'ds_write_b128 v126, {vr(XQ+2,4)}')
stampcnt(40)
stamp(3)
A('s_waitcnt lgkmcnt(0)\nds_write_b32 v152, v153 offset:16')
lds_wait(L_FB, 4, 156, sleep=0)
for s in range(4): A(f'ds_read_b128 {vr(XB+4*s,4)}, v125 offset:{1024*s}')
for s in range(4):
    A(f's_waitcnt lgkmcnt({3-s})')
    mfma32(ACC, UF + 4 * s, XB + 4 * s, '0' if s == 0 else None)
for r in range(4): A(f'v_add_f32_dpp v{ACC+r}, v{ACC+r}, v{ACC+r} row_ror:4 row_mask:0xf bank_mask:0xf')
for r in range(4): A(f'v_add_f32_dpp v{ACC+r}, v{ACC+r}, v{ACC+r} row_ror:8 row_mask:0xf bank_mask:0xf')
for r in range(4): A(f'v_mul_f32 v{ACC+r}, v12, v{ACC+r}')
set_exec(0x000f000f)
A(f'v_cvt_pk_bf16_f32 v116, v{ACC}, v{ACC+1}\nv_cvt_pk_bf16_f32 v117, v{ACC+2}, v{ACC+3}')
A(f'buffer_store_dwordx4 v[116:119], v127, {srd(WS)}, s{sP2} offen sc1')
full_exec()
stamp(4)

VF, PF, PA, OW, LA, ONES = 16, 80, 96, 112, 216, 220
RB = PF
def common_addr():
    A(f'''v_lshl_add_u32 v{aVF0}, v{vQ}, 2, v{vU}
          v_mul_u32_u24 v{aVF0}, {PITCH}, v{aVF0}
          v_lshl_add_u32 v{aVF0}, v{vB4}, 3, v{aVF0}
          s_lshl_b32 s{sA}, s{sWV}, 7
          v_add_u32 v{aVF0}, s{sA}, v{aVF0}
          v_add_u32 v{aVF1}, {64*PITCH}, v{aVF0}
          v_add_u32 v{aP}, {L_P}, v{aL16}
          s_lshl_b32 s{sA}, s{sWV}, 11
          s_add_u32 s{sA}, s{sA}, {L_R}
          v_add_u32 v{aSR}, s{sA}, v{aL16}
          v_lshl_add_u32 v9, v{vI}, 7, s{sA}
          v_lshlrev_b32 v6, 1, v{vQ}
          v_xor_b32 v6, v6, v{vI}
          v_and_b32 v6, 7, v6
          v_lshl_add_u32 v{aSW}, v6, 4, v9
          v_xor_b32 v{aSW+1}, 16, v{aSW}
          v_lshrrev_b32 v6, 3, v{vL}
          v_xor_b32 v7, v6, v{vL}
          v_and_b32 v7, 7, v7
          v_lshlrev_b32 v7, 4, v7
          v_lshl_add_u32 v{aST}, v6, 17, v7''')
    sadd(sH2ST, (sG, 21), (sWV, 14), (sPAIR, 7), H2)
def v_reads(s):
    for ct in range(4):
        for hf in range(2):
            A(f'ds_read_b64_tr_b16 {vr(VF+(s*4+ct)*4+2*hf,2)}, v{aVF0+(s>>1)} offset:{(s&1)*32*PITCH + hf*16*PITCH + ct*32}')
def p_reads():
    for s in range(4): A(f'ds_read_b128 {vr(PF+4*s,4)}, v{aP} offset:{1024*s}')
TB = 120
def ow_tags():
    A(f'v_and_b32 v6, 1, v{vQ}\nv_lshlrev_b32 v6, 3, v6\nv_lshrrev_b32 v{TBR[0]}, v6, v{vT}\ns_mov_b32 s83, 0x00010001')
    for k in range(1, 8): A(f'v_lshrrev_b32 v{TBR[k]}, {k}, v{TBR[0]}')
TBR = [120, 121, 122, 123, 224, 225, 226, 227]

QG, WR = 16, 124
aLS, aGS, aBIT, aOL, aWTw, aWTr, aHCs, aUV, aOF, aRDw, aRDr, aH3, aCT, aE, aDMP = 192, 193, 194, 195, 196, 197, 198, 199, 200, 202, 203, 204, 206, 210, 212
G4, W4 = 184, 188
aQW = 160
def back_addr():
    A(f'''v_add_u32 v{aOL}, {L_OL}, v{aL16}
          v_lshlrev_b32 v{aHCs}, 8, v{vQ}
          v_lshl_add_u32 v{aHCs}, v{vB4}, 4, v{aHCs}
          v_lshl_add_u32 v7, v{vQ}, 2, v{vU}
          v_mul_u32_u24 v{aUV}, {16*WP + 128}, v{vQ}
          v_mul_u32_u24 v6, {WP}, v{vU}
          v_add_u32 v{aUV}, v{aUV}, v6
          v_lshl_add_u32 v{aUV}, v{vB4}, 3, v{aUV}
          s_lshl_b32 s{sA}, s{sWV}, 5
          v_add_u32 v{aUV}, s{sA}, v{aUV}
          v_lshlrev_b32 v7, 6, v7
          v_lshl_add_u32 v7, v{vB4}, 3, v7
          v_and_b32 v6, 1, v{vQ}
          v_lshl_add_u32 v7, v6, 5, v7
          s_lshl_b32 s{sA}, s{sWV}, 12
          s_add_u32 s{sA}, s{sA}, {L_WO}
          v_add_u32 v{aOF}, s{sA}, v7
          v_xor_b32 v{aOF+1}, 32, v{aOF}
          s_lshl_b32 s{sA}, s{sWV}, 10
          s_add_u32 s{sA}, s{sA}, {L_RED}
          v_add_u32 v{aRDw}, s{sA}, v{aL16}
          v_lshrrev_b32 v6, 1, v{vU}
          v_lshl_add_u32 v{aRDr}, v6, 12, v{aL16}
          v_add_u32 v{aRDr}, {L_RED}, v{aRDr}
          v_and_b32 v6, 7, v{vL}
          v_lshlrev_b32 v6, 4, v6
          v_lshl_add_u32 v{aH3}, v{vQ}, 10, v6''')
    sadd(76, (sX8, 15), (sWV, 12), HCA)
    sadd(77, (sH, 13), (sWV, 10), (sJ4, 6), HCA)
    sadd(79, (sR, 12), (sX8, 7), H3)
    for k in range(4): A(f'v_mov_b32 v{G4+k}, s{sT}')
    A(f'v_mov_b32 v{W4}, s{sT}\nv_mov_b32 v{W4+1}, s{sT}')
common_addr()
A(f's_lshl1_add_u32 s{sC}, s{sB}, s{sG}')
sadd(sP0, (sC, 15), H1)
sQ = 92
sQ = 16
A(f'v_lshlrev_b32 v11, 3, v{vL}\nv_add_u32 v11, {L_R}, v11')
if OPT['qrot']: A(f's_lshl1_add_u32 s{sD}, s{sR}, 0\ns_lshl3_add_u32 s{sD}, s{sV4}, s{sD}')
else: A(f's_lshl_b32 s{sD}, s{sV4}, 3')
for k in range(8):
    A(f'''s_add_u32 s{sA}, s{sD}, {k}
          s_and_b32 s{sA}, s{sA}, 31
          s_lshl_b32 s{sBt}, s{sA}, 10
          s_add_u32 s{sQ+k}, s{sBt}, s{sP0}
          s_lshr_b32 s{sA}, s{sA}, 1
          s_mul_i32 s{sA}, s{sA}, {PITCH}
          v_add_u32 v{aQW+k}, s{sA}, v11''')
A(f'''s_lshl_b32 s{sA}, s{sV4}, 2
      s_add_u32 s{sA}, s{sA}, {L_QFLAG}
      v_mov_b32 v12, s{sA}
      v_and_b32 v9, 1, v{vL}
      v_lshlrev_b32 v9, 7, v9
      v_lshrrev_b32 v13, 1, v{vL}
      v_lshl_add_u32 v10, v13, 10, v9
      v_lshlrev_b32 v9, 4, v{vI}
      v_lshl_add_u32 v9, v{vQ}, 13, v9''')
ow_tags()
sadd(sP2, (sJ4, 20), (sV4, 18), (sH, 8))
sadd(sP3, (sH, 17), (sV4, 15), (sJ4, 8))
sadd(sA, (sH, 13), (sJ4, 11), (sV4, 9), HCA)
A(f's_lshr_b32 s{sC}, s{sH}, 4\ns_and_b32 s{sD}, s{sH}, 15')
sadd(sP0, (sC, 15), (sV4, 13), (sD, 4), HS)
A(f'''s_cmp_lg_u32 s{sG}, 0
      s_cbranch_scc1 L_nopre
      v_lshlrev_b32 v8, 7, v{vB4}
      buffer_load_dword v47, v8, {srd(WS)}, s{sA} offen sc1
      v_and_b32 v8, 1, v{vL}
      v_lshlrev_b32 v8, 8, v8''')
sadd(sA, (sC, 15), (sR, 11), (sV4, 9), (sD, 4), HS)
A(f'buffer_load_dword v46, v8, {srd(WS)}, s{sA} offen sc1')
A.label('L_nopre')
lds_wait(L_PROG, 1, 48)
stamp(5)
def gather_addr():
    back_addr()
    A(f's_lshl2_add_u32 s{sC}, s{sH}, s{sJ4}\ns_lshl3_add_u32 s{sC}, s{sC}, s{sV4}')
    sadd(sP1, (sC, 12), H2)
    A(f'''v_and_b32 v6, 31, v{vL}
          v_lshlrev_b32 v{aLS}, 8, v6
          s_lshl_b32 s85, s{sV4}, 13
          s_add_u32 s85, s85, {L_CS}
          s_lshl_b32 s{sA}, s{sWV}, 6
          s_add_u32 s{sA}, s{sA}, {L_WT}
          v_lshl_add_u32 v{aWTw}, v6, 1, s{sA}
          v_lshl_add_u32 v{aWTr}, v{vQ}, 3, s{sA}
          s_lshl_b32 s84, 0x11111111, s{sV4}
          v_mul_u32_u24 v{aDMP}, {WP}, v{vQ}
          v_lshl_add_u32 v{aDMP}, v{vI}, 4, v{aDMP}
          s_mul_i32 s{sA}, s{sV4}, {32*WP + 256}
          v_add_u32 v{aDMP}, s{sA}, v{aDMP}
          v_lshlrev_b32 v6, 5, v{vQ}
          v_xor_b32 v{aGS}, v6, v{aL16}
          v_lshrrev_b32 v6, 3, v{vL}
          v_lshlrev_b32 v{aBIT}, v6, 1
          v_lshrrev_b32 v6, 1, v{vI}
          v_and_b32 v7, 1, v{vI}
          v_lshl_add_u32 v6, v7, 4, v6
          v_bfe_u32 v7, v{vT}, v6, 1
          v_mul_u32_u24 v{aE}, 0x10001, v7
          v_add_u32 v6, 8, v6
          v_bfe_u32 v7, v{vT}, v6, 1
          v_mul_u32_u24 v{aE+1}, 0x10001, v7
          v_lshl_add_u32 v6, v{vQ}, 2, v{vU}
          v_bfe_u32 v7, v6, 1, 2
          v_lshl_add_u32 v6, v6, 7, s85
          v_lshl_add_u32 v6, v{vB4}, 3, v6''')
    for t in range(4):
        A(f'v_xor_b32 v{aCT+t}, {t}, v7\nv_lshl_add_u32 v{aCT+t}, v{aCT+t}, 5, v6')
loads = ''.join(f'buffer_load_dwordx4 {vr(QG+4*k,4)}, v{aL16}, {srd(WS)}, s{sQ+k} offen sc1\n' for k in range(8))
poll(loads, [QG + 4 * k + 3 for k in range(8)], 48, onfail=f's_sleep {OPT["qsleep"]}', between=gather_addr)
for k in range(8): A(f'ds_write_b64 v{aQW+k}, {vr(QG+4*k,2)} offset:{(k&1)*512}')
A('v_mov_b32 v48, -1\ns_waitcnt lgkmcnt(0)\nds_write_b32 v12, v48')
stampcnt(41)
stamp(8)
NTP = ' nt' if OPT['pf_nt'] else ''
def late_loads():
    A(f'''s_cmp_lg_u32 s{sG}, 0
          s_cbranch_scc1 L_nolate''')
    for n in range(8):
        A(f'buffer_load_dwordx4 {vr(WR+4*n,4)}, v213, {srd(WUV)}, s{sP2} offen{NTW}')
        if n < 7: A(f's_add_u32 s{sP2}, s{sP2}, 0x8000')
    A('s_branch L_late_done')
    A.label('L_nolate')
    A(f'buffer_load_dword v124, v214, {srd(WO)}, s{sP3} offen{NTP}')
    A.label('L_late_done')
A('v_mov_b32 v213, v9\nv_mov_b32 v214, v10')
loc_issue(180)
if OPT['late'] == 1: late_loads()
stamp(9)
A(f'''v_mul_u32_u24 v9, 3584, v{vU}
      v_lshl_add_u32 v9, v{vB4}, 7, v9
      v_lshlrev_b32 v10, 7, v{vL}
      s_lshr_b32 s{sD}, s2, 3''')
sadd(sA, (sD, 'mul', 16 * 3584), (sV4, 'mul', 4 * 3584), (sX8, 'mul', 448))
sadd(sC, (sX8, 'mul', 7 * 32768), (sD, 'mul', 7168), (sV4, 'mul', 1792))
def ffn_pf():
    A(f'''s_mov_b64 exec, 0xffff
          buffer_load_dword v156, v9, {srd(WG)}, s{sA} offen{NTP}
          buffer_load_dword v157, v9, {srd(WU)}, s{sA} offen{NTP}
          s_mov_b64 exec, 0x3fff
          buffer_load_dword v158, v10, {srd(WD)}, s{sC} offen{NTP}
          s_mov_b64 exec, -1''')
if OPT['ffnpf'] == 2: ffn_pf()
A('s_waitcnt lgkmcnt(0)\ns_barrier')
for s in range(4): v_reads(s)
if OPT['ffnpf'] == 1: ffn_pf()
if OPT['late'] == 2: late_loads()
A('s_barrier')
stamp(10)
p_reads()
for s in range(4):
    A(f's_waitcnt lgkmcnt({3-s})')
    for ct in range(4): mfma32(PA + 4 * ct, VF + (s * 4 + ct) * 4, PF + 4 * s, '0' if s == 0 else None)

A.label('L_pvout')
stamp(22)
A('s_nop 4')
for dd in range(8):
    A(f'v_cvt_pk_bf16_f32 v{OW+dd}, v{PA+2*dd}, v{PA+2*dd+1}')
    A(f'v_bfi_b32 v{OW+dd}, s83, v{TBR[dd]}, v{OW+dd}')
    if dd in (3, 7): A(f'ds_write_b128 v{aSW+dd//4}, {vr(OW+dd-3,4)}')
UVF, OF = 16, 32
LS, WF, CF, CA, OLW = 48, 52, 76, 100, 120
CF2, CA2, OLW2 = 16, 160, 56
END = 's_branch L_end' if DEBUG else 's_endpgm'
A(f'''s_add_u32 s{sA}, s{sH2ST}, 0x100000
      s_add_u32 s{sC}, s{sH2ST}, 0x10000
      s_add_u32 s{sD}, s{sH2ST}, 0x110000
      s_cmp_ge_u32 s{sWV}, 4
      s_waitcnt lgkmcnt(0)
      s_barrier
      s_cbranch_scc1 L_nostore''')
for k in range(4): A(f'ds_read_b128 {vr(16+4*k,4)}, v{aSR} offset:{1024*(k%2) + 8192*(k//2)}')
for k in range(4):
    A(f's_waitcnt lgkmcnt({3-k})')
    A(f'buffer_store_dwordx4 {vr(16+4*k,4)}, v{aST}, {srd(WS)}, s{[sH2ST, sA, sC, sD][k]} offen sc1')
if OPT['statlate'] in (1, 2):
    A(f'''s_cmp_lg_u32 s{sWV}, 0
          s_cbranch_scc1 L_nolse
          v_mov_b32 v13, v{LA}
          {'s_waitcnt vmcnt(0)' if OPT['statlate']==2 else ''}
          s_mov_b64 exec, 0xffff
          buffer_store_dwordx4 v[12:15], v{aL16}, {srd(WS)}, s{sHSST} offen sc1
          s_mov_b64 exec, -1''')
    A.label('L_nolse')
stamp(11)
A(f'''s_cmp_lg_u32 s{sG}, 0
      s_cbranch_scc1 L_g1w03''')
def wo_dma():
    A(f'''v_lshrrev_b32 v6, 2, v{vL}
          v_and_b32 v7, 1, v{vQ}
          v_lshlrev_b32 v7, 1, v7
          v_xor_b32 v7, v7, v{vB4}
          v_lshlrev_b32 v7, 4, v7
          v_lshl_add_u32 v6, v6, 10, v7
          s_lshl_b32 s{sD}, s{sWV}, 12''')
    sadd(sA, (sX8, 19), (sWV, 16), (sR, 6))
    for n in range(4):
        A(f's_add_u32 m0, s{sD}, {L_WO + 1024*n}')
        A(f'buffer_load_dwordx4 v6, {srd(WO)}, s{sA} offen{NTW} lds')
        if n < 3: A(f's_add_u32 s{sA}, s{sA}, 0x4000')
if OPT.get('wod', 1): A('s_waitcnt vmcnt(0)')
wo_dma()
loc_issue(180)
back_addr()
A('s_waitcnt vmcnt(0)')
loc_eval(180)
stamp(12)
A('s_branch L_b3')
A.label('L_nostore')
if OPT['late'] == 3: late_loads()
A(f's_cmp_lg_u32 s{sG}, 0\ns_cbranch_scc1 L_g1tail')

sPEND, sNEW = 80, 81
def dma_k(k, cs):
    A(f'buffer_load_dwordx4 v{aGS}, {srd(WS)}, s{sP1 + cs} offen offset:{1024*k} sc1 lds')
def gather_loop(css, mid=None):
    GL, GN, GD = A.newlab('Lgl'), A.newlab('Lgn'), A.newlab('Lgd')
    stamp(31)
    A(f'''s_mov_b32 exec_hi, 0
          buffer_load_dwordx4 {vr(LS,4)}, v{aLS}, {srd(WS)}, s{sP0} offen sc1
          s_mov_b32 exec_hi, -1
          s_mov_b32 s{sPEND}, -1
          s_mov_b32 s{sCNT}, 0
          s_add_u32 s{sP2}, s{sP1}, 0x4000''')
    if mid: mid()
    A.label(GL)
    A(f'''s_waitcnt vmcnt(0)
          v_cmp_eq_u32 vcc, v{LS+3}, v{vT}
          s_and_b32 s{sNEW}, vcc_lo, s{sPEND}
          s_cbranch_scc0 {GN}
          s_andn2_b32 s{sPEND}, s{sPEND}, s{sNEW}''')
    for k in range(4):
        A(f'v_and_b32 v{136+k}, s{sNEW}, v{aBIT}')
        if k < 3: A(f's_lshr_b32 s{sNEW}, s{sNEW}, 8')
    for k in range(4): A(f'v_cmp_ne_u32 s[{16+2*k}:{17+2*k}], 0, v{136+k}')
    for cs in css:
        A(f's_add_u32 m0, s85, {cs*4096}')
        for k in range(4):
            sk = A.newlab('Lsk')
            A(f's_mov_b64 exec, s[{16+2*k}:{17+2*k}]\ns_cbranch_execz {sk}')
            dma_k(k, cs)
            A.label(sk)
    A(f'''s_mov_b64 exec, -1
          s_cmp_eq_u32 s{sPEND}, 0
          s_cbranch_scc1 {GD}''')
    A.label(GN)
    A(f'''s_mov_b32 exec_lo, s{sPEND}
          s_mov_b32 exec_hi, 0
          buffer_load_dwordx4 {vr(LS,4)}, v{aLS}, {srd(WS)}, s{sP0} offen sc1
          s_mov_b64 exec, -1
          s_add_u32 s{sCNT}, s{sCNT}, 1
          s_cmp_lt_u32 s{sCNT}, {OPT['limit']}
          s_cbranch_scc1 {GL}''')
    A.label(GD)
def dump_uv():
    for n in range(8):
        A(f's_waitcnt vmcnt({(11 if OPT["ffnpf"] else 8)-n})')
        A(f'ds_write_b128 v{aDMP}, {vr(WR+4*n,4)} offset:{L_UV + n*4*WP + (n>>2)*128}')
    stamp(13)
for n in range(8):
    A(f's_waitcnt vmcnt({7-n})')
    A(f'ds_write_b128 v{aDMP}, {vr(WR+4*n,4)} offset:{L_UV + n*4*WP + (n>>2)*128}')
loc_eval(180)
A(f's_add_u32 s{sP2}, s{sP1}, 0x4000\ns_mov_b32 m0, s85')
stamp(13)
ppoll('buffer_load_dwordx4 {r}, v%d, %s, s%d offen sc1' % (aLS, srd(WS), sP0), [144, 148, 152, 156][:OPT['pd']], 3, LS, (0, 1), exec_hi='0')
for cs in range(2):
    if cs: A(f's_add_u32 m0, s85, 4096')
    for k in range(4): dma_k(k, cs)
wo_dma()
stampcnt(42)
stamp(14)
A(f'v_mov_b32 v12, v{LS}')
row_red(12, 'v_max_f32')
swap_red(12, 13, 'v_max_f32', 16)
A(f'''v_sub_f32 v12, v{LS}, v12
      v_exp_f32 v12, v12
      v_mul_f32 v13, v12, v{LS+1}''')
row_red(13, 'v_add_f32')
swap_red(13, 14, 'v_add_f32', 16)
A(f'''v_rcp_f32 v13, v13
      v_mul_f32 v12, v12, v13
      v_cvt_pk_bf16_f32 v12, v12, v12
      s_mov_b32 exec_hi, 0
      ds_write_b16 v{aWTw}, v12
      s_mov_b32 exec_hi, -1
      s_waitcnt lgkmcnt(0)
      ds_read_b64 {vr(WF,2)}, v{aWTr}
      ds_read_b64 {vr(WF+2,2)}, v{aWTr} offset:32
      s_mov_b32 s{sCNT}, 0''')
A('s_waitcnt vmcnt(4)')
A.label('L_h2poll')
stamp(15)
units = ((CF, CA), (CF2, CA2))
for cs in range(2):
    for t in range(4):
        for hf in range(2): A(f'ds_read_b64_tr_b16 {vr(units[cs][0]+4*t+2*hf,2)}, v{aCT+t} offset:{cs*4096 + 2048*hf}')
A('v_mov_b32 v142, 0')
for cs, (cf, ca) in enumerate(units):
    for t in range(4):
        A(f's_waitcnt lgkmcnt({14 - 8*cs - 2*t})')
        for k in range(4): A(f'v_xor_b32 v{cf+4*t+k}, v{cf+4*t+k}, v{aE+(t&1)}')
        A(f'v_or3_b32 v142, v142, v{cf+4*t}, v{cf+4*t+1}\nv_or3_b32 v142, v142, v{cf+4*t+2}, v{cf+4*t+3}')
        mfma32(ca + 4 * t, cf + 4 * t, WF, '0')
A(f'''v_and_b32 v142, s83, v142
      v_cmp_ne_u32 vcc, 0, v142
      s_cmp_eq_u64 vcc, 0
      s_cbranch_scc1 L_h2ok
      s_add_u32 s{sCNT}, s{sCNT}, 1''')
for cs in range(2):
    A(f's_add_u32 m0, s85, {cs*4096}')
    for k in range(4): dma_k(k, cs)
A(f'''s_cmp_lt_u32 s{sCNT}, {OPT['limit']}
      s_waitcnt vmcnt(0)
      s_cbranch_scc1 L_h2poll''')
A.label('L_h2ok')
stampcnt(43)
A('s_mov_b32 exec_lo, s84\ns_mov_b32 exec_hi, s84')
for cs, (ca, ow) in enumerate(((CA, OLW), (CA2, OLW2))):
    for dd in range(8):
        A(f'v_cvt_pk_bf16_f32 v{ow+dd}, v{ca+2*dd}, v{ca+2*dd+1}')
        if dd in (3, 7): A(f'ds_write_b128 v{aOL}, {vr(ow+dd-3,4)} offset:{2048*cs + 1024*(dd//4)}')
full_exec()
A('s_waitcnt lgkmcnt(0)')
A.label('L_b3')
A(f's_bitcmp1_b32 s{sWV}, 0\ns_barrier')
stamp(16)
for s in range(4):
    A(f'ds_read_b128 {vr(56+4*s,4)}, v{aOL} offset:{1024*s}')
    for hf in range(2):
        A(f'ds_read_b64_tr_b16 {vr(UVF+4*s+2*hf,2)}, v{aUV} offset:{L_UV + (s>>1)*(64*WP+512) + (8*(s&1)+4*hf)*WP}')
for s in range(4):
    A(f's_waitcnt lgkmcnt({9-3*s})')
    mfma32(72, UVF + 4 * s, 56 + 4 * s, '0' if s == 0 else None)
set_exec(0x000f000f)
A(f'''s_cbranch_scc1 L_s4odd
      s_nop 4
      v_cvt_pk_bf16_f32 v{G4+2}, v72, v73
      v_cvt_pk_bf16_f32 v{G4+3}, v74, v75
      s_branch L_s4done''')
A.label('L_s4odd')
A(f'''s_nop 4
      v_cvt_pk_bf16_f32 v{G4}, v72, v73
      v_cvt_pk_bf16_f32 v{G4+1}, v74, v75''')
A.label('L_s4done')
loc_store(f'buffer_store_dwordx4 {vr(G4,4)}, v{aHCs}, {srd(WS)}, s77 offen')
full_exec()
stamp(17)
def of_reads():
    A('s_waitcnt vmcnt(5)')
    for s2 in range(2):
        for t in range(2):
            for hf in range(2):
                A(f'ds_read_b64_tr_b16 {vr(OF+(s2*2+t)*4+2*hf,2)}, v{aOF+t} offset:{s2*2048 + hf*1024}')
A5, YO = 80, 88
mpoll([(f'buffer_load_dwordx4 {vr(56+4*k,4)}, v{aL16}, {srd(WS)}, s76 offen offset:{1024*k} sc1', [56 + 4 * k + (3 if k & 1 else 0)]) for k in range(4)],
      ('-1', '-1'), 16, 136, between=of_reads)
A('s_waitcnt lgkmcnt(0)')
for s2 in range(2):
    for t in range(2): mfma32(A5 + 4 * t, OF + (s2 * 2 + t) * 4, 58 + 8 * s2, '0' if s2 == 0 else None)
stampcnt(44)
stamp(18)
for r in range(4): A(f'v_add_f32_dpp v{YO+r}, v{A5+r}, v{A5+r} row_ror:4 row_mask:0xf bank_mask:0x5')
for r in range(4): A(f'v_add_f32_dpp v{YO+r}, v{A5+4+r}, v{A5+4+r} row_ror:4 row_mask:0xf bank_mask:0xa')
for r in range(4): A(f'v_add_f32_dpp v{YO+r}, v{YO+r}, v{YO+r} row_ror:8 row_mask:0xf bank_mask:0xf')
A(f'''ds_write_b128 v{aRDw}, {vr(YO,4)}
      s_cmp_eq_u32 s{sWV}, 0
      s_waitcnt lgkmcnt(0)
      s_barrier
      s_cbranch_scc1 L_s5fin
      {END}''')
A.label('L_s5fin')
for k in range(4): A(f'ds_read_b128 {vr(80+4*k,4)}, v{aRDr} offset:{1024*k}')
A(f'''s_waitcnt lgkmcnt(0)
      v_pk_add_f32 v[80:81], v[80:81], v[84:85]
      v_pk_add_f32 v[82:83], v[82:83], v[86:87]
      v_pk_add_f32 v[88:89], v[88:89], v[92:93]
      v_pk_add_f32 v[90:91], v[90:91], v[94:95]
      v_pk_add_f32 v[80:81], v[80:81], v[88:89]
      v_pk_add_f32 v[82:83], v[82:83], v[90:91]''')
for r in range(4): A(f'v_add_f32_dpp v{80+r}, v{80+r}, v{80+r} row_ror:8 row_mask:0xf bank_mask:0xf')
set_exec(0x00ff00ff)
A(f'''v_cvt_pk_bf16_f32 v{W4+2}, v80, v81
      v_cvt_pk_bf16_f32 v{W4+3}, v82, v83
      buffer_store_dwordx4 {vr(W4,4)}, v{aH3}, {srd(WS)}, s79 offen sc1''')
stamp(19)
A.label('L_end')
endwave()

A.label('L_g1w03')
A(f'''{'s_waitcnt vmcnt(0)' if OPT['ffnwait'] else ''}
      s_barrier
      s_cmp_ge_u32 s{sR}, 8
      s_cbranch_scc1 L_red
      {END}''')
A.label('L_g1tail')
A(f'''v_lshrrev_b32 v9, 2, v{vL}
      v_mul_u32_u24 v6, 3584, v9
      v_lshl_add_u32 v9, v{vB4}, 7, v6
      v_lshlrev_b32 v10, 7, v{vL}''')
sadd(sD, (sR, 'mul', 32 * 3584), (sV4, 'mul', 8 * 3584), (sX8, 'mul', 448))
sadd(sC, (sX8, 'mul', 7 * 32768), (sR, 'mul', 14336), (sV4, 'mul', 3584))
if OPT['helper']:
    gather_loop((1, 0))
    A('s_waitcnt vmcnt(0)')
    stamp(14)
A('s_barrier')
if not OPT['ffnpf']:
    if OPT['trig']:
        sadd(sA, (sH, 13), (sJ4, 6), HCA)
        A(f'''s_mov_b32 s{sCNT}, 0
              s_mov_b64 exec, 1''')
        A.label('L_trig')
        A(f'''buffer_load_dword v124, v{aL16}, {srd(WS)}, s{sA} offen sc1
              s_add_u32 s{sCNT}, s{sCNT}, 1
              s_waitcnt vmcnt(0)
              v_cmp_eq_u32 vcc, v124, v{vT}
              s_cmp_ge_u32 s{sCNT}, {OPT['trig']}
              s_cbranch_scc1 L_trigged
              s_cbranch_vccz L_trig''')
        A.label('L_trigged')
        stamp(27)
    A(f'''s_mov_b32 exec_lo, -1
          s_mov_b32 exec_hi, 0
          buffer_load_dword v124, v9, {srd(WG)}, s{sD} offen{NTP}
          buffer_load_dword v125, v9, {srd(WU)}, s{sD} offen{NTP}
          s_mov_b64 exec, 0xfffffff
          buffer_load_dword v126, v10, {srd(WD)}, s{sC} offen{NTP}
          s_mov_b64 exec, -1''')
A(f'''s_cmp_lt_u32 s{sR}, 7
      s_cbranch_scc1 L_ffn
      s_cmp_ge_u32 s{sR}, 8
      s_cbranch_scc1 L_red
      {END}''')

A.label('L_red')
SEL, RA, HV, RD, aX = 192, 196, 200, 160, 243
A(f'''s_and_b32 s{sA}, s{sR}, 7
      s_lshl3_add_u32 s{sFS}, s{sA}, s{sWV}
      s_lshr_b32 s{sA}, s{sFS}, 2''')
sadd(75, (sA, 6), (sV4, 3))
sadd(sP3, (sFS, 10), H3)
A(f'''v_bfe_u32 v6, v{vL}, 2, 1
      v_lshlrev_b32 v{aX}, 10, v{vB4}
      v_lshl_add_u32 v{aX}, v6, 5, v{aX}
      buffer_load_dwordx2 v[204:205], v{aX}, {srd(X)}, s75 offen
      v_cmp_eq_u32 s[70:71], 1, v6
      v_and_b32 v9, 1, v{vB4}
      v_lshlrev_b32 v9, 4, v9
      v_mov_b32 v10, 0x3f80
      v_lshlrev_b32 v10, v9, v10
      v_cmp_gt_u32 vcc, 2, v{vB4}
      v_cndmask_b32 v{SEL}, 0, v10, vcc
      v_cndmask_b32 v{SEL+1}, v10, 0, vcc
      v_mov_b32 v{SEL+2}, v{SEL}
      v_mov_b32 v{SEL+3}, v{SEL+1}
      v_mov_b32 v{RD+4}, 0
      v_mov_b32 v{RD+5}, 0
      v_mov_b32 v{RD+28}, 0
      v_mov_b32 v{RD+29}, 0''')
def unpack_hv():
    A(f'''v_lshlrev_b32 v{HV}, 16, v204
          v_and_b32 v{HV+1}, 0xffff0000, v204
          v_lshlrev_b32 v{HV+2}, 16, v205
          v_and_b32 v{HV+3}, 0xffff0000, v205''')
def reduce_fin(nl):
    for p in range((nl + 1) // 2):
        mfma32(RA, SEL, RD + 8 * p + 2, '0' if p == 0 else None)
    for r in range(4): A(f'v_add_f32_dpp v{RA+r}, v{RA+r}, v{RA+r} row_ror:8 row_mask:0xf bank_mask:0xf')
    for r in range(4): A(f'v_add_f32 v{HV+r}, v{HV+r}, v{RA+r}')
    A(f'v_cvt_pk_bf16_f32 v204, v{HV}, v{HV+1}\nv_cvt_pk_bf16_f32 v205, v{HV+2}, v{HV+3}')
loc_issue(206)
sadd(sP0, (sX8, 13), (sFS, 7), H4A)
A(f's_mov_b64 exec, 1\nbuffer_load_dword v208, v{aL16}, {srd(WS)}, s{sP0} offen sc1\ns_mov_b64 exec, -1\ns_waitcnt vmcnt(0)')
loc_eval(206)
unpack_hv()
stamp(25)
ppoll('buffer_load_dwordx4 {r}, v%d, %s, s%d offen sc1' % (aL16, srd(WS), sP3), [128, 132, 136, 140][:OPT['pd3']], 0, RD, (2, 3))
reduce_fin(1)
A(f'''v_cndmask_b32 v208, v{vT}, v204, s[70:71]
      v_cndmask_b32 v209, v{vT}, v205, s[70:71]
      v_cndmask_b32 v210, v204, v{vT}, s[70:71]
      v_cndmask_b32 v211, v205, v{vT}, s[70:71]
      s_mov_b64 exec, 0xff''')
loc_store(f'buffer_store_dwordx4 v[208:211], v{aL16}, {srd(WS)}, s{sP0} offen')
full_exec()
stampcnt(46)
stamp(26)
A(f'''s_cmp_eq_u32 s{sWV}, s{sX8}
      s_cbranch_scc1 L_final
      {END}''')
A.label('L_final')
unpack_hv()
sadd(sP3, (sFS, 13), H5)
A(f's_add_u32 s{sP2}, s{sP3}, 0x1000')
mpoll([(f'buffer_load_dwordx4 {vr(RD+4*k,4)}, v{aL16}, {srd(WS)}, s{sP3 if k<4 else sP2} offen offset:{(k&3)*1024} sc1', [RD + 4 * k + (3 if k & 1 else 0)]) for k in range(7)],
      ('-1', '-1'), 12, 100)
reduce_fin(7)
stamp(30)
A(f'''s_mov_b64 exec, 0xff
      buffer_store_dwordx2 v[204:205], v{aX}, {srd(OUT)}, s75 offen
      s_cmp_eq_u32 s{sFS}, 0
      s_cbranch_scc1 L_epoch
      {END}''')
A.label('L_epoch')
A(f'''s_mov_b64 exec, 1
      buffer_store_dword v{vT}, v{aL16}, {srd(WS)}, 0 offen sc1
      {END}''')

A.label('L_ffn')
A(f'''s_mul_i32 s{sFS}, s{sX8}, 7
      s_add_u32 s{sFS}, s{sFS}, s{sR}
      v_and_b32 v7, 1, v{vQ}
      v_lshlrev_b32 v7, 1, v7
      v_xor_b32 v7, v7, v{vB4}
      v_lshl_add_u32 v6, v7, 4, v6''')
sadd(sA, (sV4, 'mul', 128 * 3584), (sFS, 6))
sadd(sC, (sFS, 15), (sV4, 13))
A(f's_lshl_b32 s{sD}, s{sV4}, 13\ns_mul_i32 s{sP0}, s{sV4}, {8*PITCH}\ns_waitcnt vmcnt(0)')
stamp(24)
for n in range(8):
    A(f's_add_u32 m0, s{sD}, {L_G + 1024*n}')
    A(f'buffer_load_dwordx4 v6, {srd(WG)}, s{sA} offen{NTW} lds')
    A(f's_add_u32 m0, s{sD}, {L_U + 1024*n}')
    A(f'buffer_load_dwordx4 v6, {srd(WU)}, s{sA} offen{NTW} lds')
    if n < 7: A(f's_add_u32 s{sA}, s{sA}, {16*3584}')
for n in range(8):
    A(f's_add_u32 m0, s{sP0}, {L_D + PITCH*n}')
    A(f'buffer_load_dwordx4 v{aL16}, {srd(WD)}, s{sC} offen{NTW} lds')
    if n < 7: A(f's_add_u32 s{sC}, s{sC}, 1024')
stamp(12)
FF, DF, FA, G2, G1, FO, CS, HQ, A7 = 112, 176, 208, 224, 244, 248, 96, 16, 48
A(f'''v_lshl_add_u32 v6, v{vQ}, 2, v{vU}
      v_lshlrev_b32 v6, 6, v6
      v_lshl_add_u32 v6, v{vB4}, 3, v6
      s_lshl_b32 s{sA}, s{sV4}, 13
      v_add_u32 v6, s{sA}, v6
      v_and_b32 v7, 1, v{vQ}
      v_lshl_add_u32 v6, v7, 5, v6
      v_xor_b32 v7, 32, v6
      v_lshl_add_u32 v8, v{vQ}, 2, v{vU}
      v_mul_u32_u24 v8, {PITCH}, v8
      v_lshl_add_u32 v8, v{vB4}, 3, v8
      s_lshl_b32 s{sA}, s{sV4}, 8
      s_add_u32 s{sA}, s{sA}, {L_D}
      v_add_u32 v8, s{sA}, v8''')
for k in range(4): A(f'v_mov_b32 v{FO+k}, s{sONES}')
for s in range(4):
    A(f's_waitcnt vmcnt({20-4*s})')
    for u in range(4):
        for hf in range(2):
            A(f'ds_read_b64_tr_b16 {vr(FF+(u*4+s)*4+2*hf,2)}, v{6+(u&1)} offset:{(L_U if u>=2 else L_G) + s*2048 + hf*1024}')
    A('s_waitcnt lgkmcnt(0)')
    for u in range(4): mfma32(FA + 4 * u, FF + (u * 4 + s) * 4, FO, '0' if s == 0 else None)
def compact(dst):
    for u in range(4):
        if u: set_exec(0x000f000f << (4 * u))
        for r in range(4): A(f'v_mov_b32 v{dst+r}, v{FA+4*u+r}')
    full_exec()
compact(100)
A(f'''v_mov_b32 v13, v8
      v_add_u32 v8, {L_FX}, v{aL16}
      s_lshl_b32 s{sA}, s{sV4}, 10
      v_add_u32 v9, s{sA}, v8
      ds_write_b128 v9, v[100:103]
      s_waitcnt vmcnt(0) lgkmcnt(0)
      s_barrier''')
stamp(13)
for k in range(4): A(f'ds_read_b128 {vr(80+4*k,4)}, v8 offset:{1024*k}')
for t in range(8):
    for hf in range(2):
        A(f'ds_read_b64_tr_b16 {vr(DF+4*t+2*hf,2)}, v13 offset:{hf*16*PITCH + 32*t}')
A(f'''v_lshlrev_b32 v6, 7, v{vQ}
      v_lshl_add_u32 v6, v{vB4}, 4, v6
      v_lshrrev_b32 v7, 1, v{vU}
      v_lshl_add_u32 v7, v7, 2, v{vQ}
      v_lshlrev_b32 v7, 13, v7
      v_and_b32 v10, 7, v{vL}
      v_lshl_add_u32 v7, v10, 4, v7
      v_lshlrev_b32 v10, 5, v{vB4}
      v_add_u32 v10, {L_FX + 8192}, v10
      s_lshl_b32 s{sA}, s{sV4}, 2
      v_lshl_add_u32 v11, v{vQ}, 4, v10
      v_add_u32 v11, s{sA}, v11
      v_cmp_gt_u32 vcc, 2, v{vU}
      v_mov_b32 v12, 0xff800000
      v_cndmask_b32 v12, v12, 0, vcc''')
sadd(sP0, (sX8, 13), (sV4, 11), H4A)
sadd(sP1, (sV4, 17), (sFS, 7), H5)
A(f's_add_u32 s{sP2}, s{sP1}, 0x10000\ns_waitcnt lgkmcnt(0)')
for r in range(4):
    A(f'''v_add_f32 v{CS+r}, v{80+r}, v{84+r}
          v_add_f32 v{88+r}, v{88+r}, v{92+r}
          v_add_f32 v{CS+r}, v{CS+r}, v{88+r}''')
W70, W71 = 232, 238
for k in (0, 1, 4, 5): A(f'v_mov_b32 v{W70+k}, s{sT}\nv_mov_b32 v{W71+k}, s{sT}')
for s in range(4):
    for k in range(4): A(f'v_mov_b32 v{HQ+8*s+2+k}, s{sONES}')
stamp(19)
mpoll([(f'buffer_load_dwordx4 {vr(HQ+8*s,4)}, v6, {srd(WS)}, s{sP0} offen offset:{512*s} sc1\nbuffer_load_dwordx4 {vr(HQ+8*s+4,4)}, v6, {srd(WS)}, s{sP0} offen offset:{512*s+64} sc1',
        [HQ + 8 * s, HQ + 8 * s + 7]) for s in range(4)], ('0x000f000f', '0x000f000f'), 16, 104)
stampcnt(45)
stamp(20)
for s in range(4): mfma32(G2, HQ + 8 * s + 2, HQ + 8 * s + 2, '0' if s == 0 else None)
for s in range(4):
    for u in range(4): mfma32(FA + 4 * u, FF + (u * 4 + s) * 4, HQ + 8 * s + 2, '0' if s == 0 else None)
for b in range(1, 4): A(f's_mov_b64 exec, {1 << b}\nv_mov_b32 v{G2}, v{G2+b}')
A(f's_mov_b64 exec, 0x000f000f\nds_write_b32 v11, v{G2}')
full_exec()
for u in range(1, 4):
    for r in range(4): A(f'v_mov_b32_dpp v{FA+r}, v{FA+4*u+r} row_shr:{4*u} row_mask:0xf bank_mask:{1<<u:#x}')
A(f'''ds_write_b128 v9, {vr(FA,4)} offset:4096
      s_waitcnt lgkmcnt(0)
      s_barrier
      ds_read_b128 v[16:19], v10
      ds_read_b128 v[20:23], v10 offset:16''')
for k in range(4): A(f'ds_read_b128 {vr(80+4*k,4)}, v8 offset:{4096+1024*k}')
A(f'''s_waitcnt lgkmcnt(4)
      v_pk_add_f32 v[16:17], v[16:17], v[18:19]
      v_pk_add_f32 v[20:21], v[20:21], v[22:23]
      v_add_f32 v17, v16, v17
      v_add_f32 v16, v20, v21
      v_mul_f32 v16, {f32(-1.0/512)}, v16
      v_mov_b32 v18, {f32(1e-5)}
      v_fmac_f32 v18, {f32(1.0/512)}, v17
      v_fma_f32 v18, -v16, v16, v18
      v_rsq_f32 v18, v18
      s_waitcnt lgkmcnt(0)''')
for r in range(0, 4, 2):
    A(f'''v_pk_add_f32 {vr(80+r,2)}, {vr(80+r,2)}, {vr(84+r,2)}
          v_pk_add_f32 {vr(88+r,2)}, {vr(88+r,2)}, {vr(92+r,2)}
          v_pk_add_f32 {vr(80+r,2)}, {vr(80+r,2)}, {vr(88+r,2)}''')
for r in range(4): A(f'v_fmac_f32 v{80+r}, v16, v{CS+r}')
for r in range(4): A(f'v_mul_f32 v{80+r}, v18, v{80+r}')
for r in range(4): A(f'v_max_f32 v{80+r}, v12, v{80+r}')
for r in range(4): A(f'v_mul_f32_dpp v{84+r}, v{80+r}, v{80+r} row_ror:8 row_mask:0xf bank_mask:0xf')
A('''v_cvt_pk_bf16_f32 v88, v84, v85
     v_cvt_pk_bf16_f32 v89, v86, v87
     v_cvt_pk_bf16_f32 v92, v84, v85
     v_cvt_pk_bf16_f32 v93, v86, v87
     v_cvt_pk_bf16_f32 v94, v84, v85
     v_cvt_pk_bf16_f32 v95, v86, v87
     v_mov_b32_dpp v92, v88 row_ror:4 row_mask:0xf bank_mask:0xa
     v_mov_b32_dpp v93, v89 row_ror:4 row_mask:0xf bank_mask:0xa
     v_mov_b32_dpp v94, v88 row_ror:4 row_mask:0xf bank_mask:0x5
     v_mov_b32_dpp v95, v89 row_ror:4 row_mask:0xf bank_mask:0x5''')
order = [0, 4, 1, 5, 2, 6, 3, 7]
for t in order: mfma32(A7 + 4 * t, DF + 4 * t, 92, '0')
A(f's_bitcmp1_b32 s{sFS}, 3')
for u in range(4):
    if u: set_exec(0x000f000f << (4 * u))
    A(f'''v_cvt_pk_bf16_f32 v{W70+2}, v{A7+4*u}, v{A7+4*u+1}
          v_cvt_pk_bf16_f32 v{W70+3}, v{A7+4*u+2}, v{A7+4*u+3}
          v_cvt_pk_bf16_f32 v{W71+2}, v{A7+16+4*u}, v{A7+16+4*u+1}
          v_cvt_pk_bf16_f32 v{W71+3}, v{A7+16+4*u+2}, v{A7+16+4*u+3}''')
full_exec()
A(f'''s_cbranch_scc1 L_s7odd
      buffer_store_dwordx4 {vr(W70,4)}, v7, {srd(WS)}, s{sP1} offen sc1
      buffer_store_dwordx4 {vr(W71,4)}, v7, {srd(WS)}, s{sP2} offen sc1
      {END}''')
A.label('L_s7odd')
A(f'''buffer_store_dwordx4 {vr(W70+2,4)}, v7, {srd(WS)}, s{sP1} offen sc1
      buffer_store_dwordx4 {vr(W71+2,4)}, v7, {srd(WS)}, s{sP2} offen sc1
      {END}''')
A.label('L_stream')
KF0, QF, KF1, SA, vM = 16, 80, 144, 208, 12
sSA, sSC, sSN = 84, 85, 86
if OPT['rev']:
    sadd(sSA, (sPAIR, 17), (sV4, 15), (sG, 'mul', 31 * 1024))
    A(f's_cmp_eq_u32 s{sG}, 0\ns_cselect_b32 s{sSC}, 1, -1\ns_lshl_b32 s{sSC}, s{sSC}, 10')
else:
    sadd(sSA, (sPAIR, 17), (sV4, 15))
    A(f's_movk_i32 s{sSC}, 1024')
A(f'''s_mul_i32 m0, s{sV4}, {32*PITCH}
      s_mov_b32 s{sSN}, 0''')
def sloop(lab, lim, thr=0):
    A.label(lab)
    if thr: A(f's_waitcnt vmcnt({thr-1})')
    A(f'''buffer_load_dwordx4 v{aL16}, {srd(CKV)}, s{sSA} offen{NTC} lds
          s_add_u32 s{sSA}, s{sSA}, s{sSC}
          s_add_u32 m0, m0, {PITCH}
          s_add_u32 s{sSN}, s{sSN}, 1
          s_cmp_lt_u32 s{sSN}, {lim}
          s_cbranch_scc1 {lab}''')
A('s_barrier')
sloop('L_sl0', str(OPT['inf1']))
common_addr()
A(f'''v_mul_u32_u24 v8, {PITCH}, v{vI}
      v_add_u32 v{aMXr}, {L_MAX}, v8
      s_lshl_b32 s{sA}, s{sV4}, 2
      v_add_u32 v{aMXw}, s{sA}, v{aMXr}
      v_lshl_add_u32 v8, v{vQ}, 4, v8
      s_mul_i32 s{sA}, s{sV4}, {32*PITCH}
      v_add_u32 v{aKF}, s{sA}, v8
      v_add_u32 v{aQF}, {L_R}, v8
      s_lshl_b32 s{sA}, s{sV4}, 10
      v_add_u32 v{aPw}, s{sA}, v{aP}
      v_mov_b32 v9, -1
      v_mov_b32 v8, {L_PROG}''')
for k in range(4): A(f'v_mov_b32 v{ONES+k}, s{sONES}')
sadd(sHSST, (sG, 15), (sPAIR, 8), HS)
make_tag()
A(f'''s_cmp_lg_u32 s{sWV}, 3
      s_cbranch_scc1 L_noann
      v_mov_b32 v14, s{sXCC}
      s_lshr_b32 s{sC}, s2, 3''')
sadd(sA, (sX8, 8), (sC, 3), HX)
A(f'''s_mov_b64 exec, 1
      buffer_store_dwordx2 v[14:15], v{aL16}, {srd(WS)}, s{sA} offen sc1
      s_mov_b64 exec, -1''')
A.label('L_noann')
A(f'v_mov_b32 v14, s{sT}')
stamp(0)
sloop('L_sl01', '24', OPT['inf1'])
stamp(2)
lds_wait(L_FB, 4, 244)
stamp(3)
assert 24 < OPT['prog0'] <= 32
sloop('L_sl1', str(OPT['prog0']), OPT['inf2'])
A('ds_write_b32 v8, v9')
stamp(5)
if OPT['prog0'] < 32: sloop('L_sl2', '32', OPT['inf2'])
stamp(6)
A('s_waitcnt vmcnt(16)')
for s in range(16): A(f'ds_read_b128 {vr(KF0+4*s,4)}, v{aKF} offset:{64*s}')
A('s_waitcnt vmcnt(0)')
stamp(7)
for s in range(16): A(f'ds_read_b128 {vr(KF1+4*s,4)}, v{aKF} offset:{16*PITCH + 64*s}')
lds_wait(L_QFLAG, 4, 244, sleep=0)
stamp(8)
for s in range(16): A(f'ds_read_b128 {vr(QF+4*s,4)}, v{aQF} offset:{64*s}')
for s in range(16):
    A(f's_waitcnt lgkmcnt({15-s})')
    mfma32(SA, KF0 + 4 * s, QF + 4 * s, '0' if s == 0 else None)
    mfma32(SA + 4, KF1 + 4 * s, QF + 4 * s, '0' if s == 0 else None)
ow_tags()
A(f'v_max3_f32 v{vM}, v{SA}, v{SA+1}, v{SA+2}\nv_max_f32 v{vM}, v{vM}, v{SA+3}')
A(f'v_max3_f32 v{vM}, v{vM}, v{SA+4}, v{SA+5}\nv_max3_f32 v{vM}, v{vM}, v{SA+6}, v{SA+7}')
swap_red(vM, 13, 'v_max_f32', 16)
swap_red(vM, 13, 'v_max_f32', 32)
stamp(23)
A(f'''ds_write_b32 v{aMXw}, v{vM}
      s_waitcnt lgkmcnt(0)
      s_barrier
      ds_read_b128 v[244:247], v{aMXr}
      s_waitcnt lgkmcnt(0)
      v_max3_f32 v{vM}, v244, v245, v246
      v_max_f32 v{vM}, v{vM}, v247''')
for k in range(8): A(f'v_sub_f32 v{SA+k}, v{SA+k}, v{vM}')
for k in range(8): A(f'v_exp_f32 v{SA+k}, v{SA+k}')
for k in range(4): A(f'v_cvt_pk_bf16_f32 v{244+k}, v{SA+2*k}, v{SA+2*k+1}')
A(f'ds_write_b128 v{aPw}, v[244:247]\ns_waitcnt lgkmcnt(0)\ns_barrier')
stamp(10)
p_reads()
v_reads(0)
A(f's_cmp_lg_u32 s{sWV}, 0\ns_cbranch_scc1 L_nol\ns_waitcnt lgkmcnt(8)')
for s in range(4): mfma32(LA, ONES, PF + 4 * s, '0' if s == 0 else None)
A.label('L_nol')
for s in range(4):
    if s < 3:
        if s == 0: A('s_waitcnt lgkmcnt(4)')
        v_reads(s + 1)
        A('s_waitcnt lgkmcnt(8)')
    else:
        A('s_waitcnt lgkmcnt(0)')
    for ct in range(4): mfma32(PA + 4 * ct, VF + (s * 4 + ct) * 4, PF + 4 * s, '0' if s == 0 else None)
    if s == 0 and not OPT['statlate']:
        A(f'''s_cbranch_scc1 L_nolse
              v_mov_b32 v13, v{LA}
              s_mov_b64 exec, 0xffff
              buffer_store_dwordx4 v[12:15], v{aL16}, {srd(WS)}, s{sHSST} offen sc1
              s_mov_b64 exec, -1''')
        A.label('L_nolse')
if OPT['statlate'] == 3:
    A(f'''s_cbranch_scc1 L_pvout
          v_mov_b32 v13, v{LA}
          s_mov_b64 exec, 0xffff
          buffer_store_dwordx4 v[12:15], v{aL16}, {srd(WS)}, s{sHSST} offen sc1
          s_mov_b64 exec, -1''')
A('s_branch L_pvout')

A.label('L_exit')
A('s_endpgm')

ref = open('cdna_kernels/%s.s.ref' % NAME).read().split('\n')
head = []
for ln in ref:
    if ln.startswith('; @launch'):
        head.append('; @launch grid=(256,1,1) block=(512,1,1) lds=%d' % LDS_BYTES); break
    head.append(ln)
out = '\n'.join(head) + f"""
.amdgcn_target "amdgcn-amd-amdhsa--gfx950"
.text
.globl {NAME}_kernel
.p2align 8
.type {NAME}_kernel,@function
{NAME}_kernel:
""" + A.text() + f""".section .rodata,"a"
.p2align 6
.amdhsa_kernel {NAME}_kernel
  .amdhsa_next_free_vgpr 256
  .amdhsa_next_free_sgpr 102
  .amdhsa_accum_offset 256
  .amdhsa_group_segment_fixed_size 0
  .amdhsa_kernarg_size 104
  .amdhsa_user_sgpr_count 2
  .amdhsa_user_sgpr_kernarg_segment_ptr 1
  .amdhsa_system_sgpr_workgroup_id_x 1
.end_amdhsa_kernel
"""
out = out.replace('CODE_BYTES', 'L_exit-L_pc')
open(sys.argv[1], 'w').write(out)
```

```python
import sys, math, struct
from asmlib import Asm, vr, sr

NAME = 'sequential_preLN__compressed_kv_cla__glu_gated_reglu__decode'
OPT = dict(late=1, statlate=3, helper=0, trig=8, pd=1, pd3=1, wod=0, hspre=1, ackbar=1, prog1=20, ffnpf=0, qrot=1, cpf=1, ffnwait=0, fix=0, fixat=63, rev=1, wukd=0, inf1=0, inf2=0, pf_nt=0, h3pre=1, kl=5, debug=0, prog0=26, ckv_nt=0, w_nt=0, limit=20000, ka=8, qsleep=4)
for a in sys.argv[2:]:
    k, v = a.split('='); OPT[k] = int(v)
DEBUG = OPT['debug']

H0A, H0B, H1, HS = 0x40000, 0x80000, 0xC0000, 0x100000
H4A, HX = 0x120000, 0x130000
HCA = 0x140000
H3, H5, H2, DBG = 0x110000, 0x200000, 0x400000, 0xA00000
WS_BYTES = 0x1000000
PITCH = 1056
L_P = 128 * PITCH
L_R = L_P + 4096
LDS_BYTES = 163840
L_WQ, L_WUK = 0, 36864
L_QO = L_R + 21504
L_XC = L_P
L_XQ = L_R + 17408
def pad(row): return row * PITCH + 1024
L_MAX, L_QFLAG, L_PROG, L_FA, L_FB = pad(72), pad(96), pad(96) + 16, pad(97), pad(97) + 16
WP = 288
L_UV, L_WO, L_CS, L_OL, L_RED, L_WT = 0, 40960, 73728, 122880, 126976, 135168
L_G, L_U, L_D, L_FX = 0, 32768, 65536, 102400
sWV, sT, sE = 3, 4, 5
X, CKV, WQ, WUK, WUV, WO, WG, WU, WD, OUT, WS = 8, 12, 16, 20, 24, 28, 32, 36, 40, 44, 48
sH, sJ4, sB, sX8, sG, sPAIR, sV4, sR = 52, 53, 54, 55, 56, 57, 58, 59
sCNT, sA, sBt, sC, sD = 60, 61, 62, 63, 64
sP0, sP1, sP2, sP3 = 65, 66, 67, 68
sH2ST, sHSST, sFS = 72, 73, 74
sONES = 82
sLOC, sXCC = 88, 89
sST = 90
def srd(b): return sr(b, 4)
vL, vQ, vI, vB4, vU, vT = 1, 2, 3, 4, 5, 15
aL16, aVF0, aVF1, aP, aSR, aST, aSW = 228, 229, 230, 231, 233, 234, 252
aKF, aQF, aMXr, aMXw, aPw, aHS = 237, 238, 239, 240, 241, 242
vSTAMP = 255
NTC = ' nt' if OPT['ckv_nt'] else ''
NTW = ' nt' if OPT['w_nt'] else ''
def f32(x): return '0x%08x' % struct.unpack('<I', struct.pack('<f', x))[0]
A = Asm()

def stamp(i):
    if OPT['fix'] and i == OPT['fixat']:
        lab = A.newlab('Lfix')
        A.label(lab)
        A(f'''s_memrealtime s[{sST}:{sST+1}]
              s_waitcnt lgkmcnt(0)
              s_sub_u32 s{sST}, s{sST}, s{sST+2}
              s_cmp_lt_u32 s{sST}, {OPT['fix']}
              s_cbranch_scc1 {lab}''')
    if DEBUG:
        A(f'''s_memrealtime s[{sST}:{sST+1}]
              s_waitcnt lgkmcnt(0)
              v_writelane_b32 v{vSTAMP}, s{sST}, {i}''')
def stampcnt(i):
    if DEBUG: A(f's_add_u32 s{sST}, s{sCNT}, 1\nv_writelane_b32 v{vSTAMP}, s{sST}, {i}')

def endwave():
    if not DEBUG: stamp(63)
    if DEBUG:
        stamp(63)
        A(f's_memtime s[{sST}:{sST+1}]\ns_waitcnt lgkmcnt(0)\ns_sub_u32 s{sST}, s{sST}, s{sST+4}\nv_writelane_b32 v{vSTAMP}, s{sST}, 47')
        A(f'''s_mov_b64 exec, -1
              s_lshl_b32 s{sA}, s2, 3
              s_add_u32 s{sA}, s{sA}, s{sWV}
              s_lshl_b32 s{sA}, s{sA}, 8
              s_add_u32 s{sA}, s{sA}, {DBG}
              v_lshlrev_b32 v6, 2, v{vL}
              buffer_store_dword v{vSTAMP}, v6, {srd(WS)}, s{sA} offen''')
    if DEBUG == 2:
        ids = [0, 3, 5, 6, 8, 9, 10, 11, 13, 14, 15, 16, 18, 19, 20, 63]
        A(f'''s_lshl_b32 s{sA}, s2, 3
              s_add_u32 s{sA}, s{sA}, s{sWV}
              s_cmp_lg_u32 s{sA}, 0
              s_cbranch_scc1 L_nodbg
              s_load_dwordx2 s[96:97], s[0:1], 88
              s_mov_b32 s98, 256
              s_mov_b32 s99, 0x00020000
              v_mov_b32 v7, 0''')
        for k, i in enumerate(ids):
            A(f'v_readlane_b32 s{sA}, v{vSTAMP}, {i}\ns_sub_u32 s{sA}, s{sA}, s{sST+2}\nv_writelane_b32 v7, s{sA}, {k}')
        A(f'''s_waitcnt lgkmcnt(0)
              buffer_store_dword v7, v6, s[96:99], 0 offen''')
        A.label('L_nodbg')
    A('s_endpgm')

def set_exec(mask32): A(f's_mov_b32 exec_lo, 0x{mask32:08x}\ns_mov_b32 exec_hi, 0x{mask32:08x}')
def full_exec(): A('s_mov_b64 exec, -1')

def check_tags(tags, tmp):
    acc, t1, t2 = tmp, tmp + 1, tmp + 2
    tags = list(tags)
    if len(tags) == 1:
        A(f'v_cmp_ne_u32 vcc, v{tags[0]}, v{vT}'); return
    if len(tags) % 2: tags.append(tags[-1])
    prs = [(tags[i], tags[i + 1]) for i in range(0, len(tags), 2)]
    A(f'v_bitop3_b32 v{acc}, v{prs[0][0]}, v{prs[0][1]}, v{vT} bitop3:0x7e')
    rest = prs[1:]
    while rest:
        if len(rest) >= 2:
            A(f'v_bitop3_b32 v{t1}, v{rest[0][0]}, v{rest[0][1]}, v{vT} bitop3:0x7e')
            A(f'v_bitop3_b32 v{t2}, v{rest[1][0]}, v{rest[1][1]}, v{vT} bitop3:0x7e')
            A(f'v_or3_b32 v{acc}, v{acc}, v{t1}, v{t2}')
            rest = rest[2:]
        else:
            A(f'v_bitop3_b32 v{t1}, v{rest[0][0]}, v{rest[0][1]}, v{vT} bitop3:0x7e')
            A(f'v_or_b32 v{acc}, v{acc}, v{t1}')
            rest = rest[1:]
    A(f'v_cmp_ne_u32 vcc, 0, v{acc}')

def poll(loads, tags, tmp, onfail='', between=None, late=None, pre_late='', late_ok=None):
    L, D = A.newlab('Lpoll'), A.newlab('Lpok')
    A(f's_mov_b32 s{sCNT}, 0')
    A(loads)
    if between: between()
    A.label(L)
    A('s_waitcnt vmcnt(0)')
    check_tags(tags, tmp)
    A(f'''s_cmp_eq_u64 vcc, 0
          s_cbranch_scc1 {D}
          s_add_u32 s{sCNT}, s{sCNT}, 1''')
    if late:
        l2 = A.newlab('Lnl')
        A(f's_cmp_lg_u32 s{sCNT}, {OPT["kl"]}\ns_cbranch_scc1 {l2}')
        late()
        A.label(l2)
    A(onfail)
    A(loads)
    A(f'''s_cmp_lt_u32 s{sCNT}, {OPT['limit']}
          s_cbranch_scc1 {L}
          s_waitcnt vmcnt(0)''')
    A.label(D)
    A(pre_late)
    if late_ok: late_ok()
    elif late: late()

def mpoll(groups, init, MK, tmp, between=None):
    L, D = A.newlab('Lmp'), A.newlab('Lmok')
    A(f's_mov_b32 s{sCNT}, 0\ns_mov_b32 exec_lo, {init[0]}\ns_mov_b32 exec_hi, {init[1]}')
    for ld, tg in groups: A(ld)
    if between:
        full_exec(); between(); A(f's_mov_b32 exec_lo, {init[0]}\ns_mov_b32 exec_hi, {init[1]}')
    A.label(L)
    A('s_waitcnt vmcnt(0)')
    for k, (ld, tg) in enumerate(groups):
        if len(tg) == 2: A(f'v_bitop3_b32 v{tmp+k}, v{tg[0]}, v{tg[1]}, v{vT} bitop3:0x7e')
    for k, (ld, tg) in enumerate(groups):
        if len(tg) == 2: A(f'v_cmp_ne_u32 s[{MK+2*k}:{MK+2*k+1}], 0, v{tmp+k}')
        else: A(f'v_cmp_ne_u32 s[{MK+2*k}:{MK+2*k+1}], v{tg[0]}, v{vT}')
    n = len(groups)
    A(f's_or_b64 s[6:7], s[{MK}:{MK+1}], s[{MK+2*(n>1)}:{MK+2*(n>1)+1}]')
    for k in range(2, n): A(f's_or_b64 s[6:7], s[6:7], s[{MK+2*k}:{MK+2*k+1}]')
    A(f's_cbranch_scc0 {D}')
    for k, (ld, tg) in enumerate(groups):
        sk = A.newlab('Lsk')
        A(f's_mov_b64 exec, s[{MK+2*k}:{MK+2*k+1}]\ns_cbranch_execz {sk}')
        A(ld)
        A.label(sk)
    A(f'''s_mov_b32 exec_lo, {init[0]}
          s_mov_b32 exec_hi, {init[1]}
          s_add_u32 s{sCNT}, s{sCNT}, 1
          s_cmp_lt_u32 s{sCNT}, {OPT['limit']}
          s_cbranch_scc1 {L}
          s_waitcnt vmcnt(0)''')
    A.label(D)
    full_exec()

def ppoll(load, sets, tagoff, dst, ncopy, exec_hi='-1'):
    L, D = A.newlab('Lpp'), A.newlab('Lppok')
    nd = len(sets)
    A(f's_mov_b32 s{sCNT}, 0\ns_mov_b32 exec_hi, {exec_hi}')
    for k, r in enumerate(sets):
        A(load.format(r=vr(r, 4)))
        if k < nd - 1: A('s_sleep 2')
    A.label(L)
    oks = [A.newlab('Lppk') for _ in sets]
    for k, r in enumerate(sets):
        A(f'''s_waitcnt vmcnt({nd-1})
              v_cmp_ne_u32 vcc, v{r+tagoff}, v{vT}
              s_cmp_eq_u64 vcc, 0
              s_cbranch_scc1 {oks[k] if r != dst else D}''')
        A(load.format(r=vr(r, 4)))
    A(f'''s_add_u32 s{sCNT}, s{sCNT}, 1
          s_cmp_lt_u32 s{sCNT}, {OPT['limit']}
          s_cbranch_scc1 {L}
          s_waitcnt vmcnt(0)
          s_branch {D}''')
    for k, r in enumerate(sets):
        if r == dst: continue
        A.label(oks[k])
        for c in ncopy: A(f'v_mov_b32 v{dst+c}, v{r+c}')
        if k < nd - 1: A(f's_branch {D}')
    A.label(D)
    A('s_mov_b32 exec_hi, -1')

def loc_issue(reg):
    sadd(sA, (sX8, 8), HX)
    A(f'''v_and_b32 v6, 31, v{vL}
          v_lshlrev_b32 v6, 3, v6
          buffer_load_dwordx2 {vr(reg,2)}, v6, {srd(WS)}, s{sA} offen sc1''')
def loc_eval(reg):
    A(f'''v_cmp_ne_u32 vcc, s{sXCC}, v{reg}
          v_cmp_ne_u32 s[6:7], v{reg+1}, v{vT}
          s_or_b64 vcc, vcc, s[6:7]
          s_cselect_b32 s{sLOC}, 0, 1''')
def loc_store(text):
    a, b = A.newlab('Lls'), A.newlab('Lle')
    A(f's_cmp_eq_u32 s{sLOC}, 0\ns_cbranch_scc1 {a}\n{text}\ns_branch {b}')
    A.label(a)
    A(text + ' sc1')
    A.label(b)

def toggle(regs, x):
    lab = A.newlab('Lnt')
    return f's_cmp_lt_u32 s{sCNT}, {OPT["ka"]}\ns_cbranch_scc1 {lab}\n' + ''.join(f's_xor_b32 s{r}, s{r}, {x}\n' for r in regs) + f'{lab}:'

def lds_wait(addr, n, tmp, sleep=1, cnt=None):
    sCNT = cnt or globals()['sCNT']
    L, D = A.newlab('Llw'), A.newlab('Llok')
    A(f's_mov_b32 s{sCNT}, 0\nv_mov_b32 v{tmp+7}, {addr}')
    A.label(L)
    if n == 1:
        A(f'ds_read_b32 v{tmp}, v{tmp+7}\ns_waitcnt lgkmcnt(0)')
    else:
        A(f'ds_read_b128 {vr(tmp,4)}, v{tmp+7}\ns_waitcnt lgkmcnt(0)')
        A(f'v_bitop3_b32 v{tmp}, v{tmp}, v{tmp+1}, v{tmp+2} bitop3:0x80\nv_and_b32 v{tmp}, v{tmp}, v{tmp+3}')
    A(f'''v_cmp_ne_u32 vcc, -1, v{tmp}
          s_cmp_eq_u64 vcc, 0
          s_cbranch_scc1 {D}
          {'s_sleep %d' % sleep if sleep else ''}
          s_add_u32 s{sCNT}, s{sCNT}, 1
          s_cmp_lt_u32 s{sCNT}, {OPT['limit']*8}
          s_cbranch_scc1 {L}''')
    A.label(D)

def make_tag():
    A(f'''s_waitcnt lgkmcnt(0)
          s_add_u32 s{sT}, s{sE}, 0x9e3779b9
          v_mov_b32 v{vT}, s{sT}''')

def swap_red(a, t, op, which):
    A(f'v_mov_b32 v{t}, v{a}\nv_permlane{which}_swap_b32 v{a}, v{t}\n{op} v{a}, v{a}, v{t}')
def row_red(a, op):
    for n in (1, 2, 4, 8):
        A(f'{op}_dpp v{a}, v{a}, v{a} row_ror:{n} row_mask:0xf bank_mask:0xf')

def mfma32(d, a, b, c=None):
    A(f'v_mfma_f32_16x16x32_bf16 {vr(d,4)}, {vr(a,4)}, {vr(b,4)}, {vr(d,4) if c is None else c}')

def sadd(dst, *terms):
    const = sum(t for t in terms if isinstance(t, int))
    first = True
    for t in terms:
        if isinstance(t, int): continue
        tgt = dst if first else sBt
        if len(t) == 3: A(f's_mul_i32 s{tgt}, s{t[0]}, {t[2]}')
        elif t[1] == 0:
            if first: A(f's_mov_b32 s{dst}, s{t[0]}')
            else: A(f's_add_u32 s{dst}, s{dst}, s{t[0]}'); continue
        else: A(f's_lshl_b32 s{tgt}, s{t[0]}, {t[1]}')
        if not first: A(f's_add_u32 s{dst}, s{dst}, s{sBt}')
        first = False
    if const: A(f's_add_u32 s{dst}, s{dst}, {const}')

if DEBUG or OPT['fix']: A(f's_memrealtime s[{sST+2}:{sST+3}]\ns_memtime s[{sST+4}:{sST+5}]')
A(f'''s_cmp_ge_u32 s2, 256
      s_cbranch_scc1 L_exit
      s_load_dwordx2 s[{CKV}:{CKV+1}], s[0:1], 8
      s_load_dwordx2 s[{X}:{X+1}], s[0:1], 0
      s_load_dwordx2 s[{WQ}:{WQ+1}], s[0:1], 16
      s_load_dwordx2 s[{WUK}:{WUK+1}], s[0:1], 24
      s_load_dwordx2 s[{WS}:{WS+1}], s[0:1], 96
      v_lshrrev_b32 v6, 6, v0
      v_and_b32 v{vL}, 63, v0
      v_readfirstlane_b32 s{sWV}, v6
      v_lshrrev_b32 v{vQ}, 4, v{vL}
      v_and_b32 v{vI}, 15, v{vL}
      v_and_b32 v{vB4}, 3, v{vL}
      v_lshrrev_b32 v{vU}, 2, v{vI}
      v_lshlrev_b32 v{aL16}, 4, v{vL}
      v_and_b32 v8, 7, v{vL}
      v_bfe_u32 v9, v{vL}, 3, 1
      v_mul_u32_u24 v9, {PITCH}, v9
      v_lshl_add_u32 v8, v8, 2, v9
      v_add_u32 v8, {L_QFLAG}, v8
      v_mov_b32 v9, 0
      ds_write_b32 v8, v9''')
if OPT['cpf']:
    A(f'''s_getpc_b64 s[6:7]
          L_pc:
          s_bfe_u32 s{sA}, s2, 0x10003
          s_lshl_b32 s{sA}, s{sA}, 13
          v_lshl_add_u32 v8, v{vL}, 7, s{sA}
          s_cmp_lg_u32 s{sWV}, 3
          s_cbranch_scc1 L_nocpf
          s_cmp_ge_u32 s2, 32
          s_cbranch_scc1 L_nocpf
          v_cmp_gt_u32 vcc, CODE_BYTES, v8
          s_and_b64 exec, exec, vcc
          s_cbranch_execz L_nocpf2
          global_load_dword v201, v8, s[6:7]''')
    A.label('L_nocpf2')
    A('s_mov_b64 exec, -1')
    A.label('L_nocpf')
for b, n in ((X, 4096), (CKV, 1 << 24), (WQ, 1 << 22), (WUK, 1 << 22), (WUV, 1 << 22), (WO, 1 << 22), (WG, 1835008),
             (WU, 1835008), (WD, 1835008), (OUT, 4096), (WS, WS_BYTES)):
    A(f's_mov_b32 s{b+2}, {n}\ns_mov_b32 s{b+3}, 0x00020000')
A(f'''s_and_b32 s{sX8}, s2, 7
      s_bfe_u32 s{sR}, s2, 0x40003
      s_and_b32 s{sC}, s{sR}, 3
      s_lshl2_add_u32 s{sH}, s{sX8}, s{sC}
      s_lshr_b32 s{sJ4}, s{sR}, 2
      s_lshl4_add_u32 s{sPAIR}, s{sX8}, s{sR}
      s_lshr_b32 s{sB}, s{sPAIR}, 5
      s_lshr_b32 s{sG}, s2, 7
      s_and_b32 s{sV4}, s{sWV}, 3
      s_mov_b32 s{sONES}, 0x3f803f80
      s_getreg_b32 s{sXCC}, hwreg(HW_REG_XCC_ID, 0, 4)''')
if DEBUG: A(f'v_mov_b32 v{vSTAMP}, 0\ns_waitcnt lgkmcnt(0)\nv_writelane_b32 v{vSTAMP}, s{sST+2}, 62')
A(f'''s_waitcnt lgkmcnt(0)
      s_load_dword s{sE}, s[{WS}:{WS+1}], 0
      s_load_dwordx2 s[{WUV}:{WUV+1}], s[0:1], 32
      s_load_dwordx2 s[{WO}:{WO+1}], s[0:1], 40
      s_load_dwordx2 s[{WG}:{WG+1}], s[0:1], 56
      s_load_dwordx2 s[{WU}:{WU+1}], s[0:1], 64
      s_load_dwordx2 s[{WD}:{WD+1}], s[0:1], 72
      s_load_dwordx2 s[{OUT}:{OUT+1}], s[0:1], 80
      s_cmp_eq_u32 s{sG}, 0
      s_cbranch_scc1 L_g0front''')

XS, XF, TF, ACC, G1_, UF, XQ, XB = 16, 32, 80, 112, 120, 96, 128, 136
A(f'''s_cmp_lg_u32 s{sWV}, 0
      s_cbranch_scc1 L_nox
      v_lshlrev_b32 v6, 10, v{vQ}
      v_lshl_add_u32 v6, v{vI}, 4, v6
      s_lshl_b32 s{sA}, s{sJ4}, 8''')
for k in range(4):
    A(f'buffer_load_dwordx4 {vr(XS+4*k,4)}, v6, {srd(X)}, s{sA} offen')
    if k < 3: A(f's_add_u32 s{sA}, s{sA}, 256\ns_and_b32 s{sA}, s{sA}, 1023')
A.label('L_nox')
A(f'''v_lshlrev_b32 v7, 1, v{vQ}
      v_xor_b32 v7, v7, v{vI}
      v_lshlrev_b32 v7, 4, v7
      v_lshl_add_u32 v7, v{vQ}, 13, v7''')
sadd(sD, (sJ4, 20), (sWV, 17), (sH, 8))
A(f's_mul_i32 s{sC}, s{sWV}, {4*1152}\ns_mov_b32 s{sA}, s{sD}')
for n in range(4):
    A(f's_add_u32 m0, s{sC}, {L_WQ + n*1152}')
    A(f'buffer_load_dwordx4 v7, {srd(WQ)}, s{sA} offen{NTW} lds')
    if n < 3: A(f's_add_u32 s{sA}, s{sA}, 0x8000')
stamp(0)
A(f'''v_mul_u32_u24 v9, 1152, v{vQ}
      v_lshl_add_u32 v9, v{vU}, 8, v9
      v_lshl_add_u32 v9, v{vB4}, 3, v9
      v_xor_b32 v8, s{sWV}, v{vU}
      v_lshl_add_u32 v9, v8, 5, v9
      v_mul_u32_u24 v14, 272, v{vB4}
      v_lshl_add_u32 v14, v{vQ}, 3, v14
      v_add_u32 v14, {L_XC}, v14
      v_lshlrev_b32 v11, 8, v{vQ}
      v_lshl_add_u32 v11, v{vB4}, 4, v11
      s_mul_i32 s{sC}, s{sWV}, 4352''')
sadd(sP0, (sH, 13), (sWV, 10), H0A)
sadd(sP1, (sJ4, 6), (sP0, 0))
A(f'''s_xor_b32 s{sP3}, s{sP1}, {H0A ^ H0B}
      v_mul_u32_u24 v8, 1088, v{vU}
      v_lshl_add_u32 v8, v{vB4}, 8, v8
      v_and_b32 v10, 1, v{vQ}
      v_lshl_add_u32 v8, v10, 3, v8
      v_add_u32 v8, s{sC}, v8
      v_lshrrev_b32 v10, 1, v{vQ}
      v_xor_b32 v10, v10, v{vB4}
      v_xor_b32 v124, 2, v10
      v_lshl_add_u32 v10, v10, 4, v8
      v_lshl_add_u32 v124, v124, 4, v8
      v_add_u32 v125, {L_XQ}, v{aL16}
      s_lshr_b32 s{sA}, s{sWV}, 1
      s_lshl_b32 s{sA}, s{sA}, 10
      s_and_b32 s{sBt}, s{sWV}, 1
      s_lshl_b32 s87, s{sBt}, 3
      s_add_u32 s{sA}, s{sA}, s87
      v_add_u32 v126, s{sA}, v125
      v_lshlrev_b32 v127, 4, v{vI}
      v_lshl_add_u32 v127, v{vQ}, 15, v127
      s_lshl_b32 s{sA}, s{sWV}, 5
      s_add_u32 s{sA}, s{sA}, {L_QO}
      v_lshl_add_u32 v152, v{vB4}, 8, s{sA}
      v_lshl_add_u32 v152, v{vQ}, 3, v152
      v_add_u32 v153, {L_QO}, v{aL16}
      v_xor_b32 v7, v{vQ}, v{vI}
      v_lshlrev_b32 v7, 4, v7
      v_lshl_add_u32 v7, v{vQ}, 13, v7''')
sadd(sP2, (sH, 10), (sJ4, 8), H1)
def wuk_dma():
    for n in range(4):
        A(f's_add_u32 m0, s{sC}, {L_WUK + n*1088}')
        A(f'buffer_load_dwordx4 v7, {srd(WUK)}, s{sD} offen{NTW} lds')
        if n < 3: A(f's_add_u32 s{sD}, s{sD}, 0x8000')
make_tag()
A(f'''v_mov_b32 v{G1_+2}, s{sT}
      v_mov_b32 v{G1_+3}, s{sT}
      v_lshl_add_u32 v8, v{vQ}, 1, s87
      v_lshrrev_b32 v154, v8, v{vT}
      v_lshrrev_b32 v155, 1, v154
      s_mov_b32 s86, 0x07060302
      s_mov_b32 s83, 0x00010001''')
A(f's_cmp_lg_u32 s{sWV}, 0\ns_cbranch_scc1 L_noln\ns_waitcnt vmcnt(4)\nv_mov_b32 v12, 0')
for k in range(16): A(f'v_dot2c_f32_bf16 v12, s{sONES}, v{XS+k}')
A(f'v_mul_u32_u24 v6, 272, v{vQ}\nv_lshl_add_u32 v6, v{vI}, 4, v6\nv_add_u32 v6, {L_XC}, v6')
row_red(12, 'v_add_f32')
A(f'v_mul_f32 v12, {f32(-1.0/512)}, v12\nv_mov_b32 v13, v12\nv_mov_b32 v44, 0\nv_mov_b32 v45, 0')
for k in range(16):
    t = 48 + 2 * k
    A(f'''v_lshlrev_b32 v{t}, 16, v{XS+k}
          v_and_b32 v{t+1}, 0xffff0000, v{XS+k}
          v_pk_add_f32 {vr(t,2)}, {vr(t,2)}, v[12:13]''')
    if k < 4: A(f'v_cvt_pk_bf16_f32 v{40+k}, v{t}, v{t+1}')
    if k == 3: A('ds_write_b128 v6, v[40:43]')
    A(f'v_pk_fma_f32 v[44:45], {vr(t,2)}, {vr(t,2)}, v[44:45]')
A('v_add_f32 v12, v44, v45')
row_red(12, 'v_add_f32')
QFIX = 1.0
A(f'''v_mov_b32 v13, {f32(1e-5)}
      v_fmac_f32 v13, {f32(1.0/512)}, v12
      v_rsq_f32 v12, v13
      v_lshlrev_b32 v6, 2, v{vQ}
      v_add_u32 v6, {L_XC+2048}, v6
      v_mul_f32 v12, {f32(128**-0.5*math.log2(math.e)*QFIX)}, v12
      ds_write_b32 v6, v12''')
stamp(21)
A.label('L_noln')
wuk_dma()
A(f'''v_lshlrev_b32 v6, 2, v{vB4}
      v_add_u32 v6, {L_XC+2048}, v6
      s_waitcnt vmcnt(4) lgkmcnt(0)''')
stamp(1)
A('s_barrier')
for s in range(4):
    for hf in range(2):
        A(f'ds_read_b64 {vr(XF+4*s+2*hf,2)}, v14 offset:{64*s + 32*hf}')
        A(f'ds_read_b64_tr_b16 {vr(TF+4*s+2*hf,2)}, v9 offset:{L_WQ + (8*s+4*hf)*1152}')
for s in range(4):
    A(f's_waitcnt lgkmcnt({12-4*s})')
    mfma32(ACC, TF + 4 * s, XF + 4 * s, '0' if s == 0 else None)
A('ds_read_b32 v12, v6')
set_exec(0x000f000f)
A(f'''v_cvt_pk_bf16_f32 v{G1_}, v{ACC}, v{ACC+1}
      v_cvt_pk_bf16_f32 v{G1_+1}, v{ACC+2}, v{ACC+3}
      buffer_store_dwordx4 {vr(G1_,4)}, v11, {srd(WS)}, s{sP1} offen''')
full_exec()
stamp(2)
A('s_waitcnt vmcnt(1)')
for s in range(4):
    A(f'ds_read_b64 {vr(UF+4*s,2)}, v10 offset:{L_WUK + s*64}')
    A(f'ds_read_b64 {vr(UF+4*s+2,2)}, v124 offset:{L_WUK + s*64}')
def fb0():
    set_exec(0x000f000f)
    A(f'buffer_store_dwordx4 {vr(G1_,4)}, v11, {srd(WS)}, s{sP3} offen sc1')
    full_exec()
poll(f'buffer_load_dwordx4 {vr(XQ,4)}, v{aL16}, {srd(WS)}, s{sP0} offen sc1',
     [XQ + 3], 44, onfail=toggle([sP0], H0A ^ H0B), late=fb0, pre_late=f'ds_write_b64 v126, {vr(XQ,2)}')
stampcnt(40)
stamp(3)
A('s_waitcnt lgkmcnt(0)\ns_barrier')
for s in range(4): A(f'ds_read_b128 {vr(XB+4*s,4)}, v125 offset:{1024*s}')
for s in range(4):
    A(f's_waitcnt lgkmcnt({3-s})')
    mfma32(ACC, UF + 4 * s, XB + 4 * s, '0' if s == 0 else None)
for r in range(4): A(f'v_add_f32_dpp v{ACC+r}, v{ACC+r}, v{ACC+r} row_ror:4 row_mask:0xf bank_mask:0xf')
for r in range(4): A(f'v_add_f32_dpp v{ACC+r}, v{ACC+r}, v{ACC+r} row_ror:8 row_mask:0xf bank_mask:0xf')
for r in range(4): A(f'v_mul_f32 v{ACC+r}, v12, v{ACC+r}')
for r in range(4): A(f'v_add_u32 v{ACC+r}, 0x10000, v{ACC+r}')
A(f'''v_perm_b32 v116, v{ACC+1}, v{ACC}, s86
      v_perm_b32 v117, v{ACC+3}, v{ACC+2}, s86
      v_bfi_b32 v116, s83, v154, v116
      v_bfi_b32 v117, s83, v155, v117
      ds_write_b64 v152, v[116:117]
      s_cmp_lt_u32 s{sWV}, 4
      s_waitcnt lgkmcnt(0)
      s_barrier
      s_cbranch_scc1 L_stream
      s_cmp_lg_u32 s{sWV}, 4
      s_cbranch_scc1 L_qgather
      ds_read_b128 v[116:119], v153
      s_waitcnt lgkmcnt(0)
      buffer_store_dwordx4 v[116:119], v127, {srd(WS)}, s{sP2} offen sc1''')
stamp(4)
A.label('L_qgather')

VF, PF, PA, OW, LA, ONES = 16, 80, 96, 112, 216, 220
RB = PF
def common_addr():
    A(f'''v_lshl_add_u32 v{aVF0}, v{vQ}, 2, v{vU}
          v_mul_u32_u24 v{aVF0}, {PITCH}, v{aVF0}
          v_lshl_add_u32 v{aVF0}, v{vB4}, 3, v{aVF0}
          s_lshl_b32 s{sA}, s{sWV}, 7
          v_add_u32 v{aVF0}, s{sA}, v{aVF0}
          v_add_u32 v{aVF1}, {64*PITCH}, v{aVF0}
          v_add_u32 v{aP}, {L_P}, v{aL16}
          s_lshl_b32 s{sA}, s{sWV}, 11
          s_add_u32 s{sA}, s{sA}, {L_R}
          v_add_u32 v{aSR}, s{sA}, v{aL16}
          v_lshl_add_u32 v9, v{vI}, 7, s{sA}
          v_lshlrev_b32 v6, 1, v{vQ}
          v_xor_b32 v6, v6, v{vI}
          v_and_b32 v6, 7, v6
          v_lshl_add_u32 v{aSW}, v6, 4, v9
          v_xor_b32 v{aSW+1}, 16, v{aSW}
          v_lshrrev_b32 v6, 3, v{vL}
          v_xor_b32 v7, v6, v{vL}
          v_and_b32 v7, 7, v7
          v_lshlrev_b32 v7, 4, v7
          v_lshl_add_u32 v{aST}, v6, 17, v7''')
    sadd(sH2ST, (sG, 21), (sWV, 14), (sPAIR, 7), H2)
def v_reads(s):
    for ct in range(4):
        for hf in range(2):
            A(f'ds_read_b64_tr_b16 {vr(VF+(s*4+ct)*4+2*hf,2)}, v{aVF0+(s>>1)} offset:{(s&1)*32*PITCH + hf*16*PITCH + ct*32}')
def p_reads():
    for s in range(4): A(f'ds_read_b128 {vr(PF+4*s,4)}, v{aP} offset:{1024*s}')
TB = 120
def ow_tags():
    A(f'v_and_b32 v6, 1, v{vQ}\nv_lshlrev_b32 v6, 3, v6\nv_lshrrev_b32 v{TBR[0]}, v6, v{vT}\ns_mov_b32 s83, 0x00010001')
    for k in range(1, 8): A(f'v_lshrrev_b32 v{TBR[k]}, {k}, v{TBR[0]}')
TBR = [120, 121, 122, 123, 224, 225, 226, 227]

QG, WR = 16, 124
aLS, aGS, aBIT, aOL, aWTw, aWTr, aHCs, aUV, aOF, aRDw, aRDr, aH3, aCT, aE, aDMP = 192, 193, 194, 195, 196, 197, 198, 199, 200, 202, 203, 204, 206, 210, 212
G4, W4 = 184, 188
aQW = 160
def back_addr():
    A(f'''v_add_u32 v{aOL}, {L_OL}, v{aL16}
          v_lshlrev_b32 v{aHCs}, 8, v{vQ}
          v_lshl_add_u32 v{aHCs}, v{vB4}, 4, v{aHCs}
          v_lshl_add_u32 v7, v{vQ}, 2, v{vU}
          v_mul_u32_u24 v{aUV}, {16*WP + 128}, v{vQ}
          v_mul_u32_u24 v6, {WP}, v{vU}
          v_add_u32 v{aUV}, v{aUV}, v6
          v_lshl_add_u32 v{aUV}, v{vB4}, 3, v{aUV}
          s_lshl_b32 s{sA}, s{sWV}, 5
          v_add_u32 v{aUV}, s{sA}, v{aUV}
          v_lshlrev_b32 v7, 6, v7
          v_lshl_add_u32 v7, v{vB4}, 3, v7
          v_and_b32 v6, 1, v{vQ}
          v_lshl_add_u32 v7, v6, 5, v7
          s_lshl_b32 s{sA}, s{sWV}, 12
          s_add_u32 s{sA}, s{sA}, {L_WO}
          v_add_u32 v{aOF}, s{sA}, v7
          v_xor_b32 v{aOF+1}, 32, v{aOF}
          s_lshl_b32 s{sA}, s{sWV}, 10
          s_add_u32 s{sA}, s{sA}, {L_RED}
          v_add_u32 v{aRDw}, s{sA}, v{aL16}
          v_lshrrev_b32 v6, 1, v{vU}
          v_lshl_add_u32 v{aRDr}, v6, 12, v{aL16}
          v_add_u32 v{aRDr}, {L_RED}, v{aRDr}
          v_and_b32 v6, 7, v{vL}
          v_lshlrev_b32 v6, 4, v6
          v_lshl_add_u32 v{aH3}, v{vQ}, 10, v6''')
    sadd(76, (sX8, 15), (sWV, 12), HCA)
    sadd(77, (sH, 13), (sWV, 10), (sJ4, 6), HCA)
    sadd(79, (sR, 12), (sX8, 7), H3)
    for k in range(4): A(f'v_mov_b32 v{G4+k}, s{sT}')
    A(f'v_mov_b32 v{W4}, s{sT}\nv_mov_b32 v{W4+1}, s{sT}')
common_addr()
A(f's_lshl1_add_u32 s{sC}, s{sB}, s{sG}')
sadd(sP0, (sC, 14), H1)
sQ = 16
A(f'v_add_u32 v11, {L_R}, v{aL16}')
if OPT['qrot']: A(f's_lshl2_add_u32 s{sD}, s{sV4}, s{sR}')
else: A(f's_lshl_b32 s{sD}, s{sV4}, 2')
for k in range(4):
    A(f'''s_add_u32 s{sA}, s{sD}, {k}
          s_and_b32 s{sA}, s{sA}, 15
          s_lshl_b32 s{sBt}, s{sA}, 10
          s_add_u32 s{sQ+k}, s{sBt}, s{sP0}
          s_mul_i32 s{sA}, s{sA}, {PITCH}
          v_add_u32 v{aQW+k}, s{sA}, v11
          v_lshl_add_u32 v6, v{vB4}, 2, {k}
          v_lshrrev_b32 v6, v6, v{vT}
          v_and_b32 v{aQW+4+k}, 0x00010001, v6''')
A(f'''s_lshl_b32 s{sA}, s{sV4}, 2
      s_add_u32 s{sA}, s{sA}, {L_QFLAG}
      v_mov_b32 v12, s{sA}
      v_and_b32 v9, 1, v{vL}
      v_lshlrev_b32 v9, 7, v9
      v_lshrrev_b32 v13, 1, v{vL}
      v_lshl_add_u32 v10, v13, 10, v9
      v_lshlrev_b32 v9, 4, v{vI}
      v_lshl_add_u32 v9, v{vQ}, 13, v9''')
ow_tags()
sadd(sP2, (sJ4, 20), (sV4, 18), (sH, 8))
sadd(sP3, (sH, 17), (sV4, 15), (sJ4, 8))
sadd(sA, (sH, 13), (sJ4, 11), (sV4, 9), HCA)
A(f's_lshr_b32 s{sC}, s{sH}, 4\ns_and_b32 s{sD}, s{sH}, 15')
sadd(sP0, (sC, 15), (sV4, 13), (sD, 4), HS)
A(f'''s_cmp_lg_u32 s{sG}, 0
      s_cbranch_scc1 L_nopre
      v_lshlrev_b32 v8, 7, v{vB4}
      buffer_load_dword v47, v8, {srd(WS)}, s{sA} offen sc1
      v_and_b32 v8, 1, v{vL}
      v_lshlrev_b32 v8, 8, v8''')
sadd(sA, (sC, 15), (sR, 11), (sV4, 9), (sD, 4), HS)
if OPT['hspre']: A(f'buffer_load_dword v46, v8, {srd(WS)}, s{sA} offen sc1')
A.label('L_nopre')
lds_wait(L_PROG, 1, 48)
stamp(5)
def gather_addr():
    back_addr()
    A(f's_lshl2_add_u32 s{sC}, s{sH}, s{sJ4}\ns_lshl3_add_u32 s{sC}, s{sC}, s{sV4}')
    sadd(sP1, (sC, 12), H2)
    A(f'''v_and_b32 v6, 31, v{vL}
          v_lshlrev_b32 v{aLS}, 8, v6
          s_lshl_b32 s85, s{sV4}, 13
          s_add_u32 s85, s85, {L_CS}
          s_lshl_b32 s{sA}, s{sWV}, 6
          s_add_u32 s{sA}, s{sA}, {L_WT}
          v_lshl_add_u32 v{aWTw}, v6, 1, s{sA}
          v_lshl_add_u32 v{aWTr}, v{vQ}, 3, s{sA}
          s_lshl_b32 s84, 0x11111111, s{sV4}
          v_mul_u32_u24 v{aDMP}, {WP}, v{vQ}
          v_lshl_add_u32 v{aDMP}, v{vI}, 4, v{aDMP}
          s_mul_i32 s{sA}, s{sV4}, {32*WP + 256}
          v_add_u32 v{aDMP}, s{sA}, v{aDMP}
          v_lshlrev_b32 v6, 5, v{vQ}
          v_xor_b32 v{aGS}, v6, v{aL16}
          v_lshrrev_b32 v6, 3, v{vL}
          v_lshlrev_b32 v{aBIT}, v6, 1
          v_lshrrev_b32 v6, 1, v{vI}
          v_and_b32 v7, 1, v{vI}
          v_lshl_add_u32 v6, v7, 4, v6
          v_bfe_u32 v7, v{vT}, v6, 1
          v_mul_u32_u24 v{aE}, 0x10001, v7
          v_add_u32 v6, 8, v6
          v_bfe_u32 v7, v{vT}, v6, 1
          v_mul_u32_u24 v{aE+1}, 0x10001, v7
          v_lshl_add_u32 v6, v{vQ}, 2, v{vU}
          v_bfe_u32 v7, v6, 1, 2
          v_lshl_add_u32 v6, v6, 7, s85
          v_lshl_add_u32 v6, v{vB4}, 3, v6''')
    for t in range(4):
        A(f'v_xor_b32 v{aCT+t}, {t}, v7\nv_lshl_add_u32 v{aCT+t}, v{aCT+t}, 5, v6')
loads = ''.join(f'buffer_load_dwordx4 {vr(QG+4*k,4)}, v{aL16}, {srd(WS)}, s{sQ+k} offen sc1\n' for k in range(4))
A(f's_mov_b32 s{sCNT}, 0')
A(loads)
gather_addr()
A.label('L_qp')
A('v_mov_b32 v48, 0')
for k in range(4):
    A(f's_waitcnt vmcnt({3-k})')
    for c in range(4): A(f'v_xor_b32 v{QG+4*k+c}, v{QG+4*k+c}, v{aQW+4+c}')
    A(f'ds_write_b128 v{aQW+k}, {vr(QG+4*k,4)}')
    A(f'v_or3_b32 v48, v48, v{QG+4*k}, v{QG+4*k+1}\nv_or3_b32 v48, v48, v{QG+4*k+2}, v{QG+4*k+3}')
A(f'''v_and_b32 v48, s83, v48
      v_cmp_ne_u32 vcc, 0, v48
      s_cmp_eq_u64 vcc, 0
      s_cbranch_scc1 L_qok
      s_add_u32 s{sCNT}, s{sCNT}, 1
      s_sleep {OPT["qsleep"]}
      s_waitcnt lgkmcnt(0)''')
A(loads)
A(f'''s_cmp_lt_u32 s{sCNT}, {OPT['limit']}
      s_cbranch_scc1 L_qp''')
A.label('L_qok')
A('v_mov_b32 v48, -1\ns_waitcnt lgkmcnt(0)\nds_write_b32 v12, v48')
stampcnt(41)
stamp(8)
NTP = ' nt' if OPT['pf_nt'] else ''
def late_loads():
    A(f'''s_cmp_lg_u32 s{sG}, 0
          s_cbranch_scc1 L_nolate''')
    for n in range(8):
        A(f'buffer_load_dwordx4 {vr(WR+4*n,4)}, v213, {srd(WUV)}, s{sP2} offen{NTW}')
        if n < 7: A(f's_add_u32 s{sP2}, s{sP2}, 0x8000')
    A('s_branch L_late_done')
    A.label('L_nolate')
    A(f'buffer_load_dword v124, v214, {srd(WO)}, s{sP3} offen{NTP}')
    A.label('L_late_done')
A('v_mov_b32 v213, v9\nv_mov_b32 v214, v10')
loc_issue(180)
if OPT['late'] == 1: late_loads()
stamp(9)
A(f'''v_mul_u32_u24 v9, 3584, v{vU}
      v_lshl_add_u32 v9, v{vB4}, 7, v9
      v_lshlrev_b32 v10, 7, v{vL}
      s_lshr_b32 s{sD}, s2, 3''')
sadd(sA, (sD, 'mul', 16 * 3584), (sV4, 'mul', 4 * 3584), (sX8, 'mul', 448))
sadd(sC, (sX8, 'mul', 7 * 32768), (sD, 'mul', 7168), (sV4, 'mul', 1792))
def ffn_pf():
    A(f'''s_mov_b64 exec, 0xffff
          buffer_load_dword v156, v9, {srd(WG)}, s{sA} offen{NTP}
          buffer_load_dword v157, v9, {srd(WU)}, s{sA} offen{NTP}
          s_mov_b64 exec, 0x3fff
          buffer_load_dword v158, v10, {srd(WD)}, s{sC} offen{NTP}
          s_mov_b64 exec, -1''')
if OPT['ffnpf'] == 2: ffn_pf()
A('s_waitcnt lgkmcnt(0)\ns_barrier')
for s in range(4): v_reads(s)
if OPT['ffnpf'] == 1: ffn_pf()
if OPT['late'] == 2: late_loads()
A('s_barrier')
stamp(10)
p_reads()
for s in range(4):
    A(f's_waitcnt lgkmcnt({3-s})')
    for ct in range(4): mfma32(PA + 4 * ct, VF + (s * 4 + ct) * 4, PF + 4 * s, '0' if s == 0 else None)

A.label('L_pvout')
stamp(22)
A('s_nop 4')
for dd in range(8):
    A(f'v_cvt_pk_bf16_f32 v{OW+dd}, v{PA+2*dd}, v{PA+2*dd+1}')
    A(f'v_bfi_b32 v{OW+dd}, s83, v{TBR[dd]}, v{OW+dd}')
    if dd in (3, 7): A(f'ds_write_b128 v{aSW+dd//4}, {vr(OW+dd-3,4)}')
UVF, OF = 16, 32
LS, WF, CF, CA, OLW = 48, 52, 76, 100, 120
CF2, CA2, OLW2 = 16, 160, 56
END = 's_branch L_end' if DEBUG else 's_endpgm'
A(f's_add_u32 s{sA}, s{sH2ST}, 0x100000\ns_waitcnt lgkmcnt(0)')
for k in range(2): A(f'ds_read_b128 {vr(16+4*k,4)}, v{aSR} offset:{1024*k}')
for k in range(2):
    A(f's_waitcnt lgkmcnt({1-k})')
    A(f'buffer_store_dwordx4 {vr(16+4*k,4)}, v{aST}, {srd(WS)}, s{[sH2ST, sA][k]} offen sc1')
if OPT['statlate'] in (1, 2):
    A(f'''s_cmp_lg_u32 s{sWV}, 0
          s_cbranch_scc1 L_nolse
          v_mov_b32 v13, v{LA}
          {'s_waitcnt vmcnt(0)' if OPT['statlate']==2 else ''}
          s_mov_b64 exec, 0xffff
          buffer_store_dwordx4 v[12:15], v{aL16}, {srd(WS)}, s{sHSST} offen sc1
          s_mov_b64 exec, -1''')
    A.label('L_nolse')
stamp(11)
A(f'''s_cmp_ge_u32 s{sWV}, 4
      s_barrier
      s_cbranch_scc1 L_nostore
      s_cmp_lg_u32 s{sG}, 0
      s_cbranch_scc1 L_g1w03''')
def wo_dma():
    A(f'''v_lshrrev_b32 v6, 2, v{vL}
          v_and_b32 v7, 1, v{vQ}
          v_lshlrev_b32 v7, 1, v7
          v_xor_b32 v7, v7, v{vB4}
          v_lshlrev_b32 v7, 4, v7
          v_lshl_add_u32 v6, v6, 10, v7
          s_lshl_b32 s{sD}, s{sWV}, 12''')
    sadd(sA, (sX8, 19), (sWV, 16), (sR, 6))
    for n in range(4):
        A(f's_add_u32 m0, s{sD}, {L_WO + 1024*n}')
        A(f'buffer_load_dwordx4 v6, {srd(WO)}, s{sA} offen{NTW} lds')
        if n < 3: A(f's_add_u32 s{sA}, s{sA}, 0x4000')
wo_dma()
if OPT['ffnpf'] == 3:
    A(f'''v_lshrrev_b32 v9, 2, v{vL}
          v_mul_u32_u24 v9, 3584, v9
          v_lshl_add_u32 v9, v{vB4}, 7, v9''')
    sadd(sA, (sR, 'mul', 32 * 3584), (sV4, 'mul', 8 * 3584), (sX8, 'mul', 448))
    A(f'''s_mov_b32 exec_hi, 0
          buffer_load_dword v124, v9, {srd(WG)}, s{sA} offen{NTP}
          buffer_load_dword v125, v9, {srd(WU)}, s{sA} offen{NTP}
          s_mov_b32 exec_hi, -1''')
loc_issue(180)
back_addr()
A('s_waitcnt vmcnt(0)')
loc_eval(180)
if OPT['ackbar']: A('s_barrier')
stamp(12)
A('s_branch L_b3')
A.label('L_nostore')
if OPT['late'] == 3: late_loads()
A(f's_cmp_lg_u32 s{sG}, 0\ns_cbranch_scc1 L_g1tail')

sPEND, sNEW = 80, 81
def dma_k(k, cs):
    A(f'buffer_load_dwordx4 v{aGS}, {srd(WS)}, s{sP1 + cs} offen offset:{1024*k} sc1 lds')
def gather_loop(css, mid=None):
    GL, GN, GD = A.newlab('Lgl'), A.newlab('Lgn'), A.newlab('Lgd')
    stamp(31)
    A(f'''s_mov_b32 exec_hi, 0
          buffer_load_dwordx4 {vr(LS,4)}, v{aLS}, {srd(WS)}, s{sP0} offen sc1
          s_mov_b32 exec_hi, -1
          s_mov_b32 s{sPEND}, -1
          s_mov_b32 s{sCNT}, 0
          s_add_u32 s{sP2}, s{sP1}, 0x4000''')
    if mid: mid()
    A.label(GL)
    A(f'''s_waitcnt vmcnt(0)
          v_cmp_eq_u32 vcc, v{LS+3}, v{vT}
          s_and_b32 s{sNEW}, vcc_lo, s{sPEND}
          s_cbranch_scc0 {GN}
          s_andn2_b32 s{sPEND}, s{sPEND}, s{sNEW}''')
    for k in range(4):
        A(f'v_and_b32 v{136+k}, s{sNEW}, v{aBIT}')
        if k < 3: A(f's_lshr_b32 s{sNEW}, s{sNEW}, 8')
    for k in range(4): A(f'v_cmp_ne_u32 s[{16+2*k}:{17+2*k}], 0, v{136+k}')
    for cs in css:
        A(f's_add_u32 m0, s85, {cs*4096}')
        for k in range(4):
            sk = A.newlab('Lsk')
            A(f's_mov_b64 exec, s[{16+2*k}:{17+2*k}]\ns_cbranch_execz {sk}')
            dma_k(k, cs)
            A.label(sk)
    A(f'''s_mov_b64 exec, -1
          s_cmp_eq_u32 s{sPEND}, 0
          s_cbranch_scc1 {GD}''')
    A.label(GN)
    A(f'''s_mov_b32 exec_lo, s{sPEND}
          s_mov_b32 exec_hi, 0
          buffer_load_dwordx4 {vr(LS,4)}, v{aLS}, {srd(WS)}, s{sP0} offen sc1
          s_mov_b64 exec, -1
          s_add_u32 s{sCNT}, s{sCNT}, 1
          s_cmp_lt_u32 s{sCNT}, {OPT['limit']}
          s_cbranch_scc1 {GL}''')
    A.label(GD)
def dump_uv():
    for n in range(8):
        A(f's_waitcnt vmcnt({(11 if OPT["ffnpf"] else 8)-n})')
        A(f'ds_write_b128 v{aDMP}, {vr(WR+4*n,4)} offset:{L_UV + n*4*WP + (n>>2)*128}')
    stamp(13)
for n in range(8):
    A(f's_waitcnt vmcnt({(12 if OPT["ffnpf"] in (1,2) else 9)-n})')
    A(f'ds_write_b128 v{aDMP}, {vr(WR+4*n,4)} offset:{L_UV + n*4*WP + (n>>2)*128}')
loc_eval(180)
A(f's_add_u32 s{sP2}, s{sP1}, 0x4000\ns_mov_b32 m0, s85')
if OPT['ackbar']: A('s_barrier')
stamp(13)
ppoll('buffer_load_dwordx4 {r}, v%d, %s, s%d offen sc1' % (aLS, srd(WS), sP0), [144, 148, 152, 156][:OPT['pd']], 3, LS, (0, 1), exec_hi='0')
for cs in range(2):
    if cs: A(f's_add_u32 m0, s85, 4096')
    for k in range(4): dma_k(k, cs)
wo_dma()
stampcnt(42)
stamp(14)
A(f'v_mov_b32 v12, v{LS}')
row_red(12, 'v_max_f32')
swap_red(12, 13, 'v_max_f32', 16)
A(f'''v_sub_f32 v12, v{LS}, v12
      v_exp_f32 v12, v12
      v_mul_f32 v13, v12, v{LS+1}''')
row_red(13, 'v_add_f32')
swap_red(13, 14, 'v_add_f32', 16)
A(f'''v_rcp_f32 v13, v13
      v_mul_f32 v12, {f32(1.0 + 2.0**-8*0.72)}, v12
      v_mul_f32 v12, v12, v13
      v_cvt_pk_bf16_f32 v12, v12, v12
      s_mov_b32 exec_hi, 0
      ds_write_b16 v{aWTw}, v12
      s_mov_b32 exec_hi, -1
      s_waitcnt lgkmcnt(0)
      ds_read_b64 {vr(WF,2)}, v{aWTr}
      ds_read_b64 {vr(WF+2,2)}, v{aWTr} offset:32
      s_mov_b32 s{sCNT}, 0''')
A('s_waitcnt vmcnt(4)')
A.label('L_h2poll')
stamp(15)
units = ((CF, CA), (CF2, CA2))
for cs in range(2):
    for t in range(4):
        for hf in range(2): A(f'ds_read_b64_tr_b16 {vr(units[cs][0]+4*t+2*hf,2)}, v{aCT+t} offset:{cs*4096 + 2048*hf}')
A('v_mov_b32 v142, 0')
for cs, (cf, ca) in enumerate(units):
    for t in range(4):
        A(f's_waitcnt lgkmcnt({14 - 8*cs - 2*t})')
        for k in range(4): A(f'v_xor_b32 v{cf+4*t+k}, v{cf+4*t+k}, v{aE+(t&1)}')
        A(f'v_or3_b32 v142, v142, v{cf+4*t}, v{cf+4*t+1}\nv_or3_b32 v142, v142, v{cf+4*t+2}, v{cf+4*t+3}')
        mfma32(ca + 4 * t, cf + 4 * t, WF, '0')
A(f'''v_and_b32 v142, s83, v142
      v_cmp_ne_u32 vcc, 0, v142
      s_cmp_eq_u64 vcc, 0
      s_cbranch_scc1 L_h2ok
      s_add_u32 s{sCNT}, s{sCNT}, 1''')
for cs in range(2):
    A(f's_add_u32 m0, s85, {cs*4096}')
    for k in range(4): dma_k(k, cs)
A(f'''s_cmp_lt_u32 s{sCNT}, {OPT['limit']}
      s_waitcnt vmcnt(0)
      s_cbranch_scc1 L_h2poll''')
A.label('L_h2ok')
stampcnt(43)
A('s_mov_b32 exec_lo, s84\ns_mov_b32 exec_hi, s84')
for cs, (ca, ow) in enumerate(((CA, OLW), (CA2, OLW2))):
    for dd in range(8):
        A(f'v_cvt_pk_bf16_f32 v{ow+dd}, v{ca+2*dd}, v{ca+2*dd+1}')
        if dd in (3, 7): A(f'ds_write_b128 v{aOL}, {vr(ow+dd-3,4)} offset:{2048*cs + 1024*(dd//4)}')
full_exec()
A('s_waitcnt lgkmcnt(0)')
A.label('L_b3')
A(f's_bitcmp1_b32 s{sWV}, 0\ns_barrier')
stamp(16)
for s in range(4):
    A(f'ds_read_b128 {vr(56+4*s,4)}, v{aOL} offset:{1024*s}')
    for hf in range(2):
        A(f'ds_read_b64_tr_b16 {vr(UVF+4*s+2*hf,2)}, v{aUV} offset:{L_UV + (s>>1)*(64*WP+512) + (8*(s&1)+4*hf)*WP}')
for s in range(4):
    A(f's_waitcnt lgkmcnt({9-3*s})')
    mfma32(72, UVF + 4 * s, 56 + 4 * s, '0' if s == 0 else None)
set_exec(0x000f000f)
A(f'''s_cbranch_scc1 L_s4odd
      s_nop 4
      v_cvt_pk_bf16_f32 v{G4+2}, v72, v73
      v_cvt_pk_bf16_f32 v{G4+3}, v74, v75
      s_branch L_s4done''')
A.label('L_s4odd')
A(f'''s_nop 4
      v_cvt_pk_bf16_f32 v{G4}, v72, v73
      v_cvt_pk_bf16_f32 v{G4+1}, v74, v75''')
A.label('L_s4done')
loc_store(f'buffer_store_dwordx4 {vr(G4,4)}, v{aHCs}, {srd(WS)}, s77 offen')
full_exec()
stamp(17)
def of_reads():
    A('s_waitcnt vmcnt(5)')
    for s2 in range(2):
        for t in range(2):
            for hf in range(2):
                A(f'ds_read_b64_tr_b16 {vr(OF+(s2*2+t)*4+2*hf,2)}, v{aOF+t} offset:{s2*2048 + hf*1024}')
A5, YO = 80, 88
mpoll([(f'buffer_load_dwordx4 {vr(56+4*k,4)}, v{aL16}, {srd(WS)}, s76 offen offset:{1024*k} sc1', [56 + 4 * k + (3 if k & 1 else 0)]) for k in range(4)],
      ('-1', '-1'), 16, 136, between=of_reads)
A('s_waitcnt lgkmcnt(0)')
for s2 in range(2):
    for t in range(2): mfma32(A5 + 4 * t, OF + (s2 * 2 + t) * 4, 58 + 8 * s2, '0' if s2 == 0 else None)
stampcnt(44)
stamp(18)
for r in range(4): A(f'v_add_f32_dpp v{YO+r}, v{A5+r}, v{A5+r} row_ror:4 row_mask:0xf bank_mask:0x5')
for r in range(4): A(f'v_add_f32_dpp v{YO+r}, v{A5+4+r}, v{A5+4+r} row_ror:4 row_mask:0xf bank_mask:0xa')
for r in range(4): A(f'v_add_f32_dpp v{YO+r}, v{YO+r}, v{YO+r} row_ror:8 row_mask:0xf bank_mask:0xf')
A(f'''ds_write_b128 v{aRDw}, {vr(YO,4)}
      s_cmp_eq_u32 s{sWV}, 0
      s_waitcnt lgkmcnt(0)
      s_barrier
      s_cbranch_scc1 L_s5fin
      {END}''')
A.label('L_s5fin')
for k in range(4): A(f'ds_read_b128 {vr(80+4*k,4)}, v{aRDr} offset:{1024*k}')
A(f'''s_waitcnt lgkmcnt(0)
      v_pk_add_f32 v[80:81], v[80:81], v[84:85]
      v_pk_add_f32 v[82:83], v[82:83], v[86:87]
      v_pk_add_f32 v[88:89], v[88:89], v[92:93]
      v_pk_add_f32 v[90:91], v[90:91], v[94:95]
      v_pk_add_f32 v[80:81], v[80:81], v[88:89]
      v_pk_add_f32 v[82:83], v[82:83], v[90:91]''')
for r in range(4): A(f'v_add_f32_dpp v{80+r}, v{80+r}, v{80+r} row_ror:8 row_mask:0xf bank_mask:0xf')
set_exec(0x00ff00ff)
A(f'''v_cvt_pk_bf16_f32 v{W4+2}, v80, v81
      v_cvt_pk_bf16_f32 v{W4+3}, v82, v83
      buffer_store_dwordx4 {vr(W4,4)}, v{aH3}, {srd(WS)}, s79 offen sc1''')
stamp(19)
A.label('L_end')
endwave()

A.label('L_g1w03')
A(f'''{'s_waitcnt vmcnt(0)' if OPT['ffnwait'] else ''}
      s_barrier
      s_cmp_ge_u32 s{sR}, 8
      s_cbranch_scc1 L_red
      {END}''')
A.label('L_g1tail')
A(f'''v_lshrrev_b32 v9, 2, v{vL}
      v_mul_u32_u24 v6, 3584, v9
      v_lshl_add_u32 v9, v{vB4}, 7, v6
      v_lshlrev_b32 v10, 7, v{vL}''')
sadd(sD, (sR, 'mul', 32 * 3584), (sV4, 'mul', 8 * 3584), (sX8, 'mul', 448))
A(f's_and_b32 s{sA}, s{sR}, 7')
sadd(sC, (sA, 'mul', 28672), (sX8, 'mul', 7 * 32768), (sV4, 'mul', 7168))
if OPT['helper']:
    gather_loop((1, 0))
    A('s_waitcnt vmcnt(0)')
    stamp(14)
A('s_barrier')
if not OPT['ffnpf']:
    if OPT['trig']:
        sadd(sA, (sH, 13), (sJ4, 6), HCA)
        A(f'''s_mov_b32 s{sCNT}, 0
              s_mov_b64 exec, 1''')
        A.label('L_trig')
        A(f'''buffer_load_dword v124, v{aL16}, {srd(WS)}, s{sA} offen sc1
              s_add_u32 s{sCNT}, s{sCNT}, 1
              s_waitcnt vmcnt(0)
              v_cmp_eq_u32 vcc, v124, v{vT}
              s_cmp_ge_u32 s{sCNT}, {OPT['trig']}
              s_cbranch_scc1 L_trigged
              s_cbranch_vccz L_trig''')
        A.label('L_trigged')
        stamp(27)
    A(f'''s_mov_b32 exec_lo, -1
          s_mov_b32 exec_hi, 0
          buffer_load_dword v124, v9, {srd(WG)}, s{sD} offen{NTP}
          buffer_load_dword v125, v9, {srd(WU)}, s{sD} offen{NTP}
          s_mov_b64 exec, -1''')
A(f'''s_cmp_lt_u32 s{sR}, 7
      s_cbranch_scc1 L_ffn
      s_cmp_ge_u32 s{sR}, 8
      s_cbranch_scc1 L_dpf
      {END}''')
A.label('L_dpf')
A(f'''s_mov_b32 exec_hi, 0xffffff
      buffer_load_dword v126, v10, {srd(WD)}, s{sC} offen{NTP}
      s_mov_b32 exec_hi, -1''')

A.label('L_red')
SEL, RA, HV, RD, aX = 192, 196, 200, 160, 243
A(f'''s_and_b32 s{sA}, s{sR}, 7
      s_lshl3_add_u32 s{sFS}, s{sA}, s{sWV}
      s_lshr_b32 s{sA}, s{sFS}, 2''')
sadd(75, (sA, 6), (sV4, 3))
sadd(sP3, (sFS, 10), H3)
A(f'''v_bfe_u32 v6, v{vL}, 2, 1
      v_lshlrev_b32 v{aX}, 10, v{vB4}
      v_lshl_add_u32 v{aX}, v6, 5, v{aX}
      buffer_load_dwordx2 v[204:205], v{aX}, {srd(X)}, s75 offen
      v_cmp_eq_u32 s[70:71], 1, v6
      v_and_b32 v9, 1, v{vB4}
      v_lshlrev_b32 v9, 4, v9
      v_mov_b32 v10, 0x3f80
      v_lshlrev_b32 v10, v9, v10
      v_cmp_gt_u32 vcc, 2, v{vB4}
      v_cndmask_b32 v{SEL}, 0, v10, vcc
      v_cndmask_b32 v{SEL+1}, v10, 0, vcc
      v_mov_b32 v{SEL+2}, v{SEL}
      v_mov_b32 v{SEL+3}, v{SEL+1}
      v_mov_b32 v{RD+4}, 0
      v_mov_b32 v{RD+5}, 0
      v_mov_b32 v{RD+28}, 0
      v_mov_b32 v{RD+29}, 0''')
def unpack_hv():
    A(f'''v_lshlrev_b32 v{HV}, 16, v204
          v_and_b32 v{HV+1}, 0xffff0000, v204
          v_lshlrev_b32 v{HV+2}, 16, v205
          v_and_b32 v{HV+3}, 0xffff0000, v205''')
def reduce_fin(nl):
    for p in range((nl + 1) // 2):
        mfma32(RA, SEL, RD + 8 * p + 2, '0' if p == 0 else None)
    for r in range(4): A(f'v_add_f32_dpp v{RA+r}, v{RA+r}, v{RA+r} row_ror:8 row_mask:0xf bank_mask:0xf')
    for r in range(4): A(f'v_add_f32 v{HV+r}, v{HV+r}, v{RA+r}')
    A(f'v_cvt_pk_bf16_f32 v204, v{HV}, v{HV+1}\nv_cvt_pk_bf16_f32 v205, v{HV+2}, v{HV+3}')
loc_issue(206)
sadd(sP0, (sX8, 13), (sFS, 7), H4A)
A(f's_mov_b64 exec, 1\nbuffer_load_dword v208, v{aL16}, {srd(WS)}, s{sP0} offen sc1\ns_mov_b64 exec, -1\ns_waitcnt vmcnt(0)')
loc_eval(206)
unpack_hv()
stamp(25)
ppoll('buffer_load_dwordx4 {r}, v%d, %s, s%d offen sc1' % (aL16, srd(WS), sP3), [128, 132, 136, 140][:OPT['pd3']], 0, RD, (2, 3))
reduce_fin(1)
A(f'''v_cndmask_b32 v208, v{vT}, v204, s[70:71]
      v_cndmask_b32 v209, v{vT}, v205, s[70:71]
      v_cndmask_b32 v210, v204, v{vT}, s[70:71]
      v_cndmask_b32 v211, v205, v{vT}, s[70:71]
      s_mov_b64 exec, 0xff''')
loc_store(f'buffer_store_dwordx4 v[208:211], v{aL16}, {srd(WS)}, s{sP0} offen')
full_exec()
stampcnt(46)
stamp(26)
A(f'''s_cmp_eq_u32 s{sWV}, s{sX8}
      s_cbranch_scc1 L_final
      {END}''')
A.label('L_final')
unpack_hv()
sadd(sP3, (sFS, 13), H5)
A(f's_add_u32 s{sP2}, s{sP3}, 0x1000')
mpoll([(f'buffer_load_dwordx4 {vr(RD+4*k,4)}, v{aL16}, {srd(WS)}, s{sP3 if k<4 else sP2} offen offset:{(k&3)*1024} sc1', [RD + 4 * k + (3 if k & 1 else 0)]) for k in range(7)],
      ('-1', '-1'), 12, 100)
reduce_fin(7)
stamp(30)
A(f'''s_mov_b64 exec, 0xff
      buffer_store_dwordx2 v[204:205], v{aX}, {srd(OUT)}, s75 offen
      s_cmp_eq_u32 s{sFS}, 0
      s_cbranch_scc1 L_epoch
      {END}''')
A.label('L_epoch')
A(f'''s_mov_b64 exec, 1
      buffer_store_dword v{vT}, v{aL16}, {srd(WS)}, 0 offen sc1
      {END}''')

A.label('L_ffn')
A(f'''s_mul_i32 s{sFS}, s{sX8}, 7
      s_add_u32 s{sFS}, s{sFS}, s{sR}
      v_and_b32 v7, 1, v{vQ}
      v_lshlrev_b32 v7, 1, v7
      v_xor_b32 v7, v7, v{vB4}
      v_lshl_add_u32 v6, v7, 4, v6''')
sadd(sA, (sV4, 'mul', 128 * 3584), (sFS, 6))
sadd(sC, (sFS, 15), (sV4, 13))
A(f's_lshl_b32 s{sD}, s{sV4}, 13\ns_mul_i32 s{sP0}, s{sV4}, {8*PITCH}\ns_waitcnt vmcnt(0)')
stamp(24)
for n in range(8):
    A(f's_add_u32 m0, s{sD}, {L_G + 1024*n}')
    A(f'buffer_load_dwordx4 v6, {srd(WG)}, s{sA} offen{NTW} lds')
    A(f's_add_u32 m0, s{sD}, {L_U + 1024*n}')
    A(f'buffer_load_dwordx4 v6, {srd(WU)}, s{sA} offen{NTW} lds')
    if n < 7: A(f's_add_u32 s{sA}, s{sA}, {16*3584}')
for n in range(8):
    A(f's_add_u32 m0, s{sP0}, {L_D + PITCH*n}')
    A(f'buffer_load_dwordx4 v{aL16}, {srd(WD)}, s{sC} offen{NTW} lds')
    if n < 7: A(f's_add_u32 s{sC}, s{sC}, 1024')
stamp(12)
FF, DF, FA, G2, G1, FO, CS, HQ, A7 = 112, 176, 208, 224, 244, 248, 96, 16, 48
A(f'''v_lshl_add_u32 v6, v{vQ}, 2, v{vU}
      v_lshlrev_b32 v6, 6, v6
      v_lshl_add_u32 v6, v{vB4}, 3, v6
      s_lshl_b32 s{sA}, s{sV4}, 13
      v_add_u32 v6, s{sA}, v6
      v_and_b32 v7, 1, v{vQ}
      v_lshl_add_u32 v6, v7, 5, v6
      v_xor_b32 v7, 32, v6
      v_lshl_add_u32 v8, v{vQ}, 2, v{vU}
      v_mul_u32_u24 v8, {PITCH}, v8
      v_lshl_add_u32 v8, v{vB4}, 3, v8
      s_lshl_b32 s{sA}, s{sV4}, 8
      s_add_u32 s{sA}, s{sA}, {L_D}
      v_add_u32 v8, s{sA}, v8''')
for k in range(4): A(f'v_mov_b32 v{FO+k}, s{sONES}')
for s in range(4):
    A(f's_waitcnt vmcnt({20-4*s})')
    for u in range(4):
        for hf in range(2):
            A(f'ds_read_b64_tr_b16 {vr(FF+(u*4+s)*4+2*hf,2)}, v{6+(u&1)} offset:{(L_U if u>=2 else L_G) + s*2048 + hf*1024}')
    A('s_waitcnt lgkmcnt(0)')
    for u in range(4): mfma32(FA + 4 * u, FF + (u * 4 + s) * 4, FO, '0' if s == 0 else None)
def compact(dst):
    for u in range(4):
        if u: set_exec(0x000f000f << (4 * u))
        for r in range(4): A(f'v_mov_b32 v{dst+r}, v{FA+4*u+r}')
    full_exec()
compact(100)
A(f'''v_mov_b32 v13, v8
      v_add_u32 v8, {L_FX}, v{aL16}
      s_lshl_b32 s{sA}, s{sV4}, 10
      v_add_u32 v9, s{sA}, v8
      ds_write_b128 v9, v[100:103]
      s_waitcnt vmcnt(0) lgkmcnt(0)
      s_barrier''')
stamp(13)
for k in range(4): A(f'ds_read_b128 {vr(80+4*k,4)}, v8 offset:{1024*k}')
for t in range(8):
    for hf in range(2):
        A(f'ds_read_b64_tr_b16 {vr(DF+4*t+2*hf,2)}, v13 offset:{hf*16*PITCH + 32*t}')
A(f'''v_lshlrev_b32 v6, 7, v{vQ}
      v_lshl_add_u32 v6, v{vB4}, 4, v6
      v_lshrrev_b32 v7, 1, v{vU}
      v_lshl_add_u32 v7, v7, 2, v{vQ}
      v_lshlrev_b32 v7, 13, v7
      v_and_b32 v10, 7, v{vL}
      v_lshl_add_u32 v7, v10, 4, v7
      v_lshlrev_b32 v10, 5, v{vB4}
      v_add_u32 v10, {L_FX + 8192}, v10
      s_lshl_b32 s{sA}, s{sV4}, 2
      v_lshl_add_u32 v11, v{vQ}, 4, v10
      v_add_u32 v11, s{sA}, v11
      v_cmp_gt_u32 vcc, 2, v{vU}
      v_mov_b32 v12, 0xff800000
      v_cndmask_b32 v12, v12, 0, vcc''')
sadd(sP0, (sX8, 13), (sV4, 11), H4A)
sadd(sP1, (sV4, 17), (sFS, 7), H5)
A(f's_add_u32 s{sP2}, s{sP1}, 0x10000\ns_waitcnt lgkmcnt(0)')
for r in range(4):
    A(f'''v_add_f32 v{CS+r}, v{80+r}, v{84+r}
          v_add_f32 v{88+r}, v{88+r}, v{92+r}
          v_add_f32 v{CS+r}, v{CS+r}, v{88+r}''')
W70, W71 = 232, 238
for k in (0, 1, 4, 5): A(f'v_mov_b32 v{W70+k}, s{sT}\nv_mov_b32 v{W71+k}, s{sT}')
for s in range(4):
    for k in range(4): A(f'v_mov_b32 v{HQ+8*s+2+k}, s{sONES}')
stamp(19)
mpoll([(f'buffer_load_dwordx4 {vr(HQ+8*s,4)}, v6, {srd(WS)}, s{sP0} offen offset:{512*s} sc1\nbuffer_load_dwordx4 {vr(HQ+8*s+4,4)}, v6, {srd(WS)}, s{sP0} offen offset:{512*s+64} sc1',
        [HQ + 8 * s, HQ + 8 * s + 7]) for s in range(4)], ('0x000f000f', '0x000f000f'), 16, 104)
stampcnt(45)
stamp(20)
for s in range(4): mfma32(G2, HQ + 8 * s + 2, HQ + 8 * s + 2, '0' if s == 0 else None)
for s in range(4):
    for u in range(4): mfma32(FA + 4 * u, FF + (u * 4 + s) * 4, HQ + 8 * s + 2, '0' if s == 0 else None)
for b in range(1, 4): A(f's_mov_b64 exec, {1 << b}\nv_mov_b32 v{G2}, v{G2+b}')
A(f's_mov_b64 exec, 0x000f000f\nds_write_b32 v11, v{G2}')
full_exec()
for u in range(1, 4):
    for r in range(4): A(f'v_mov_b32_dpp v{FA+r}, v{FA+4*u+r} row_shr:{4*u} row_mask:0xf bank_mask:{1<<u:#x}')
A(f'''ds_write_b128 v9, {vr(FA,4)} offset:4096
      s_waitcnt lgkmcnt(0)
      s_barrier
      ds_read_b128 v[16:19], v10
      ds_read_b128 v[20:23], v10 offset:16''')
for k in range(4): A(f'ds_read_b128 {vr(80+4*k,4)}, v8 offset:{4096+1024*k}')
A(f'''s_waitcnt lgkmcnt(4)
      v_pk_add_f32 v[16:17], v[16:17], v[18:19]
      v_pk_add_f32 v[20:21], v[20:21], v[22:23]
      v_add_f32 v17, v16, v17
      v_add_f32 v16, v20, v21
      v_mul_f32 v16, {f32(-1.0/512)}, v16
      v_mov_b32 v18, {f32(1e-5)}
      v_fmac_f32 v18, {f32(1.0/512)}, v17
      v_fma_f32 v18, -v16, v16, v18
      v_rsq_f32 v18, v18
      s_waitcnt lgkmcnt(0)''')
for r in range(0, 4, 2):
    A(f'''v_pk_add_f32 {vr(80+r,2)}, {vr(80+r,2)}, {vr(84+r,2)}
          v_pk_add_f32 {vr(88+r,2)}, {vr(88+r,2)}, {vr(92+r,2)}
          v_pk_add_f32 {vr(80+r,2)}, {vr(80+r,2)}, {vr(88+r,2)}''')
for r in range(4): A(f'v_fmac_f32 v{80+r}, v16, v{CS+r}')
for r in range(4): A(f'v_mul_f32 v{80+r}, v18, v{80+r}')
for r in range(4): A(f'v_max_f32 v{80+r}, v12, v{80+r}')
for r in range(4): A(f'v_mul_f32_dpp v{84+r}, v{80+r}, v{80+r} row_ror:8 row_mask:0xf bank_mask:0xf')
A('''v_cvt_pk_bf16_f32 v88, v84, v85
     v_cvt_pk_bf16_f32 v89, v86, v87
     v_cvt_pk_bf16_f32 v92, v84, v85
     v_cvt_pk_bf16_f32 v93, v86, v87
     v_cvt_pk_bf16_f32 v94, v84, v85
     v_cvt_pk_bf16_f32 v95, v86, v87
     v_mov_b32_dpp v92, v88 row_ror:4 row_mask:0xf bank_mask:0xa
     v_mov_b32_dpp v93, v89 row_ror:4 row_mask:0xf bank_mask:0xa
     v_mov_b32_dpp v94, v88 row_ror:4 row_mask:0xf bank_mask:0x5
     v_mov_b32_dpp v95, v89 row_ror:4 row_mask:0xf bank_mask:0x5''')
order = [0, 4, 1, 5, 2, 6, 3, 7]
for t in order: mfma32(A7 + 4 * t, DF + 4 * t, 92, '0')
A(f's_bitcmp1_b32 s{sFS}, 3')
for u in range(4):
    if u: set_exec(0x000f000f << (4 * u))
    A(f'''v_cvt_pk_bf16_f32 v{W70+2}, v{A7+4*u}, v{A7+4*u+1}
          v_cvt_pk_bf16_f32 v{W70+3}, v{A7+4*u+2}, v{A7+4*u+3}
          v_cvt_pk_bf16_f32 v{W71+2}, v{A7+16+4*u}, v{A7+16+4*u+1}
          v_cvt_pk_bf16_f32 v{W71+3}, v{A7+16+4*u+2}, v{A7+16+4*u+3}''')
full_exec()
A(f'''s_cbranch_scc1 L_s7odd
      buffer_store_dwordx4 {vr(W70,4)}, v7, {srd(WS)}, s{sP1} offen sc1
      buffer_store_dwordx4 {vr(W71,4)}, v7, {srd(WS)}, s{sP2} offen sc1
      {END}''')
A.label('L_s7odd')
A(f'''buffer_store_dwordx4 {vr(W70+2,4)}, v7, {srd(WS)}, s{sP1} offen sc1
      buffer_store_dwordx4 {vr(W71+2,4)}, v7, {srd(WS)}, s{sP2} offen sc1
      {END}''')
A.label('L_g0front')
A(f's_cmp_lt_u32 s{sWV}, 4\ns_cbranch_scc1 L_g0s')
A(f'''v_and_b32 v9, 1, v{vL}
      v_lshlrev_b32 v9, 7, v9
      v_lshrrev_b32 v8, 1, v{vL}
      v_lshl_add_u32 v9, v8, 13, v9
      v_lshlrev_b32 v8, 7, v{vB4}''')
sadd(sA, (sJ4, 20), (sV4, 18), (sH, 8))
sadd(sC, (sH, 13), (sJ4, 11), (sV4, 9), H0A)
A(f'''buffer_load_dword v46, v8, {srd(WS)}, s{sC} offen sc1
      buffer_load_dword v47, v9, {srd(WUK)}, s{sA} offen
      s_barrier''')
make_tag()
A('s_branch L_qgather')
A.label('L_g0s')
A('s_barrier')
A.label('L_stream')
KF0, QF, KF1, SA, vM = 16, 80, 144, 208, 12
sSA, sSC, sSN = 84, 85, 86
if OPT['rev']:
    sadd(sSA, (sPAIR, 17), (sV4, 15), (sG, 'mul', 31 * 1024))
    A(f's_cmp_eq_u32 s{sG}, 0\ns_cselect_b32 s{sSC}, 1, -1\ns_lshl_b32 s{sSC}, s{sSC}, 10')
else:
    sadd(sSA, (sPAIR, 17), (sV4, 15))
    A(f's_movk_i32 s{sSC}, 1024')
A(f'''s_mul_i32 m0, s{sV4}, {32*PITCH}
      s_mov_b32 s{sSN}, 0''')
def sloop(lab, lim, thr=0):
    A.label(lab)
    if thr: A(f's_waitcnt vmcnt({thr-1})')
    A(f'''buffer_load_dwordx4 v{aL16}, {srd(CKV)}, s{sSA} offen{NTC} lds
          s_add_u32 s{sSA}, s{sSA}, s{sSC}
          s_add_u32 m0, m0, {PITCH}
          s_add_u32 s{sSN}, s{sSN}, 1
          s_cmp_lt_u32 s{sSN}, {lim}
          s_cbranch_scc1 {lab}''')
sloop('L_sl0', '8')
common_addr()
A(f'''v_mul_u32_u24 v8, {PITCH}, v{vI}
      v_add_u32 v{aMXr}, {L_MAX}, v8
      s_lshl_b32 s{sA}, s{sV4}, 2
      v_add_u32 v{aMXw}, s{sA}, v{aMXr}
      v_lshl_add_u32 v8, v{vQ}, 4, v8
      s_mul_i32 s{sA}, s{sV4}, {32*PITCH}
      v_add_u32 v{aKF}, s{sA}, v8
      v_add_u32 v{aQF}, {L_R}, v8
      s_lshl_b32 s{sA}, s{sV4}, 10
      v_add_u32 v{aPw}, s{sA}, v{aP}
      v_mov_b32 v9, -1
      v_mov_b32 v8, {L_PROG}''')
for k in range(4): A(f'v_mov_b32 v{ONES+k}, s{sONES}')
sadd(sHSST, (sG, 15), (sPAIR, 8), HS)
make_tag()
A(f'''s_cmp_lg_u32 s{sWV}, 3
      s_cbranch_scc1 L_noann
      v_mov_b32 v14, s{sXCC}
      s_lshr_b32 s{sC}, s2, 3''')
sadd(sA, (sX8, 8), (sC, 3), HX)
A(f'''s_mov_b64 exec, 1
      buffer_store_dwordx2 v[14:15], v{aL16}, {srd(WS)}, s{sA} offen sc1
      s_mov_b64 exec, -1''')
A.label('L_noann')
A(f'v_mov_b32 v14, s{sT}')
stamp(28)
A(f's_cmp_eq_u32 s{sG}, 0\ns_cselect_b32 s87, {OPT["prog0"]}, {OPT["prog1"]}')
sloop('L_sl1', 's87', OPT['inf1'])
A('ds_write_b32 v8, v9')
stamp(5)
sloop('L_sl2', '32', OPT['inf2'])
stamp(6)
A('s_waitcnt vmcnt(16)')
for s in range(16): A(f'ds_read_b128 {vr(KF0+4*s,4)}, v{aKF} offset:{64*s}')
A('s_waitcnt vmcnt(0)')
stamp(7)
for s in range(16): A(f'ds_read_b128 {vr(KF1+4*s,4)}, v{aKF} offset:{16*PITCH + 64*s}')
lds_wait(L_QFLAG, 4, 244, sleep=0)
stamp(8)
for s in range(16): A(f'ds_read_b128 {vr(QF+4*s,4)}, v{aQF} offset:{64*s}')
for s in range(16):
    A(f's_waitcnt lgkmcnt({15-s})')
    mfma32(SA, KF0 + 4 * s, QF + 4 * s, '0' if s == 0 else None)
    mfma32(SA + 4, KF1 + 4 * s, QF + 4 * s, '0' if s == 0 else None)
ow_tags()
A(f'v_max3_f32 v{vM}, v{SA}, v{SA+1}, v{SA+2}\nv_max_f32 v{vM}, v{vM}, v{SA+3}')
A(f'v_max3_f32 v{vM}, v{vM}, v{SA+4}, v{SA+5}\nv_max3_f32 v{vM}, v{vM}, v{SA+6}, v{SA+7}')
swap_red(vM, 13, 'v_max_f32', 16)
swap_red(vM, 13, 'v_max_f32', 32)
stamp(23)
A(f'''ds_write_b32 v{aMXw}, v{vM}
      s_waitcnt lgkmcnt(0)
      s_barrier
      ds_read_b128 v[244:247], v{aMXr}''')
v_reads(0)
A(f'''s_waitcnt lgkmcnt(8)
      v_max3_f32 v{vM}, v244, v245, v246
      v_max_f32 v{vM}, v{vM}, v247''')
for k in range(8): A(f'v_sub_f32 v{SA+k}, v{SA+k}, v{vM}')
for k in range(8): A(f'v_exp_f32 v{SA+k}, v{SA+k}')
for k in range(4): A(f'v_cvt_pk_bf16_f32 v{244+k}, v{SA+2*k}, v{SA+2*k+1}')
A(f'ds_write_b128 v{aPw}, v[244:247]\ns_waitcnt lgkmcnt(0)\ns_barrier')
stamp(10)
p_reads()
v_reads(1)
A(f's_cmp_lg_u32 s{sWV}, 0')
for s in range(4):
    A(f's_waitcnt lgkmcnt({[11, 8, 8, 0][s]})')
    for ct in range(4): mfma32(PA + 4 * ct, VF + (s * 4 + ct) * 4, PF + 4 * s, '0' if s == 0 else None)
    if s == 0:
        A('s_waitcnt lgkmcnt(7)')
        v_reads(2)
        A('s_cbranch_scc1 L_nol')
        for s2 in range(4): mfma32(LA, ONES, PF + 4 * s2, '0' if s2 == 0 else None)
        A.label('L_nol')
    if s == 1: v_reads(3)
    if s == 2 and not OPT['statlate']:
        A(f'''s_cbranch_scc1 L_nolse
              v_mov_b32 v13, v{LA}
              s_mov_b64 exec, 0xffff
              buffer_store_dwordx4 v[12:15], v{aL16}, {srd(WS)}, s{sHSST} offen sc1
              s_mov_b64 exec, -1''')
        A.label('L_nolse')
if OPT['statlate'] == 3:
    A(f'''s_cbranch_scc1 L_pvout
          v_mov_b32 v13, v{LA}
          s_mov_b64 exec, 0xffff
          buffer_store_dwordx4 v[12:15], v{aL16}, {srd(WS)}, s{sHSST} offen sc1
          s_mov_b64 exec, -1''')
A('s_branch L_pvout')

A.label('L_exit')
A('s_endpgm')

ref = open('cdna_kernels/%s.s.ref' % NAME).read().split('\n')
head = []
for ln in ref:
    if ln.startswith('; @launch'):
        head.append('; @launch grid=(256,1,1) block=(512,1,1) lds=%d' % LDS_BYTES); break
    head.append(ln)
out = '\n'.join(head) + f"""
.amdgcn_target "amdgcn-amd-amdhsa--gfx950"
.text
.globl {NAME}_kernel
.p2align 8
.type {NAME}_kernel,@function
{NAME}_kernel:
""" + A.text() + f""".section .rodata,"a"
.p2align 6
.amdhsa_kernel {NAME}_kernel
  .amdhsa_next_free_vgpr 256
  .amdhsa_next_free_sgpr 102
  .amdhsa_accum_offset 256
  .amdhsa_group_segment_fixed_size 0
  .amdhsa_kernarg_size 104
  .amdhsa_user_sgpr_count 2
  .amdhsa_user_sgpr_kernarg_segment_ptr 1
  .amdhsa_system_sgpr_workgroup_id_x 1
.end_amdhsa_kernel
"""
out = out.replace('CODE_BYTES', 'L_exit-L_pc')
open(sys.argv[1], 'w').write(out)
```

```python
import sys, math, struct
from asmlib import Asm, vr, sr

NAME = 'sequential_preLN__compressed_kv_cla__glu_gated_reglu__decode'
OPT = dict(wqpf=0, wukpos=2, g1pf=0, n0=6, rdel=12, late=1, statlate=3, helper=0, trig=13, pd=1, pd3=1, wod=0, hspre=1, ackbar=1, prog1=20, ffnpf=0, qrot=1, cpf=1, ffnwait=0, fix=0, fixat=63, rev=2, wukd=0, inf1=0, inf2=0, pf_nt=0, h3pre=1, kl=5, debug=0, prog0=26, ckv_nt=0, w_nt=0, limit=20000, ka=8, qsleep=4)
for a in sys.argv[2:]:
    k, v = a.split('='); OPT[k] = int(v)
DEBUG = OPT['debug']

H0A, H0B, H1, HS = 0x40000, 0x80000, 0xC0000, 0x100000
H4A, HX = 0x120000, 0x130000
HCA = 0x140000
H3, H5, H2, DBG = 0x110000, 0x200000, 0x400000, 0xA00000
WS_BYTES = 0x1000000
PITCH = 1056
L_P = 128 * PITCH
L_R = L_P + 4096
LDS_BYTES = 163840
L_WQ, L_WUK = 0, 36864
L_QO = L_R + 21504
L_XC = L_P
L_XQ = L_R + 17408
def pad(row): return row * PITCH + 1024
L_MAX, L_QFLAG, L_PROG, L_FA, L_FB = pad(72), pad(96), pad(96) + 16, pad(97), pad(97) + 16
WP = 288
L_UV, L_WO, L_CS, L_OL, L_RED, L_WT = 0, 40960, 73728, 122880, 126976, 135168
L_G, L_U, L_D, L_FX = 0, 32768, 65536, 102400
sWV, sT, sE = 3, 4, 5
X, CKV, WQ, WUK, WUV, WO, WG, WU, WD, OUT, WS = 8, 12, 16, 20, 24, 28, 32, 36, 40, 44, 48
sH, sJ4, sB, sX8, sG, sPAIR, sV4, sR = 52, 53, 54, 55, 56, 57, 58, 59
sCNT, sA, sBt, sC, sD = 60, 61, 62, 63, 64
sP0, sP1, sP2, sP3 = 65, 66, 67, 68
sH2ST, sHSST, sFS = 72, 73, 74
sONES = 82
sLOC, sXCC = 88, 89
sST = 90
def srd(b): return sr(b, 4)
vL, vQ, vI, vB4, vU, vT = 1, 2, 3, 4, 5, 15
aL16, aVF0, aVF1, aP, aSR, aST, aSW = 228, 229, 230, 231, 233, 232, 252
aKF, aQF, aMXr, aMXw, aPw, aHS = 237, 238, 239, 240, 241, 242
vSTAMP = 255
NTC = ' nt' if OPT['ckv_nt'] else ''
NTW = ' nt' if OPT['w_nt'] else ''
def f32(x): return '0x%08x' % struct.unpack('<I', struct.pack('<f', x))[0]
A = Asm()

def stamp(i):
    if OPT['fix'] and i == OPT['fixat']:
        lab = A.newlab('Lfix')
        A.label(lab)
        A(f'''s_memrealtime s[{sST}:{sST+1}]
              s_waitcnt lgkmcnt(0)
              s_sub_u32 s{sST}, s{sST}, s{sST+2}
              s_cmp_lt_u32 s{sST}, {OPT['fix']}
              s_cbranch_scc1 {lab}''')
    if DEBUG:
        A(f'''s_memrealtime s[{sST}:{sST+1}]
              s_waitcnt lgkmcnt(0)
              v_writelane_b32 v{vSTAMP}, s{sST}, {i}''')
def stampcnt(i):
    if DEBUG: A(f's_add_u32 s{sST}, s{sCNT}, 1\nv_writelane_b32 v{vSTAMP}, s{sST}, {i}')

def endwave():
    if not DEBUG: stamp(63)
    if DEBUG:
        stamp(63)
        A(f's_memtime s[{sST}:{sST+1}]\ns_waitcnt lgkmcnt(0)\ns_sub_u32 s{sST}, s{sST}, s{sST+4}\nv_writelane_b32 v{vSTAMP}, s{sST}, 47')
        A(f'''s_mov_b64 exec, -1
              s_lshl_b32 s{sA}, s2, 3
              s_add_u32 s{sA}, s{sA}, s{sWV}
              s_lshl_b32 s{sA}, s{sA}, 8
              s_add_u32 s{sA}, s{sA}, {DBG}
              v_lshlrev_b32 v6, 2, v{vL}
              buffer_store_dword v{vSTAMP}, v6, {srd(WS)}, s{sA} offen''')
    if DEBUG == 2:
        ids = [0, 3, 5, 6, 8, 9, 10, 11, 13, 14, 15, 16, 18, 19, 20, 63]
        A(f'''s_lshl_b32 s{sA}, s2, 3
              s_add_u32 s{sA}, s{sA}, s{sWV}
              s_cmp_lg_u32 s{sA}, 0
              s_cbranch_scc1 L_nodbg
              s_load_dwordx2 s[96:97], s[0:1], 88
              s_mov_b32 s98, 256
              s_mov_b32 s99, 0x00020000
              v_mov_b32 v7, 0''')
        for k, i in enumerate(ids):
            A(f'v_readlane_b32 s{sA}, v{vSTAMP}, {i}\ns_sub_u32 s{sA}, s{sA}, s{sST+2}\nv_writelane_b32 v7, s{sA}, {k}')
        A(f'''s_waitcnt lgkmcnt(0)
              buffer_store_dword v7, v6, s[96:99], 0 offen''')
        A.label('L_nodbg')
    A('s_endpgm')

def set_exec(mask32): A(f's_mov_b32 exec_lo, 0x{mask32:08x}\ns_mov_b32 exec_hi, 0x{mask32:08x}')
def full_exec(): A('s_mov_b64 exec, -1')

def check_tags(tags, tmp):
    acc, t1, t2 = tmp, tmp + 1, tmp + 2
    tags = list(tags)
    if len(tags) == 1:
        A(f'v_cmp_ne_u32 vcc, v{tags[0]}, v{vT}'); return
    if len(tags) % 2: tags.append(tags[-1])
    prs = [(tags[i], tags[i + 1]) for i in range(0, len(tags), 2)]
    A(f'v_bitop3_b32 v{acc}, v{prs[0][0]}, v{prs[0][1]}, v{vT} bitop3:0x7e')
    rest = prs[1:]
    while rest:
        if len(rest) >= 2:
            A(f'v_bitop3_b32 v{t1}, v{rest[0][0]}, v{rest[0][1]}, v{vT} bitop3:0x7e')
            A(f'v_bitop3_b32 v{t2}, v{rest[1][0]}, v{rest[1][1]}, v{vT} bitop3:0x7e')
            A(f'v_or3_b32 v{acc}, v{acc}, v{t1}, v{t2}')
            rest = rest[2:]
        else:
            A(f'v_bitop3_b32 v{t1}, v{rest[0][0]}, v{rest[0][1]}, v{vT} bitop3:0x7e')
            A(f'v_or_b32 v{acc}, v{acc}, v{t1}')
            rest = rest[1:]
    A(f'v_cmp_ne_u32 vcc, 0, v{acc}')

def poll(loads, tags, tmp, onfail='', between=None, late=None, pre_late='', late_ok=None):
    L, D = A.newlab('Lpoll'), A.newlab('Lpok')
    A(f's_mov_b32 s{sCNT}, 0')
    A(loads)
    if between: between()
    A.label(L)
    A('s_waitcnt vmcnt(0)')
    check_tags(tags, tmp)
    A(f'''s_cmp_eq_u64 vcc, 0
          s_cbranch_scc1 {D}
          s_add_u32 s{sCNT}, s{sCNT}, 1''')
    if late:
        l2 = A.newlab('Lnl')
        A(f's_cmp_lg_u32 s{sCNT}, {OPT["kl"]}\ns_cbranch_scc1 {l2}')
        late()
        A.label(l2)
    A(onfail)
    A(loads)
    A(f'''s_cmp_lt_u32 s{sCNT}, {OPT['limit']}
          s_cbranch_scc1 {L}
          s_waitcnt vmcnt(0)''')
    A.label(D)
    A(pre_late)
    if late_ok: late_ok()
    elif late: late()

def mpoll(groups, init, MK, tmp, between=None):
    L, D = A.newlab('Lmp'), A.newlab('Lmok')
    A(f's_mov_b32 s{sCNT}, 0\ns_mov_b32 exec_lo, {init[0]}\ns_mov_b32 exec_hi, {init[1]}')
    for ld, tg in groups: A(ld)
    if between:
        full_exec(); between(); A(f's_mov_b32 exec_lo, {init[0]}\ns_mov_b32 exec_hi, {init[1]}')
    A.label(L)
    A('s_waitcnt vmcnt(0)')
    for k, (ld, tg) in enumerate(groups):
        if len(tg) == 2: A(f'v_bitop3_b32 v{tmp+k}, v{tg[0]}, v{tg[1]}, v{vT} bitop3:0x7e')
    for k, (ld, tg) in enumerate(groups):
        if len(tg) == 2: A(f'v_cmp_ne_u32 s[{MK+2*k}:{MK+2*k+1}], 0, v{tmp+k}')
        else: A(f'v_cmp_ne_u32 s[{MK+2*k}:{MK+2*k+1}], v{tg[0]}, v{vT}')
    n = len(groups)
    A(f's_or_b64 s[6:7], s[{MK}:{MK+1}], s[{MK+2*(n>1)}:{MK+2*(n>1)+1}]')
    for k in range(2, n): A(f's_or_b64 s[6:7], s[6:7], s[{MK+2*k}:{MK+2*k+1}]')
    A(f's_cbranch_scc0 {D}')
    for k, (ld, tg) in enumerate(groups):
        sk = A.newlab('Lsk')
        A(f's_mov_b64 exec, s[{MK+2*k}:{MK+2*k+1}]\ns_cbranch_execz {sk}')
        A(ld)
        A.label(sk)
    A(f'''s_mov_b32 exec_lo, {init[0]}
          s_mov_b32 exec_hi, {init[1]}
          s_add_u32 s{sCNT}, s{sCNT}, 1
          s_cmp_lt_u32 s{sCNT}, {OPT['limit']}
          s_cbranch_scc1 {L}
          s_waitcnt vmcnt(0)''')
    A.label(D)
    full_exec()

def ppoll(load, sets, tagoff, dst, ncopy, exec_hi='-1'):
    L, D = A.newlab('Lpp'), A.newlab('Lppok')
    nd = len(sets)
    A(f's_mov_b32 s{sCNT}, 0\ns_mov_b32 exec_hi, {exec_hi}')
    for k, r in enumerate(sets):
        A(load.format(r=vr(r, 4)))
        if k < nd - 1: A('s_sleep 2')
    A.label(L)
    oks = [A.newlab('Lppk') for _ in sets]
    for k, r in enumerate(sets):
        A(f'''s_waitcnt vmcnt({nd-1})
              v_cmp_ne_u32 vcc, v{r+tagoff}, v{vT}
              s_cmp_eq_u64 vcc, 0
              s_cbranch_scc1 {oks[k] if r != dst else D}''')
        A(load.format(r=vr(r, 4)))
    A(f'''s_add_u32 s{sCNT}, s{sCNT}, 1
          s_cmp_lt_u32 s{sCNT}, {OPT['limit']}
          s_cbranch_scc1 {L}
          s_waitcnt vmcnt(0)
          s_branch {D}''')
    for k, r in enumerate(sets):
        if r == dst: continue
        A.label(oks[k])
        for c in ncopy: A(f'v_mov_b32 v{dst+c}, v{r+c}')
        if k < nd - 1: A(f's_branch {D}')
    A.label(D)
    A('s_mov_b32 exec_hi, -1')

def loc_issue(reg):
    sadd(sA, (sX8, 8), HX)
    A(f'''v_and_b32 v6, 31, v{vL}
          v_lshlrev_b32 v6, 3, v6
          buffer_load_dwordx2 {vr(reg,2)}, v6, {srd(WS)}, s{sA} offen sc1''')
def loc_eval(reg):
    A(f'''v_cmp_ne_u32 vcc, s{sXCC}, v{reg}
          v_cmp_ne_u32 s[6:7], v{reg+1}, v{vT}
          s_or_b64 vcc, vcc, s[6:7]
          s_cselect_b32 s{sLOC}, 0, 1''')
def loc_store(text):
    a, b = A.newlab('Lls'), A.newlab('Lle')
    A(f's_cmp_eq_u32 s{sLOC}, 0\ns_cbranch_scc1 {a}\n{text}\ns_branch {b}')
    A.label(a)
    A(text + ' sc1')
    A.label(b)

def toggle(regs, x):
    lab = A.newlab('Lnt')
    return f's_cmp_lt_u32 s{sCNT}, {OPT["ka"]}\ns_cbranch_scc1 {lab}\n' + ''.join(f's_xor_b32 s{r}, s{r}, {x}\n' for r in regs) + f'{lab}:'

def lds_wait(addr, n, tmp, sleep=1, cnt=None):
    sCNT = cnt or globals()['sCNT']
    L, D = A.newlab('Llw'), A.newlab('Llok')
    A(f's_mov_b32 s{sCNT}, 0\nv_mov_b32 v{tmp+7}, {addr}')
    A.label(L)
    if n == 1:
        A(f'ds_read_b32 v{tmp}, v{tmp+7}\ns_waitcnt lgkmcnt(0)')
    else:
        A(f'ds_read_b128 {vr(tmp,4)}, v{tmp+7}\ns_waitcnt lgkmcnt(0)')
        A(f'v_bitop3_b32 v{tmp}, v{tmp}, v{tmp+1}, v{tmp+2} bitop3:0x80\nv_and_b32 v{tmp}, v{tmp}, v{tmp+3}')
    A(f'''v_cmp_ne_u32 vcc, -1, v{tmp}
          s_cmp_eq_u64 vcc, 0
          s_cbranch_scc1 {D}
          {'s_sleep %d' % sleep if sleep else ''}
          s_add_u32 s{sCNT}, s{sCNT}, 1
          s_cmp_lt_u32 s{sCNT}, {OPT['limit']*8}
          s_cbranch_scc1 {L}''')
    A.label(D)

def make_tag():
    A(f'''s_waitcnt lgkmcnt(0)
          s_add_u32 s{sT}, s{sE}, 0x9e3779b9
          v_mov_b32 v{vT}, s{sT}''')

def swap_red(a, t, op, which):
    A(f'v_mov_b32 v{t}, v{a}\nv_permlane{which}_swap_b32 v{a}, v{t}\n{op} v{a}, v{a}, v{t}')
def row_red(a, op):
    for n in (1, 2, 4, 8):
        A(f'{op}_dpp v{a}, v{a}, v{a} row_ror:{n} row_mask:0xf bank_mask:0xf')

def mfma32(d, a, b, c=None):
    A(f'v_mfma_f32_16x16x32_bf16 {vr(d,4)}, {vr(a,4)}, {vr(b,4)}, {vr(d,4) if c is None else c}')

def sadd(dst, *terms):
    const = sum(t for t in terms if isinstance(t, int))
    first = True
    for t in terms:
        if isinstance(t, int): continue
        tgt = dst if first else sBt
        if len(t) == 3: A(f's_mul_i32 s{tgt}, s{t[0]}, {t[2]}')
        elif t[1] == 0:
            if first: A(f's_mov_b32 s{dst}, s{t[0]}')
            else: A(f's_add_u32 s{dst}, s{dst}, s{t[0]}'); continue
        else: A(f's_lshl_b32 s{tgt}, s{t[0]}, {t[1]}')
        if not first: A(f's_add_u32 s{dst}, s{dst}, s{sBt}')
        first = False
    if const: A(f's_add_u32 s{dst}, s{dst}, {const}')

if DEBUG or OPT['fix']: A(f's_memrealtime s[{sST+2}:{sST+3}]\ns_memtime s[{sST+4}:{sST+5}]')
A(f'''s_cmp_ge_u32 s2, 256
      s_cbranch_scc1 L_exit
      s_load_dwordx2 s[{CKV}:{CKV+1}], s[0:1], 8
      s_load_dwordx2 s[{X}:{X+1}], s[0:1], 0
      s_load_dwordx2 s[{WQ}:{WQ+1}], s[0:1], 16
      s_load_dwordx2 s[{WUK}:{WUK+1}], s[0:1], 24
      s_load_dwordx2 s[{WS}:{WS+1}], s[0:1], 96
      v_lshrrev_b32 v6, 6, v0
      v_and_b32 v{vL}, 63, v0
      v_readfirstlane_b32 s{sWV}, v6
      v_lshrrev_b32 v{vQ}, 4, v{vL}
      v_and_b32 v{vI}, 15, v{vL}
      v_and_b32 v{vB4}, 3, v{vL}
      v_lshrrev_b32 v{vU}, 2, v{vI}
      v_lshlrev_b32 v{aL16}, 4, v{vL}
      v_and_b32 v8, 7, v{vL}
      v_bfe_u32 v9, v{vL}, 3, 1
      v_mul_u32_u24 v9, {PITCH}, v9
      v_lshl_add_u32 v8, v8, 2, v9
      v_add_u32 v8, {L_QFLAG}, v8
      v_mov_b32 v9, 0
      ds_write_b32 v8, v9
      v_bfe_u32 v6, v{vL}, 2, 1
      v_lshlrev_b32 v243, 10, v{vB4}
      v_lshl_add_u32 v243, v6, 5, v243''')
if OPT['cpf']:
    A(f'''s_getpc_b64 s[6:7]
          L_pc:
          s_bfe_u32 s{sA}, s2, 0x10003
          s_lshl_b32 s{sA}, s{sA}, 13
          v_lshl_add_u32 v8, v{vL}, 7, s{sA}
          s_cmp_lg_u32 s{sWV}, 3
          s_cbranch_scc1 L_nocpf
          s_cmp_ge_u32 s2, 32
          s_cbranch_scc1 L_nocpf
          v_cmp_gt_u32 vcc, CODE_BYTES, v8
          s_and_b64 exec, exec, vcc
          s_cbranch_execz L_nocpf2
          global_load_dword v201, v8, s[6:7]''')
    A.label('L_nocpf2')
    A('s_mov_b64 exec, -1')
    A.label('L_nocpf')
for b, n in ((X, 4096), (CKV, 1 << 24), (WQ, 1 << 22), (WUK, 1 << 22), (WUV, 1 << 22), (WO, 1 << 22), (WG, 1835008),
             (WU, 1835008), (WD, 1835008), (OUT, 4096), (WS, WS_BYTES)):
    A(f's_mov_b32 s{b+2}, {n}\ns_mov_b32 s{b+3}, 0x00020000')
A(f'''s_and_b32 s{sX8}, s2, 7
      s_bfe_u32 s{sR}, s2, 0x40003
      s_and_b32 s{sC}, s{sR}, 3
      s_lshl2_add_u32 s{sH}, s{sX8}, s{sC}
      s_lshr_b32 s{sJ4}, s{sR}, 2
      s_lshl4_add_u32 s{sPAIR}, s{sX8}, s{sR}
      s_lshr_b32 s{sB}, s{sPAIR}, 5
      s_lshr_b32 s{sG}, s2, 7
      s_and_b32 s{sV4}, s{sWV}, 3
      s_mov_b32 s{sONES}, 0x3f803f80
      s_getreg_b32 s{sXCC}, hwreg(HW_REG_XCC_ID, 0, 4)''')
if DEBUG: A(f'v_mov_b32 v{vSTAMP}, 0\ns_waitcnt lgkmcnt(0)\nv_writelane_b32 v{vSTAMP}, s{sST+2}, 62')
A(f'''s_waitcnt lgkmcnt(0)
      s_load_dword s{sE}, s[{WS}:{WS+1}], 0
      s_load_dwordx2 s[{WUV}:{WUV+1}], s[0:1], 32
      s_load_dwordx2 s[{WO}:{WO+1}], s[0:1], 40
      s_load_dwordx2 s[{WG}:{WG+1}], s[0:1], 56
      s_load_dwordx2 s[{WU}:{WU+1}], s[0:1], 64
      s_load_dwordx2 s[{WD}:{WD+1}], s[0:1], 72
      s_load_dwordx2 s[{OUT}:{OUT+1}], s[0:1], 80
      s_cmp_eq_u32 s{sG}, 0
      s_cbranch_scc1 L_g0front''')

XS, XF, TF, ACC, G1_, UF, XQ, XB = 16, 32, 80, 112, 120, 96, 128, 136
A(f'''s_cmp_lg_u32 s{sWV}, 0
      s_cbranch_scc1 L_nox
      v_lshlrev_b32 v6, 10, v{vQ}
      v_lshl_add_u32 v6, v{vI}, 4, v6
      s_lshl_b32 s{sA}, s{sJ4}, 8''')
for k in range(4):
    A(f'buffer_load_dwordx4 {vr(XS+4*k,4)}, v6, {srd(X)}, s{sA} offen')
    if k < 3: A(f's_add_u32 s{sA}, s{sA}, 256\ns_and_b32 s{sA}, s{sA}, 1023')
A.label('L_nox')
A(f'''v_lshlrev_b32 v7, 1, v{vQ}
      v_xor_b32 v7, v7, v{vI}
      v_lshlrev_b32 v7, 4, v7
      v_lshl_add_u32 v7, v{vQ}, 13, v7''')
sadd(sD, (sJ4, 20), (sWV, 17), (sH, 8))
A(f's_mul_i32 s{sC}, s{sWV}, {4*1152}\ns_mov_b32 s{sA}, s{sD}')
for n in range(4):
    A(f's_add_u32 m0, s{sC}, {L_WQ + n*1152}')
    A(f'buffer_load_dwordx4 v7, {srd(WQ)}, s{sA} offen{NTW} lds')
    if n < 3: A(f's_add_u32 s{sA}, s{sA}, 0x8000')
stamp(0)
A(f'''v_mul_u32_u24 v9, 1152, v{vQ}
      v_lshl_add_u32 v9, v{vU}, 8, v9
      v_lshl_add_u32 v9, v{vB4}, 3, v9
      v_xor_b32 v8, s{sWV}, v{vU}
      v_lshl_add_u32 v9, v8, 5, v9
      v_mul_u32_u24 v14, 272, v{vB4}
      v_lshl_add_u32 v14, v{vQ}, 3, v14
      v_add_u32 v14, {L_XC}, v14
      v_lshlrev_b32 v11, 8, v{vQ}
      v_lshl_add_u32 v11, v{vB4}, 4, v11
      s_mul_i32 s{sC}, s{sWV}, 4352''')
sadd(sP0, (sH, 13), (sWV, 10), H0A)
sadd(sP1, (sJ4, 6), (sP0, 0))
A(f'''s_xor_b32 s{sP3}, s{sP1}, {H0A ^ H0B}
      v_mul_u32_u24 v8, 1088, v{vU}
      v_lshl_add_u32 v8, v{vB4}, 8, v8
      v_and_b32 v10, 1, v{vQ}
      v_lshl_add_u32 v8, v10, 3, v8
      v_add_u32 v8, s{sC}, v8
      v_lshrrev_b32 v10, 1, v{vQ}
      v_xor_b32 v10, v10, v{vB4}
      v_xor_b32 v124, 2, v10
      v_lshl_add_u32 v10, v10, 4, v8
      v_lshl_add_u32 v124, v124, 4, v8
      v_add_u32 v125, {L_XQ}, v{aL16}
      s_lshr_b32 s{sA}, s{sWV}, 1
      s_lshl_b32 s{sA}, s{sA}, 10
      s_and_b32 s{sBt}, s{sWV}, 1
      s_lshl_b32 s87, s{sBt}, 3
      s_add_u32 s{sA}, s{sA}, s87
      v_add_u32 v126, s{sA}, v125
      v_lshlrev_b32 v127, 4, v{vI}
      v_lshl_add_u32 v127, v{vQ}, 15, v127
      s_lshl_b32 s{sA}, s{sWV}, 5
      s_add_u32 s{sA}, s{sA}, {L_QO}
      v_lshl_add_u32 v152, v{vB4}, 8, s{sA}
      v_lshl_add_u32 v152, v{vQ}, 3, v152
      v_add_u32 v153, {L_QO}, v{aL16}
      v_xor_b32 v7, v{vQ}, v{vI}
      v_lshlrev_b32 v7, 4, v7
      v_lshl_add_u32 v7, v{vQ}, 13, v7''')
sadd(sP2, (sH, 10), (sJ4, 8), H1)
def wuk_dma():
    for n in range(4):
        A(f's_add_u32 m0, s{sC}, {L_WUK + n*1088}')
        A(f'buffer_load_dwordx4 v7, {srd(WUK)}, s{sD} offen{NTW} lds')
        if n < 3: A(f's_add_u32 s{sD}, s{sD}, 0x8000')
make_tag()
A(f'''v_mov_b32 v{G1_+2}, s{sT}
      v_mov_b32 v{G1_+3}, s{sT}
      v_lshl_add_u32 v8, v{vQ}, 1, s87
      v_lshrrev_b32 v154, v8, v{vT}
      v_lshrrev_b32 v155, 1, v154
      s_mov_b32 s86, 0x07060302
      s_mov_b32 s83, 0x00010001''')
A(f's_cmp_lg_u32 s{sWV}, 0\ns_cbranch_scc1 L_noln\ns_waitcnt vmcnt(4)\nv_mov_b32 v12, 0')
for k in range(16): A(f'v_dot2c_f32_bf16 v12, s{sONES}, v{XS+k}')
A(f'v_mul_u32_u24 v6, 272, v{vQ}\nv_lshl_add_u32 v6, v{vI}, 4, v6\nv_add_u32 v6, {L_XC}, v6')
row_red(12, 'v_add_f32')
A(f'v_mul_f32 v12, {f32(-1.0/512)}, v12\nv_mov_b32 v13, v12\nv_mov_b32 v44, 0\nv_mov_b32 v45, 0')
for k in range(16):
    t = 48 + 2 * k
    A(f'''v_lshlrev_b32 v{t}, 16, v{XS+k}
          v_and_b32 v{t+1}, 0xffff0000, v{XS+k}
          v_pk_add_f32 {vr(t,2)}, {vr(t,2)}, v[12:13]''')
    if k < 4: A(f'v_cvt_pk_bf16_f32 v{40+k}, v{t}, v{t+1}')
    if k == 3: A('ds_write_b128 v6, v[40:43]')
    A(f'v_pk_fma_f32 v[44:45], {vr(t,2)}, {vr(t,2)}, v[44:45]')
A('v_add_f32 v12, v44, v45')
row_red(12, 'v_add_f32')
QFIX = 1.0
A(f'''v_mov_b32 v13, {f32(1e-5)}
      v_fmac_f32 v13, {f32(1.0/512)}, v12
      v_rsq_f32 v12, v13
      v_lshlrev_b32 v6, 2, v{vQ}
      v_add_u32 v6, {L_XC+2048}, v6
      v_mul_f32 v12, {f32(128**-0.5*math.log2(math.e)*QFIX)}, v12
      ds_write_b32 v6, v12''')
stamp(21)
A.label('L_noln')
if OPT['wukpos'] == 0: wuk_dma()
A(f'''v_lshlrev_b32 v6, 2, v{vB4}
      v_add_u32 v6, {L_XC+2048}, v6
      s_waitcnt vmcnt({0 if OPT["wukpos"] else 4}) lgkmcnt(0)''')
if OPT['wukpos'] == 2: wuk_dma()
if OPT['g1pf']:
    n = OPT['g1pf']
    sadd(sA, (sPAIR, 17), (sV4, 15), (32 - n) * 1024 - 0)
    A(f'''s_lshr_b32 s{sBt}, s{sWV}, 2
          s_mul_i32 s{sBt}, s{sBt}, {n*512}
          s_add_u32 s{sA}, s{sA}, s{sBt}
          v_lshlrev_b32 v8, 7, v{vL}
          s_mov_b64 exec, {hex((1 << (4*n)) - 1) if n < 8 else '0x7fffffff'}
          buffer_load_dword v200, v8, {srd(CKV)}, s{sA} offen
          s_mov_b64 exec, -1''')
stamp(1)
A('s_barrier')
for s in range(4):
    for hf in range(2):
        A(f'ds_read_b64 {vr(XF+4*s+2*hf,2)}, v14 offset:{64*s + 32*hf}')
        A(f'ds_read_b64_tr_b16 {vr(TF+4*s+2*hf,2)}, v9 offset:{L_WQ + (8*s+4*hf)*1152}')
for s in range(4):
    A(f's_waitcnt lgkmcnt({12-4*s})')
    mfma32(ACC, TF + 4 * s, XF + 4 * s, '0' if s == 0 else None)
A('ds_read_b32 v12, v6')
set_exec(0x000f000f)
A(f'''v_cvt_pk_bf16_f32 v{G1_}, v{ACC}, v{ACC+1}
      v_cvt_pk_bf16_f32 v{G1_+1}, v{ACC+2}, v{ACC+3}
      buffer_store_dwordx4 {vr(G1_,4)}, v11, {srd(WS)}, s{sP1} offen''')
full_exec()
stamp(2)
if OPT['wukpos'] == 1: wuk_dma()
def uf_reads():
    A('s_waitcnt vmcnt(1)')
    for s in range(4):
        A(f'ds_read_b64 {vr(UF+4*s,2)}, v10 offset:{L_WUK + s*64}')
        A(f'ds_read_b64 {vr(UF+4*s+2,2)}, v124 offset:{L_WUK + s*64}')
def fb0():
    set_exec(0x000f000f)
    A(f'buffer_store_dwordx4 {vr(G1_,4)}, v11, {srd(WS)}, s{sP3} offen sc1')
    full_exec()
poll(f'buffer_load_dwordx4 {vr(XQ,4)}, v{aL16}, {srd(WS)}, s{sP0} offen sc1',
     [XQ + 3], 44, onfail=toggle([sP0], H0A ^ H0B), late=fb0, pre_late=f'ds_write_b64 v126, {vr(XQ,2)}', between=uf_reads)
stampcnt(40)
stamp(3)
A('s_waitcnt lgkmcnt(0)\ns_barrier')
for s in range(4): A(f'ds_read_b128 {vr(XB+4*s,4)}, v125 offset:{1024*s}')
for s in range(4):
    A(f's_waitcnt lgkmcnt({3-s})')
    mfma32(ACC, UF + 4 * s, XB + 4 * s, '0' if s == 0 else None)
for r in range(4): A(f'v_add_f32_dpp v{ACC+r}, v{ACC+r}, v{ACC+r} row_ror:4 row_mask:0xf bank_mask:0xf')
for r in range(4): A(f'v_add_f32_dpp v{ACC+r}, v{ACC+r}, v{ACC+r} row_ror:8 row_mask:0xf bank_mask:0xf')
for r in range(4): A(f'v_mul_f32 v{ACC+r}, v12, v{ACC+r}')
for r in range(4): A(f'v_add_u32 v{ACC+r}, 0x10000, v{ACC+r}')
A(f'''v_perm_b32 v116, v{ACC+1}, v{ACC}, s86
      v_perm_b32 v117, v{ACC+3}, v{ACC+2}, s86
      v_bfi_b32 v116, s83, v154, v116
      v_bfi_b32 v117, s83, v155, v117
      ds_write_b64 v152, v[116:117]
      s_cmp_lt_u32 s{sWV}, 4
      s_waitcnt lgkmcnt(0)
      s_barrier
      s_cbranch_scc1 L_stream
      s_cmp_lg_u32 s{sWV}, 4
      s_cbranch_scc1 L_qgather
      ds_read_b128 v[116:119], v153
      s_waitcnt lgkmcnt(0)
      buffer_store_dwordx4 v[116:119], v127, {srd(WS)}, s{sP2} offen sc1''')
stamp(4)
A.label('L_qgather')

VF, PF, PA, OW, LA, ONES = 16, 80, 96, 112, 216, 220
RB = PF
def common_addr():
    A(f'''v_lshl_add_u32 v{aVF0}, v{vQ}, 2, v{vU}
          v_mul_u32_u24 v{aVF0}, {PITCH}, v{aVF0}
          v_lshl_add_u32 v{aVF0}, v{vB4}, 3, v{aVF0}
          s_lshl_b32 s{sA}, s{sWV}, 7
          v_add_u32 v{aVF0}, s{sA}, v{aVF0}
          v_add_u32 v{aVF1}, {64*PITCH}, v{aVF0}
          v_add_u32 v{aP}, {L_P}, v{aL16}
          s_lshl_b32 s{sA}, s{sWV}, 11
          s_add_u32 s{sA}, s{sA}, {L_R}
          v_add_u32 v{aSR}, s{sA}, v{aL16}
          v_lshl_add_u32 v9, v{vI}, 7, s{sA}
          v_lshlrev_b32 v6, 1, v{vQ}
          v_xor_b32 v6, v6, v{vI}
          v_and_b32 v6, 7, v6
          v_lshl_add_u32 v{aSW}, v6, 4, v9
          v_xor_b32 v{aSW+1}, 16, v{aSW}
          v_lshrrev_b32 v6, 3, v{vL}
          v_xor_b32 v7, v6, v{vL}
          v_and_b32 v7, 7, v7
          v_lshlrev_b32 v7, 4, v7
          v_lshl_add_u32 v{aST}, v6, 17, v7''')
    sadd(sH2ST, (sG, 21), (sWV, 14), (sPAIR, 7), H2)
def v_reads(s):
    for ct in range(4):
        for hf in range(2):
            A(f'ds_read_b64_tr_b16 {vr(VF+(s*4+ct)*4+2*hf,2)}, v{aVF0+(s>>1)} offset:{(s&1)*32*PITCH + hf*16*PITCH + ct*32}')
def p_reads():
    for s in range(4): A(f'ds_read_b128 {vr(PF+4*s,4)}, v{aP} offset:{1024*s}')
TB = 120
def ow_tags():
    A(f'v_and_b32 v6, 1, v{vQ}\nv_lshlrev_b32 v6, 3, v6\nv_lshrrev_b32 v{TBR[0]}, v6, v{vT}\ns_mov_b32 s83, 0x00010001')
    for k in range(1, 8): A(f'v_lshrrev_b32 v{TBR[k]}, {k}, v{TBR[0]}')
TBR = [120, 121, 122, 123, 224, 225, 226, 227]

QG, WR = 16, 124
aLS, aGS, aBIT, aOL, aWTw, aWTr, aHCs, aUV, aOF, aRDw, aRDr, aH3, aCT, aE, aDMP = 192, 193, 194, 195, 196, 197, 198, 199, 200, 202, 203, 204, 206, 210, 212
G4, W4 = 184, 188
aQW = 160
def back_addr():
    A(f'''v_add_u32 v{aOL}, {L_OL}, v{aL16}
          v_lshlrev_b32 v{aHCs}, 8, v{vQ}
          v_lshl_add_u32 v{aHCs}, v{vB4}, 4, v{aHCs}
          v_lshl_add_u32 v7, v{vQ}, 2, v{vU}
          v_mul_u32_u24 v{aUV}, {16*WP + 128}, v{vQ}
          v_mul_u32_u24 v6, {WP}, v{vU}
          v_add_u32 v{aUV}, v{aUV}, v6
          v_lshl_add_u32 v{aUV}, v{vB4}, 3, v{aUV}
          s_lshl_b32 s{sA}, s{sWV}, 5
          v_add_u32 v{aUV}, s{sA}, v{aUV}
          v_lshlrev_b32 v7, 6, v7
          v_lshl_add_u32 v7, v{vB4}, 3, v7
          v_and_b32 v6, 1, v{vQ}
          v_lshl_add_u32 v7, v6, 5, v7
          s_lshl_b32 s{sA}, s{sWV}, 12
          s_add_u32 s{sA}, s{sA}, {L_WO}
          v_add_u32 v{aOF}, s{sA}, v7
          v_xor_b32 v{aOF+1}, 32, v{aOF}
          s_lshl_b32 s{sA}, s{sWV}, 10
          s_add_u32 s{sA}, s{sA}, {L_RED}
          v_add_u32 v{aRDw}, s{sA}, v{aL16}
          v_lshrrev_b32 v6, 1, v{vU}
          v_lshl_add_u32 v{aRDr}, v6, 12, v{aL16}
          v_add_u32 v{aRDr}, {L_RED}, v{aRDr}
          v_and_b32 v6, 7, v{vL}
          v_lshlrev_b32 v6, 4, v6
          v_lshl_add_u32 v{aH3}, v{vQ}, 10, v6''')
    sadd(76, (sX8, 15), (sWV, 12), HCA)
    sadd(77, (sH, 13), (sWV, 10), (sJ4, 6), HCA)
    sadd(79, (sR, 12), (sX8, 7), H3)
    for k in range(4): A(f'v_mov_b32 v{G4+k}, s{sT}')
    A(f'v_mov_b32 v{W4}, s{sT}\nv_mov_b32 v{W4+1}, s{sT}')
common_addr()
A(f's_lshl1_add_u32 s{sC}, s{sB}, s{sG}')
sadd(sP0, (sC, 14), H1)
sQ = 16
A(f'v_add_u32 v11, {L_R}, v{aL16}')
if OPT['qrot']: A(f's_lshl2_add_u32 s{sD}, s{sV4}, s{sR}')
else: A(f's_lshl_b32 s{sD}, s{sV4}, 2')
for k in range(4):
    A(f'''s_add_u32 s{sA}, s{sD}, {k}
          s_and_b32 s{sA}, s{sA}, 15
          s_lshl_b32 s{sBt}, s{sA}, 10
          s_add_u32 s{sQ+k}, s{sBt}, s{sP0}
          s_mul_i32 s{sA}, s{sA}, {PITCH}
          v_add_u32 v{aQW+k}, s{sA}, v11
          v_lshl_add_u32 v6, v{vB4}, 2, {k}
          v_lshrrev_b32 v6, v6, v{vT}
          v_and_b32 v{aQW+4+k}, 0x00010001, v6''')
A(f'''s_lshl_b32 s{sA}, s{sV4}, 2
      s_add_u32 s{sA}, s{sA}, {L_QFLAG}
      v_mov_b32 v12, s{sA}
      v_and_b32 v9, 1, v{vL}
      v_lshlrev_b32 v9, 7, v9
      v_lshrrev_b32 v13, 1, v{vL}
      v_lshl_add_u32 v10, v13, 10, v9
      v_lshlrev_b32 v9, 4, v{vI}
      v_lshl_add_u32 v9, v{vQ}, 13, v9''')
ow_tags()
sadd(sP2, (sJ4, 20), (sV4, 18), (sH, 8))
sadd(sP3, (sH, 17), (sV4, 15), (sJ4, 8))
sadd(sA, (sH, 13), (sJ4, 11), (sV4, 9), HCA)
A(f's_lshr_b32 s{sC}, s{sH}, 4\ns_and_b32 s{sD}, s{sH}, 15')
sadd(sP0, (sC, 15), (sV4, 13), (sD, 4), HS)
A(f'''s_cmp_lg_u32 s{sG}, 0
      s_cbranch_scc1 L_nopre
      v_lshlrev_b32 v8, 7, v{vB4}
      buffer_load_dword v47, v8, {srd(WS)}, s{sA} offen sc1
      v_and_b32 v8, 1, v{vL}
      v_lshlrev_b32 v8, 8, v8''')
sadd(sA, (sC, 15), (sR, 11), (sV4, 9), (sD, 4), HS)
if OPT['hspre']: A(f'buffer_load_dword v46, v8, {srd(WS)}, s{sA} offen sc1')
A.label('L_nopre')
lds_wait(L_PROG, 1, 48)
stamp(5)
def gather_addr():
    back_addr()
    A(f's_lshl2_add_u32 s{sC}, s{sH}, s{sJ4}\ns_lshl3_add_u32 s{sC}, s{sC}, s{sV4}')
    sadd(sP1, (sC, 12), H2)
    A(f'''v_and_b32 v6, 31, v{vL}
          v_lshlrev_b32 v{aLS}, 8, v6
          s_lshl_b32 s85, s{sV4}, 13
          s_add_u32 s85, s85, {L_CS}
          s_lshl_b32 s{sA}, s{sWV}, 6
          s_add_u32 s{sA}, s{sA}, {L_WT}
          v_lshl_add_u32 v{aWTw}, v6, 1, s{sA}
          v_lshl_add_u32 v{aWTr}, v{vQ}, 3, s{sA}
          s_lshl_b32 s84, 0x11111111, s{sV4}
          v_mul_u32_u24 v{aDMP}, {WP}, v{vQ}
          v_lshl_add_u32 v{aDMP}, v{vI}, 4, v{aDMP}
          s_mul_i32 s{sA}, s{sV4}, {32*WP + 256}
          v_add_u32 v{aDMP}, s{sA}, v{aDMP}
          v_lshlrev_b32 v6, 5, v{vQ}
          v_xor_b32 v{aGS}, v6, v{aL16}
          v_lshrrev_b32 v6, 3, v{vL}
          v_lshlrev_b32 v{aBIT}, v6, 1
          v_lshrrev_b32 v6, 1, v{vI}
          v_and_b32 v7, 1, v{vI}
          v_lshl_add_u32 v6, v7, 4, v6
          v_bfe_u32 v7, v{vT}, v6, 1
          v_mul_u32_u24 v{aE}, 0x10001, v7
          v_add_u32 v6, 8, v6
          v_bfe_u32 v7, v{vT}, v6, 1
          v_mul_u32_u24 v{aE+1}, 0x10001, v7
          v_lshl_add_u32 v6, v{vQ}, 2, v{vU}
          v_bfe_u32 v7, v6, 1, 2
          v_lshl_add_u32 v6, v6, 7, s85
          v_lshl_add_u32 v6, v{vB4}, 3, v6''')
    for t in range(4):
        A(f'v_xor_b32 v{aCT+t}, {t}, v7\nv_lshl_add_u32 v{aCT+t}, v{aCT+t}, 5, v6')
loads = ''.join(f'buffer_load_dwordx4 {vr(QG+4*k,4)}, v{aL16}, {srd(WS)}, s{sQ+k} offen sc1\n' for k in range(4))
A(f's_mov_b32 s{sCNT}, 0')
A(loads)
gather_addr()
A.label('L_qp')
A('v_mov_b32 v48, 0')
for k in range(4):
    A(f's_waitcnt vmcnt({3-k})')
    for c in range(4): A(f'v_xor_b32 v{QG+4*k+c}, v{QG+4*k+c}, v{aQW+4+c}')
    A(f'ds_write_b128 v{aQW+k}, {vr(QG+4*k,4)}')
    A(f'v_or3_b32 v48, v48, v{QG+4*k}, v{QG+4*k+1}\nv_or3_b32 v48, v48, v{QG+4*k+2}, v{QG+4*k+3}')
A(f'''v_and_b32 v48, s83, v48
      v_cmp_ne_u32 vcc, 0, v48
      s_cmp_eq_u64 vcc, 0
      s_cbranch_scc1 L_qok
      s_add_u32 s{sCNT}, s{sCNT}, 1
      s_sleep {OPT["qsleep"]}
      s_waitcnt lgkmcnt(0)''')
A(loads)
A(f'''s_cmp_lt_u32 s{sCNT}, {OPT['limit']}
      s_cbranch_scc1 L_qp''')
A.label('L_qok')
A('v_mov_b32 v48, -1\ns_waitcnt lgkmcnt(0)\nds_write_b32 v12, v48')
stampcnt(41)
stamp(8)
NTP = ' nt' if OPT['pf_nt'] else ''
def late_loads():
    A(f'''s_cmp_lg_u32 s{sG}, 0
          s_cbranch_scc1 L_nolate''')
    for n in range(8):
        A(f'buffer_load_dwordx4 {vr(WR+4*n,4)}, v213, {srd(WUV)}, s{sP2} offen{NTW}')
        if n < 7: A(f's_add_u32 s{sP2}, s{sP2}, 0x8000')
    A('s_branch L_late_done')
    A.label('L_nolate')
    A(f'buffer_load_dword v124, v214, {srd(WO)}, s{sP3} offen{NTP}')
    A.label('L_late_done')
A('v_mov_b32 v213, v9\nv_mov_b32 v214, v10')
loc_issue(180)
if OPT['late'] == 1: late_loads()
stamp(9)
A(f'''v_mul_u32_u24 v9, 3584, v{vU}
      v_lshl_add_u32 v9, v{vB4}, 7, v9
      v_lshlrev_b32 v10, 7, v{vL}
      s_lshr_b32 s{sD}, s2, 3''')
sadd(sA, (sD, 'mul', 16 * 3584), (sV4, 'mul', 4 * 3584), (sX8, 'mul', 448))
sadd(sC, (sX8, 'mul', 7 * 32768), (sD, 'mul', 7168), (sV4, 'mul', 1792))
def ffn_pf():
    A(f'''s_mov_b64 exec, 0xffff
          buffer_load_dword v156, v9, {srd(WG)}, s{sA} offen{NTP}
          buffer_load_dword v157, v9, {srd(WU)}, s{sA} offen{NTP}
          s_mov_b64 exec, 0x3fff
          buffer_load_dword v158, v10, {srd(WD)}, s{sC} offen{NTP}
          s_mov_b64 exec, -1''')
if OPT['ffnpf'] == 2: ffn_pf()
A('s_waitcnt lgkmcnt(0)\ns_barrier')
for s in range(4): v_reads(s)
if OPT['ffnpf'] == 1: ffn_pf()
if OPT['late'] == 2: late_loads()
A('s_barrier')
stamp(10)
p_reads()
for s in range(4):
    A(f's_waitcnt lgkmcnt({3-s})')
    for ct in range(4): mfma32(PA + 4 * ct, VF + (s * 4 + ct) * 4, PF + 4 * s, '0' if s == 0 else None)

A.label('L_pvout')
stamp(22)
A('s_nop 4')
for dd in range(8):
    A(f'v_cvt_pk_bf16_f32 v{OW+dd}, v{PA+2*dd}, v{PA+2*dd+1}')
    A(f'v_bfi_b32 v{OW+dd}, s83, v{TBR[dd]}, v{OW+dd}')
    if dd in (3, 7): A(f'ds_write_b128 v{aSW+dd//4}, {vr(OW+dd-3,4)}')
UVF, OF = 16, 32
LS, WF, CF, CA, OLW = 48, 52, 76, 100, 120
CF2, CA2, OLW2 = 16, 160, 56
END = 's_branch L_end' if DEBUG else 's_endpgm'
A(f's_add_u32 s{sA}, s{sH2ST}, 0x100000\ns_waitcnt lgkmcnt(0)')
for k in range(2): A(f'ds_read_b128 {vr(16+4*k,4)}, v{aSR} offset:{1024*k}')
for k in range(2):
    A(f's_waitcnt lgkmcnt({1-k})')
    A(f'buffer_store_dwordx4 {vr(16+4*k,4)}, v{aST}, {srd(WS)}, s{[sH2ST, sA][k]} offen sc1')
if OPT['statlate'] in (1, 2):
    A(f'''s_cmp_lg_u32 s{sWV}, 0
          s_cbranch_scc1 L_nolse
          v_mov_b32 v13, v{LA}
          {'s_waitcnt vmcnt(0)' if OPT['statlate']==2 else ''}
          s_mov_b64 exec, 0xffff
          buffer_store_dwordx4 v[12:15], v{aL16}, {srd(WS)}, s{sHSST} offen sc1
          s_mov_b64 exec, -1''')
    A.label('L_nolse')
stamp(11)
A(f'''s_cmp_ge_u32 s{sWV}, 4
      s_barrier
      s_cbranch_scc1 L_nostore
      s_cmp_lg_u32 s{sG}, 0
      s_cbranch_scc1 L_g1w03''')
def wo_dma():
    A(f'''v_lshrrev_b32 v6, 2, v{vL}
          v_and_b32 v7, 1, v{vQ}
          v_lshlrev_b32 v7, 1, v7
          v_xor_b32 v7, v7, v{vB4}
          v_lshlrev_b32 v7, 4, v7
          v_lshl_add_u32 v6, v6, 10, v7
          s_lshl_b32 s{sD}, s{sWV}, 12''')
    sadd(sA, (sX8, 19), (sWV, 16), (sR, 6))
    for n in range(4):
        A(f's_add_u32 m0, s{sD}, {L_WO + 1024*n}')
        A(f'buffer_load_dwordx4 v6, {srd(WO)}, s{sA} offen{NTW} lds')
        if n < 3: A(f's_add_u32 s{sA}, s{sA}, 0x4000')
wo_dma()
if OPT['ffnpf'] == 3:
    A(f'''v_lshrrev_b32 v9, 2, v{vL}
          v_mul_u32_u24 v9, 3584, v9
          v_lshl_add_u32 v9, v{vB4}, 7, v9''')
    sadd(sA, (sR, 'mul', 32 * 3584), (sV4, 'mul', 8 * 3584), (sX8, 'mul', 448))
    A(f'''s_mov_b32 exec_hi, 0
          buffer_load_dword v124, v9, {srd(WG)}, s{sA} offen{NTP}
          buffer_load_dword v125, v9, {srd(WU)}, s{sA} offen{NTP}
          s_mov_b32 exec_hi, -1''')
SEL, RA, HV, RD, aX, XH = 216, 220, 224, 128, 243, 234
def unpack_hv():
    A(f'''v_lshlrev_b32 v{HV}, 16, v{XH}
          v_and_b32 v{HV+1}, 0xffff0000, v{XH}
          v_lshlrev_b32 v{HV+2}, 16, v{XH+1}
          v_and_b32 v{HV+3}, 0xffff0000, v{XH+1}''')
A(f'''      v_bfe_u32 v6, v{vL}, 2, 1
      v_cmp_eq_u32 s[70:71], 1, v6
      v_and_b32 v9, 1, v{vB4}
      v_lshlrev_b32 v9, 4, v9
      v_mov_b32 v10, 0x3f80
      v_lshlrev_b32 v10, v9, v10
      v_cmp_gt_u32 vcc, 2, v{vB4}
      v_cndmask_b32 v{SEL}, 0, v10, vcc
      v_cndmask_b32 v{SEL+1}, v10, 0, vcc
      v_mov_b32 v{SEL+2}, v{SEL}
      v_mov_b32 v{SEL+3}, v{SEL+1}
      v_mov_b32 v{RD+4}, 0
      v_mov_b32 v{RD+5}, 0
      v_mov_b32 v{RD+28}, 0
      v_mov_b32 v{RD+29}, 0''')
loc_issue(180)
back_addr()
A('s_waitcnt vmcnt(0)')
unpack_hv()
loc_eval(180)
if OPT['ackbar']: A('s_barrier')
stamp(12)
A('s_branch L_b3')
A.label('L_nostore')
if OPT['late'] == 3: late_loads()
A(f's_cmp_lg_u32 s{sG}, 0\ns_cbranch_scc1 L_g1tail')

sPEND, sNEW = 80, 81
def dma_k(k, cs):
    A(f'buffer_load_dwordx4 v{aGS}, {srd(WS)}, s{sP1 + cs} offen offset:{1024*k} sc1 lds')
def gather_loop(css, mid=None):
    GL, GN, GD = A.newlab('Lgl'), A.newlab('Lgn'), A.newlab('Lgd')
    stamp(31)
    A(f'''s_mov_b32 exec_hi, 0
          buffer_load_dwordx4 {vr(LS,4)}, v{aLS}, {srd(WS)}, s{sP0} offen sc1
          s_mov_b32 exec_hi, -1
          s_mov_b32 s{sPEND}, -1
          s_mov_b32 s{sCNT}, 0
          s_add_u32 s{sP2}, s{sP1}, 0x4000''')
    if mid: mid()
    A.label(GL)
    A(f'''s_waitcnt vmcnt(0)
          v_cmp_eq_u32 vcc, v{LS+3}, v{vT}
          s_and_b32 s{sNEW}, vcc_lo, s{sPEND}
          s_cbranch_scc0 {GN}
          s_andn2_b32 s{sPEND}, s{sPEND}, s{sNEW}''')
    for k in range(4):
        A(f'v_and_b32 v{136+k}, s{sNEW}, v{aBIT}')
        if k < 3: A(f's_lshr_b32 s{sNEW}, s{sNEW}, 8')
    for k in range(4): A(f'v_cmp_ne_u32 s[{16+2*k}:{17+2*k}], 0, v{136+k}')
    for cs in css:
        A(f's_add_u32 m0, s85, {cs*4096}')
        for k in range(4):
            sk = A.newlab('Lsk')
            A(f's_mov_b64 exec, s[{16+2*k}:{17+2*k}]\ns_cbranch_execz {sk}')
            dma_k(k, cs)
            A.label(sk)
    A(f'''s_mov_b64 exec, -1
          s_cmp_eq_u32 s{sPEND}, 0
          s_cbranch_scc1 {GD}''')
    A.label(GN)
    A(f'''s_mov_b32 exec_lo, s{sPEND}
          s_mov_b32 exec_hi, 0
          buffer_load_dwordx4 {vr(LS,4)}, v{aLS}, {srd(WS)}, s{sP0} offen sc1
          s_mov_b64 exec, -1
          s_add_u32 s{sCNT}, s{sCNT}, 1
          s_cmp_lt_u32 s{sCNT}, {OPT['limit']}
          s_cbranch_scc1 {GL}''')
    A.label(GD)
def dump_uv():
    for n in range(8):
        A(f's_waitcnt vmcnt({(11 if OPT["ffnpf"] else 8)-n})')
        A(f'ds_write_b128 v{aDMP}, {vr(WR+4*n,4)} offset:{L_UV + n*4*WP + (n>>2)*128}')
    stamp(13)
for n in range(8):
    A(f's_waitcnt vmcnt({(12 if OPT["ffnpf"] in (1,2) else 9)-n})')
    A(f'ds_write_b128 v{aDMP}, {vr(WR+4*n,4)} offset:{L_UV + n*4*WP + (n>>2)*128}')
loc_eval(180)
A(f's_add_u32 s{sP2}, s{sP1}, 0x4000\ns_mov_b32 m0, s85')
if OPT['ackbar']: A('s_barrier')
stamp(13)
mpoll([(f'buffer_load_dwordx4 {vr(LS,4)}, v{aLS}, {srd(WS)}, s{sP0} offen sc1', [LS + 3])], ('-1', '0'), 16, 136)
for cs in range(2):
    if cs: A(f's_add_u32 m0, s85, 4096')
    for k in range(4): dma_k(k, cs)
wo_dma()
stampcnt(42)
stamp(14)
A(f'v_mov_b32 v12, v{LS}')
row_red(12, 'v_max_f32')
swap_red(12, 13, 'v_max_f32', 16)
A(f'''v_sub_f32 v12, v{LS}, v12
      v_exp_f32 v12, v12
      v_mul_f32 v13, v12, v{LS+1}''')
row_red(13, 'v_add_f32')
swap_red(13, 14, 'v_add_f32', 16)
A(f'''v_rcp_f32 v13, v13
      v_mul_f32 v12, {f32(1.0 + 2.0**-8*0.72)}, v12
      v_mul_f32 v12, v12, v13
      v_cvt_pk_bf16_f32 v12, v12, v12
      s_mov_b32 exec_hi, 0
      ds_write_b16 v{aWTw}, v12
      s_mov_b32 exec_hi, -1
      s_waitcnt lgkmcnt(0)
      ds_read_b64 {vr(WF,2)}, v{aWTr}
      ds_read_b64 {vr(WF+2,2)}, v{aWTr} offset:32
      s_mov_b32 s{sCNT}, 0''')
A('s_waitcnt vmcnt(4)')
A.label('L_h2poll')
stamp(15)
units = ((CF, CA), (CF2, CA2))
for cs in range(2):
    for t in range(4):
        for hf in range(2): A(f'ds_read_b64_tr_b16 {vr(units[cs][0]+4*t+2*hf,2)}, v{aCT+t} offset:{cs*4096 + 2048*hf}')
A('v_mov_b32 v142, 0')
for cs, (cf, ca) in enumerate(units):
    for t in range(4):
        A(f's_waitcnt lgkmcnt({14 - 8*cs - 2*t})')
        for k in range(4): A(f'v_xor_b32 v{cf+4*t+k}, v{cf+4*t+k}, v{aE+(t&1)}')
        A(f'v_or3_b32 v142, v142, v{cf+4*t}, v{cf+4*t+1}\nv_or3_b32 v142, v142, v{cf+4*t+2}, v{cf+4*t+3}')
        mfma32(ca + 4 * t, cf + 4 * t, WF, '0')
A(f'''v_and_b32 v142, s83, v142
      v_cmp_ne_u32 vcc, 0, v142
      s_cmp_eq_u64 vcc, 0
      s_cbranch_scc1 L_h2ok
      s_add_u32 s{sCNT}, s{sCNT}, 1''')
for cs in range(2):
    A(f's_add_u32 m0, s85, {cs*4096}')
    for k in range(4): dma_k(k, cs)
A(f'''s_cmp_lt_u32 s{sCNT}, {OPT['limit']}
      s_waitcnt vmcnt(0)
      s_cbranch_scc1 L_h2poll''')
A.label('L_h2ok')
stampcnt(43)
A('s_mov_b32 exec_lo, s84\ns_mov_b32 exec_hi, s84')
for cs, (ca, ow) in enumerate(((CA, OLW), (CA2, OLW2))):
    for dd in range(8):
        A(f'v_cvt_pk_bf16_f32 v{ow+dd}, v{ca+2*dd}, v{ca+2*dd+1}')
        if dd in (3, 7): A(f'ds_write_b128 v{aOL}, {vr(ow+dd-3,4)} offset:{2048*cs + 1024*(dd//4)}')
full_exec()
A('s_waitcnt lgkmcnt(0)')
A.label('L_b3')
A(f's_bitcmp1_b32 s{sWV}, 0\ns_barrier')
stamp(16)
for s in range(4):
    A(f'ds_read_b128 {vr(56+4*s,4)}, v{aOL} offset:{1024*s}')
    for hf in range(2):
        A(f'ds_read_b64_tr_b16 {vr(UVF+4*s+2*hf,2)}, v{aUV} offset:{L_UV + (s>>1)*(64*WP+512) + (8*(s&1)+4*hf)*WP}')
for s in range(4):
    A(f's_waitcnt lgkmcnt({9-3*s})')
    mfma32(72, UVF + 4 * s, 56 + 4 * s, '0' if s == 0 else None)
set_exec(0x000f000f)
A(f'''s_cbranch_scc1 L_s4odd
      s_nop 4
      v_cvt_pk_bf16_f32 v{G4+2}, v72, v73
      v_cvt_pk_bf16_f32 v{G4+3}, v74, v75
      s_branch L_s4done''')
A.label('L_s4odd')
A(f'''s_nop 4
      v_cvt_pk_bf16_f32 v{G4}, v72, v73
      v_cvt_pk_bf16_f32 v{G4+1}, v74, v75''')
A.label('L_s4done')
loc_store(f'buffer_store_dwordx4 {vr(G4,4)}, v{aHCs}, {srd(WS)}, s77 offen')
full_exec()
stamp(17)
def of_reads():
    A('s_waitcnt vmcnt(5)')
    for s2 in range(2):
        for t in range(2):
            for hf in range(2):
                A(f'ds_read_b64_tr_b16 {vr(OF+(s2*2+t)*4+2*hf,2)}, v{aOF+t} offset:{s2*2048 + hf*1024}')
A5, YO = 80, 88
mpoll([(f'buffer_load_dwordx4 {vr(56+4*k,4)}, v{aL16}, {srd(WS)}, s76 offen offset:{1024*k} sc1', [56 + 4 * k + (3 if k & 1 else 0)]) for k in range(4)],
      ('-1', '-1'), 16, 136, between=of_reads)
A('s_waitcnt lgkmcnt(0)')
for s2 in range(2):
    for t in range(2): mfma32(A5 + 4 * t, OF + (s2 * 2 + t) * 4, 58 + 8 * s2, '0' if s2 == 0 else None)
stampcnt(44)
stamp(18)
for r in range(4): A(f'v_add_f32_dpp v{YO+r}, v{A5+r}, v{A5+r} row_ror:4 row_mask:0xf bank_mask:0x5')
for r in range(4): A(f'v_add_f32_dpp v{YO+r}, v{A5+4+r}, v{A5+4+r} row_ror:4 row_mask:0xf bank_mask:0xa')
for r in range(4): A(f'v_add_f32_dpp v{YO+r}, v{YO+r}, v{YO+r} row_ror:8 row_mask:0xf bank_mask:0xf')
A(f'''ds_write_b128 v{aRDw}, {vr(YO,4)}
      s_cmp_eq_u32 s{sWV}, 4
      s_waitcnt lgkmcnt(0)
      s_barrier
      s_cbranch_scc1 L_s5fin
      s_cmp_lt_u32 s{sWV}, 4
      s_cbranch_scc1 L_red
      {END}''')
A.label('L_s5fin')
for k in range(4): A(f'ds_read_b128 {vr(80+4*k,4)}, v{aRDr} offset:{1024*k}')
A(f'''s_waitcnt lgkmcnt(0)
      v_pk_add_f32 v[80:81], v[80:81], v[84:85]
      v_pk_add_f32 v[82:83], v[82:83], v[86:87]
      v_pk_add_f32 v[88:89], v[88:89], v[92:93]
      v_pk_add_f32 v[90:91], v[90:91], v[94:95]
      v_pk_add_f32 v[80:81], v[80:81], v[88:89]
      v_pk_add_f32 v[82:83], v[82:83], v[90:91]''')
for r in range(4): A(f'v_add_f32_dpp v{80+r}, v{80+r}, v{80+r} row_ror:8 row_mask:0xf bank_mask:0xf')
set_exec(0x00ff00ff)
A(f'''v_cvt_pk_bf16_f32 v{W4+2}, v80, v81
      v_cvt_pk_bf16_f32 v{W4+3}, v82, v83
      buffer_store_dwordx4 {vr(W4,4)}, v{aH3}, {srd(WS)}, s79 offen sc1''')
stamp(19)
A.label('L_end')
endwave()

A.label('L_g1w03')
A(f'''{'s_waitcnt vmcnt(0)' if OPT['ffnwait'] else ''}
      s_barrier
      {END}''')
A.label('L_g1tail')
A(f'''v_lshrrev_b32 v9, 2, v{vL}
      v_mul_u32_u24 v6, 3584, v9
      v_lshl_add_u32 v9, v{vB4}, 7, v6
      v_lshlrev_b32 v10, 7, v{vL}''')
sadd(sD, (sR, 'mul', 32 * 3584), (sV4, 'mul', 8 * 3584), (sX8, 'mul', 448))
A(f's_and_b32 s{sA}, s{sR}, 7')
sadd(sC, (sA, 'mul', 28672), (sX8, 'mul', 7 * 32768), (sV4, 'mul', 7168))
if OPT['helper']:
    gather_loop((1, 0))
    A('s_waitcnt vmcnt(0)')
    stamp(14)
A('s_barrier')
if not OPT['ffnpf']:
    if OPT['trig']:
        sadd(sA, (sH, 13), (sJ4, 6), HCA)
        A(f'''s_mov_b32 s{sCNT}, 0
              s_mov_b64 exec, 1''')
        A.label('L_trig')
        A(f'''buffer_load_dword v124, v{aL16}, {srd(WS)}, s{sA} offen sc1
              s_add_u32 s{sCNT}, s{sCNT}, 1
              s_waitcnt vmcnt(0)
              v_cmp_eq_u32 vcc, v124, v{vT}
              s_cmp_ge_u32 s{sCNT}, {OPT['trig']}
              s_cbranch_scc1 L_trigged
              s_cbranch_vccz L_trig''')
        A.label('L_trigged')
        stamp(27)
    A(f'''s_mov_b32 exec_lo, -1
          s_mov_b32 exec_hi, 0
          buffer_load_dword v124, v9, {srd(WG)}, s{sD} offen{NTP}
          buffer_load_dword v125, v9, {srd(WU)}, s{sD} offen{NTP}
          s_mov_b64 exec, -1''')
A(f'''s_cmp_lt_u32 s{sR}, 7
      s_cbranch_scc1 L_ffn
      s_cmp_ge_u32 s{sR}, 8
      s_cbranch_scc1 L_dpf
      {END}''')
A.label('L_dpf')
A(f'''s_mov_b32 exec_hi, 0xffffff
      buffer_load_dword v126, v10, {srd(WD)}, s{sC} offen{NTP}
      {END}''')

A.label('L_red')
def reduce_fin(nl):
    for p in range((nl + 1) // 2):
        mfma32(RA, SEL, RD + 8 * p + 2, '0' if p == 0 else None)
    for r in range(4): A(f'v_add_f32_dpp v{RA+r}, v{RA+r}, v{RA+r} row_ror:8 row_mask:0xf bank_mask:0xf')
    for r in range(4): A(f'v_add_f32 v{HV+r}, v{HV+r}, v{RA+r}')
    A(f'v_cvt_pk_bf16_f32 v{XH}, v{HV}, v{HV+1}\nv_cvt_pk_bf16_f32 v{XH+1}, v{HV+2}, v{HV+3}')
if OPT['rdel']: A(f's_sleep {OPT["rdel"]}')
stamp(25)
mpoll([(f'buffer_load_dwordx4 {vr(RD,4)}, v{aL16}, {srd(WS)}, s{sP3} offen sc1', [RD])], ('-1', '-1'), 12, 100)
reduce_fin(1)
A(f'''v_cndmask_b32 v248, v{vT}, v{XH}, s[70:71]
      v_cndmask_b32 v249, v{vT}, v{XH+1}, s[70:71]
      v_cndmask_b32 v250, v{XH}, v{vT}, s[70:71]
      v_cndmask_b32 v251, v{XH+1}, v{vT}, s[70:71]
      s_mov_b64 exec, 0xff''')
loc_store(f'buffer_store_dwordx4 v[248:251], v{aL16}, {srd(WS)}, s{sP0} offen')
full_exec()
stampcnt(46)
stamp(26)
A(f'''s_and_b32 s{sA}, s{sFS}, 7
      s_cmp_eq_u32 s{sA}, s{sX8}
      s_cbranch_scc1 L_final
      {END}''')
A.label('L_final')
unpack_hv()
sadd(sP3, (sFS, 13), H5)
A(f's_add_u32 s{sP2}, s{sP3}, 0x1000')
if OPT.get('fdel', 0): A(f's_sleep {OPT["fdel"]}')
mpoll([(f'buffer_load_dwordx4 {vr(RD+4*k,4)}, v{aL16}, {srd(WS)}, s{sP3 if k<4 else sP2} offen offset:{(k&3)*1024} sc1', [RD + 4 * k + (3 if k & 1 else 0)]) for k in range(7)],
      ('-1', '-1'), 12, 100)
reduce_fin(7)
stampcnt(45)
stamp(30)
A(f'''s_mov_b64 exec, 0xff
      buffer_store_dwordx2 {vr(XH,2)}, v{aX}, {srd(OUT)}, s75 offen
      s_cmp_eq_u32 s{sFS}, 0
      s_cbranch_scc1 L_epoch
      {END}''')
A.label('L_epoch')
A(f'''s_mov_b64 exec, 1
      buffer_store_dword v{vT}, v{aL16}, {srd(WS)}, 0 offen sc1
      {END}''')

A.label('L_ffn')
FF, DF, FA, G2, FO, CS, HQ, A7 = 112, 176, 208, 224, 248, 96, 16, 48
W70, W71 = 232, 238
aG, aD, aH, aO, aSr, aSw, aXr, aXw, vLO = 104, 106, 107, 108, 109, 110, 111, 14, 12
A(f'''s_mul_i32 s{sFS}, s{sX8}, 7
      s_add_u32 s{sFS}, s{sFS}, s{sR}
      v_and_b32 v7, 1, v{vQ}
      v_lshlrev_b32 v8, 1, v7
      v_xor_b32 v8, v8, v{vB4}
      v_lshl_add_u32 v6, v8, 4, v6
      v_lshl_add_u32 v8, v{vQ}, 2, v{vU}
      v_lshlrev_b32 v{aG}, 6, v8
      v_lshl_add_u32 v{aG}, v{vB4}, 3, v{aG}
      s_lshl_b32 s{sD}, s{sV4}, 13
      v_add_u32 v{aG}, s{sD}, v{aG}
      v_lshl_add_u32 v{aG}, v7, 5, v{aG}
      v_xor_b32 v{aG+1}, 32, v{aG}
      v_mul_u32_u24 v{aD}, {PITCH}, v8
      v_lshl_add_u32 v{aD}, v{vB4}, 3, v{aD}
      s_lshl_b32 s{sA}, s{sV4}, 8
      s_add_u32 s{sA}, s{sA}, {L_D}
      v_add_u32 v{aD}, s{sA}, v{aD}
      v_lshlrev_b32 v{aH}, 7, v{vQ}
      v_lshl_add_u32 v{aH}, v{vB4}, 4, v{aH}
      v_lshrrev_b32 v7, 1, v{vU}
      v_lshl_add_u32 v7, v7, 2, v{vQ}
      v_lshlrev_b32 v7, 13, v7
      v_and_b32 v8, 7, v{vL}
      v_lshl_add_u32 v{aO}, v8, 4, v7
      v_lshlrev_b32 v{aSr}, 5, v{vB4}
      v_add_u32 v{aSr}, {L_FX + 8192}, v{aSr}
      s_lshl_b32 s{sA}, s{sV4}, 2
      v_lshl_add_u32 v{aSw}, v{vQ}, 4, v{aSr}
      v_add_u32 v{aSw}, s{sA}, v{aSw}
      v_add_u32 v{aXr}, {L_FX}, v{aL16}
      s_lshl_b32 s{sA}, s{sV4}, 10
      v_add_u32 v{aXw}, s{sA}, v{aXr}
      v_cmp_gt_u32 vcc, 2, v{vU}
      v_mov_b32 v{vLO}, 0xff800000
      v_cndmask_b32 v{vLO}, v{vLO}, 0, vcc
      s_mul_i32 s{sP3}, s{sV4}, {8*PITCH}''')
for k in range(4): A(f'v_mov_b32 v{FO+k}, s{sONES}')
for k in (0, 1, 4, 5): A(f'v_mov_b32 v{W70+k}, s{sT}\nv_mov_b32 v{W71+k}, s{sT}')
for s in range(4):
    for k in range(4): A(f'v_mov_b32 v{HQ+8*s+2+k}, s{sONES}')
sadd(sP0, (sX8, 13), (sV4, 11), H4A)
sadd(sP1, (sV4, 17), (sFS, 7), H5)
A(f's_add_u32 s{sP2}, s{sP1}, 0x10000')
sadd(sA, (sV4, 'mul', 128 * 3584), (sFS, 6))
sadd(sC, (sFS, 15), (sV4, 13))
A('s_waitcnt vmcnt(0)')
stamp(24)
for n in range(8):
    A(f's_add_u32 m0, s{sD}, {L_G + 1024*n}')
    A(f'buffer_load_dwordx4 v6, {srd(WG)}, s{sA} offen{NTW} lds')
    A(f's_add_u32 m0, s{sD}, {L_U + 1024*n}')
    A(f'buffer_load_dwordx4 v6, {srd(WU)}, s{sA} offen{NTW} lds')
    if n < 7: A(f's_add_u32 s{sA}, s{sA}, {16*3584}')
for n in range(8):
    A(f's_add_u32 m0, s{sP3}, {L_D + PITCH*n}')
    A(f'buffer_load_dwordx4 v{aL16}, {srd(WD)}, s{sC} offen{NTW} lds')
    if n < 7: A(f's_add_u32 s{sC}, s{sC}, 1024')
stamp(12)
def compact_dpp():
    for u in range(1, 4):
        for r in range(4): A(f'v_mov_b32_dpp v{FA+r}, v{FA+4*u+r} row_shr:{4*u} row_mask:0xf bank_mask:{1<<u:#x}')
def ffn_prep():
    for s in range(4):
        A(f's_waitcnt vmcnt({28-4*s})')
        for u in range(4):
            for hf in range(2):
                A(f'ds_read_b64_tr_b16 {vr(FF+(u*4+s)*4+2*hf,2)}, v{aG+(u&1)} offset:{(L_U if u>=2 else L_G) + s*2048 + hf*1024}')
        if s:
            A('s_waitcnt lgkmcnt(8)')
            for u in range(4): mfma32(FA + 4 * u, FF + (u * 4 + s - 1) * 4, FO, '0' if s == 1 else None)
    A('s_waitcnt lgkmcnt(0)')
    for u in range(4): mfma32(FA + 4 * u, FF + (u * 4 + 3) * 4, FO)
    compact_dpp()
    A(f'ds_write_b128 v{aXw}, {vr(FA,4)}\ns_waitcnt vmcnt(8) lgkmcnt(0)\ns_barrier')
    for k in range(4): A(f'ds_read_b128 {vr(80+4*k,4)}, v{aXr} offset:{1024*k}')
    for t in range(8):
        for hf in range(2):
            A(f'ds_read_b64_tr_b16 {vr(DF+4*t+2*hf,2)}, v{aD} offset:{hf*16*PITCH + 32*t}')
    A('s_waitcnt lgkmcnt(15)')
    for r in range(0, 4, 2):
        A(f'''v_pk_add_f32 {vr(80+r,2)}, {vr(80+r,2)}, {vr(84+r,2)}
              v_pk_add_f32 {vr(88+r,2)}, {vr(88+r,2)}, {vr(92+r,2)}
              v_pk_add_f32 {vr(CS+r,2)}, {vr(80+r,2)}, {vr(88+r,2)}''')
    stamp(19)
mpoll([(f'buffer_load_dwordx4 {vr(HQ+8*s,4)}, v{aH}, {srd(WS)}, s{sP0} offen offset:{512*s} sc1\nbuffer_load_dwordx4 {vr(HQ+8*s+4,4)}, v{aH}, {srd(WS)}, s{sP0} offen offset:{512*s+64} sc1',
        [HQ + 8 * s, HQ + 8 * s + 7]) for s in range(4)], ('0x000f000f', '0x000f000f'), 16, 100, between=ffn_prep)
stampcnt(45)
stamp(20)
for s in range(4): mfma32(G2, HQ + 8 * s + 2, HQ + 8 * s + 2, '0' if s == 0 else None)
for s in range(4):
    for u in range(4): mfma32(FA + 4 * u, FF + (u * 4 + s) * 4, HQ + 8 * s + 2, '0' if s == 0 else None)
for b in range(1, 4): A(f's_mov_b64 exec, {1 << b}\nv_mov_b32 v{G2}, v{G2+b}')
A(f's_mov_b64 exec, 0x000f000f\nds_write_b32 v{aSw}, v{G2}')
full_exec()
compact_dpp()
A(f'''ds_write_b128 v{aXw}, {vr(FA,4)} offset:4096
      s_waitcnt lgkmcnt(0)
      s_barrier
      ds_read_b128 v[16:19], v{aSr}
      ds_read_b128 v[20:23], v{aSr} offset:16''')
for k in range(4): A(f'ds_read_b128 {vr(80+4*k,4)}, v{aXr} offset:{4096+1024*k}')
A(f'''s_waitcnt lgkmcnt(4)
      v_pk_add_f32 v[16:17], v[16:17], v[18:19]
      v_pk_add_f32 v[20:21], v[20:21], v[22:23]
      v_add_f32 v17, v16, v17
      v_add_f32 v16, v20, v21
      v_mul_f32 v16, {f32(-1.0/512)}, v16
      v_mov_b32 v18, {f32(1e-5)}
      v_fmac_f32 v18, {f32(1.0/512)}, v17
      v_fma_f32 v18, -v16, v16, v18
      v_rsq_f32 v18, v18
      s_waitcnt lgkmcnt(0)''')
for r in range(0, 4, 2):
    A(f'''v_pk_add_f32 {vr(80+r,2)}, {vr(80+r,2)}, {vr(84+r,2)}
          v_pk_add_f32 {vr(88+r,2)}, {vr(88+r,2)}, {vr(92+r,2)}
          v_pk_add_f32 {vr(80+r,2)}, {vr(80+r,2)}, {vr(88+r,2)}''')
for r in range(4): A(f'v_fmac_f32 v{80+r}, v16, v{CS+r}')
for r in range(4): A(f'v_mul_f32 v{80+r}, v18, v{80+r}')
for r in range(4): A(f'v_max_f32 v{80+r}, v12, v{80+r}')
for r in range(4): A(f'v_mul_f32_dpp v{84+r}, v{80+r}, v{80+r} row_ror:8 row_mask:0xf bank_mask:0xf')
A('''v_cvt_pk_bf16_f32 v88, v84, v85
     v_cvt_pk_bf16_f32 v89, v86, v87
     v_cvt_pk_bf16_f32 v92, v84, v85
     v_cvt_pk_bf16_f32 v93, v86, v87
     v_cvt_pk_bf16_f32 v94, v84, v85
     v_cvt_pk_bf16_f32 v95, v86, v87
     v_mov_b32_dpp v92, v88 row_ror:4 row_mask:0xf bank_mask:0xa
     v_mov_b32_dpp v93, v89 row_ror:4 row_mask:0xf bank_mask:0xa
     v_mov_b32_dpp v94, v88 row_ror:4 row_mask:0xf bank_mask:0x5
     v_mov_b32_dpp v95, v89 row_ror:4 row_mask:0xf bank_mask:0x5''')
order = [0, 4, 1, 5, 2, 6, 3, 7]
for t in order: mfma32(A7 + 4 * t, DF + 4 * t, 92, '0')
A(f's_bitcmp1_b32 s{sFS}, 3')
for u in range(4):
    if u: set_exec(0x000f000f << (4 * u))
    A(f'''v_cvt_pk_bf16_f32 v{W70+2}, v{A7+4*u}, v{A7+4*u+1}
          v_cvt_pk_bf16_f32 v{W70+3}, v{A7+4*u+2}, v{A7+4*u+3}
          v_cvt_pk_bf16_f32 v{W71+2}, v{A7+16+4*u}, v{A7+16+4*u+1}
          v_cvt_pk_bf16_f32 v{W71+3}, v{A7+16+4*u+2}, v{A7+16+4*u+3}''')
full_exec()
A(f'''s_cbranch_scc1 L_s7odd
      buffer_store_dwordx4 {vr(W70,4)}, v{aO}, {srd(WS)}, s{sP1} offen sc1
      buffer_store_dwordx4 {vr(W71,4)}, v{aO}, {srd(WS)}, s{sP2} offen sc1
      {END}''')
A.label('L_s7odd')
A(f'''buffer_store_dwordx4 {vr(W70+2,4)}, v{aO}, {srd(WS)}, s{sP1} offen sc1
      buffer_store_dwordx4 {vr(W71+2,4)}, v{aO}, {srd(WS)}, s{sP2} offen sc1
      {END}''')
A.label('L_g0front')
A(f's_cmp_lt_u32 s{sWV}, 4\ns_cbranch_scc1 L_g0s')
A(f'''v_and_b32 v9, 1, v{vL}
      v_lshlrev_b32 v9, 7, v9
      v_lshrrev_b32 v8, 1, v{vL}
      v_lshl_add_u32 v9, v8, 13, v9
      v_lshlrev_b32 v8, 7, v{vB4}''')
sadd(sA, (sJ4, 20), (sV4, 18), (sH, 8))
sadd(sC, (sH, 13), (sJ4, 11), (sV4, 9), H0A)
if OPT['wqpf']:
    sadd(sD, (sJ4, 20), (sV4, 17), (sH, 8), 64 * 8192)
    A(f'''s_mov_b32 exec_hi, 0
          buffer_load_dword v45, v9, {srd(WQ)}, s{sD} offen
          s_mov_b32 exec_hi, -1''')
    if OPT['wqpf'] == 2: A('s_sleep 8')
A(f'''buffer_load_dword v46, v8, {srd(WS)}, s{sC} offen sc1
      buffer_load_dword v47, v9, {srd(WUK)}, s{sA} offen
      s_barrier''')
make_tag()
A('s_branch L_qgather')
A.label('L_g0s')
A('s_barrier')
A.label('L_stream')
KF0, QF, KF1, SA, vM = 16, 80, 144, 208, 12
sSA, sSC, sSN = 84, 85, 86
if OPT['rev']:
    sadd(sSA, (sPAIR, 17), (sV4, 15), (sG, 'mul', 31 * 1024))
    A(f's_cmp_eq_u32 s{sG}, 0\ns_cselect_b32 s{sSC}, 1, -1\ns_lshl_b32 s{sSC}, s{sSC}, 10')
else:
    sadd(sSA, (sPAIR, 17), (sV4, 15))
    A(f's_movk_i32 s{sSC}, 1024')
A(f'''s_mul_i32 m0, s{sV4}, {32*PITCH}
      s_mov_b32 s{sSN}, 0''')
def sloop(lab, lim, thr=0):
    A.label(lab)
    if thr: A(f's_waitcnt vmcnt({thr-1})')
    A(f'''buffer_load_dwordx4 v{aL16}, {srd(CKV)}, s{sSA} offen{NTC} lds
          s_add_u32 s{sSA}, s{sSA}, s{sSC}
          s_add_u32 m0, m0, {PITCH}
          s_add_u32 s{sSN}, s{sSN}, 1
          s_cmp_lt_u32 s{sSN}, {lim}
          s_cbranch_scc1 {lab}''')
sloop('L_sl0', str(OPT['n0']))
if OPT['rev'] == 2:
    A(f's_cmp_eq_u32 s{sG}, 0\ns_cbranch_scc1 L_fwd')
    sadd(sSA, (sPAIR, 17), (sV4, 15))
    A(f's_movk_i32 s{sSC}, 1024')
    A.label('L_fwd')
A(f's_lshl2_add_u32 s{sFS}, s{sR}, s{sWV}')
sadd(75, (sR, 6), (sWV, 3))
sadd(sP3, (sFS, 10), H3)
sadd(sP0, (sX8, 13), (sFS, 7), H4A)
A(f'''s_cmp_lg_u32 s{sG}, 0
      s_cbranch_scc1 L_nrp
      buffer_load_dwordx2 {vr(XH,2)}, v{aX}, {srd(X)}, s75 offen
      s_mov_b64 exec, 1
      buffer_load_dword v236, v{aL16}, {srd(WS)}, s{sP0} offen sc1
      s_mov_b64 exec, -1''')
A.label('L_nrp')
common_addr()
A(f'''v_mul_u32_u24 v8, {PITCH}, v{vI}
      v_add_u32 v{aMXr}, {L_MAX}, v8
      s_lshl_b32 s{sA}, s{sV4}, 2
      v_add_u32 v{aMXw}, s{sA}, v{aMXr}
      v_lshl_add_u32 v8, v{vQ}, 4, v8
      s_mul_i32 s{sA}, s{sV4}, {32*PITCH}
      v_add_u32 v{aKF}, s{sA}, v8
      v_add_u32 v{aQF}, {L_R}, v8
      s_lshl_b32 s{sA}, s{sV4}, 10
      v_add_u32 v{aPw}, s{sA}, v{aP}
      v_mov_b32 v9, -1
      v_mov_b32 v8, {L_PROG}''')
for k in range(4): A(f'v_mov_b32 v{ONES+k}, s{sONES}')
sadd(sHSST, (sG, 15), (sPAIR, 8), HS)
make_tag()
A(f'''s_cmp_lg_u32 s{sWV}, 3
      s_cbranch_scc1 L_noann
      v_mov_b32 v14, s{sXCC}
      s_lshr_b32 s{sC}, s2, 3''')
sadd(sA, (sX8, 8), (sC, 3), HX)
A(f'''s_mov_b64 exec, 1
      buffer_store_dwordx2 v[14:15], v{aL16}, {srd(WS)}, s{sA} offen sc1
      s_mov_b64 exec, -1''')
A.label('L_noann')
A(f'v_mov_b32 v14, s{sT}')
stamp(28)
A(f's_cmp_eq_u32 s{sG}, 0\ns_cselect_b32 s87, {OPT["prog0"]}, {OPT["prog1"]}')
sloop('L_sl1', 's87', OPT['inf1'])
A('ds_write_b32 v8, v9')
stamp(5)
sloop('L_sl2', '32', OPT['inf2'])
stamp(6)
A('s_waitcnt vmcnt(16)')
for s in range(16): A(f'ds_read_b128 {vr(KF0+4*s,4)}, v{aKF} offset:{64*s}')
A('s_waitcnt vmcnt(0)')
stamp(7)
for s in range(16): A(f'ds_read_b128 {vr(KF1+4*s,4)}, v{aKF} offset:{16*PITCH + 64*s}')
lds_wait(L_QFLAG, 4, 244, sleep=0)
stamp(8)
for s in range(16): A(f'ds_read_b128 {vr(QF+4*s,4)}, v{aQF} offset:{64*s}')
for s in range(16):
    A(f's_waitcnt lgkmcnt({15-s})')
    mfma32(SA, KF0 + 4 * s, QF + 4 * s, '0' if s == 0 else None)
    mfma32(SA + 4, KF1 + 4 * s, QF + 4 * s, '0' if s == 0 else None)
ow_tags()
A(f'v_max3_f32 v{vM}, v{SA}, v{SA+1}, v{SA+2}\nv_max_f32 v{vM}, v{vM}, v{SA+3}')
A(f'v_max3_f32 v{vM}, v{vM}, v{SA+4}, v{SA+5}\nv_max3_f32 v{vM}, v{vM}, v{SA+6}, v{SA+7}')
swap_red(vM, 13, 'v_max_f32', 16)
swap_red(vM, 13, 'v_max_f32', 32)
stamp(23)
A(f'''ds_write_b32 v{aMXw}, v{vM}
      s_waitcnt lgkmcnt(0)
      s_barrier
      ds_read_b128 v[244:247], v{aMXr}''')
v_reads(0)
A(f'''s_waitcnt lgkmcnt(8)
      v_max3_f32 v{vM}, v244, v245, v246
      v_max_f32 v{vM}, v{vM}, v247''')
for k in range(8): A(f'v_sub_f32 v{SA+k}, v{SA+k}, v{vM}')
for k in range(8): A(f'v_exp_f32 v{SA+k}, v{SA+k}')
for k in range(4): A(f'v_cvt_pk_bf16_f32 v{244+k}, v{SA+2*k}, v{SA+2*k+1}')
A(f'ds_write_b128 v{aPw}, v[244:247]\ns_waitcnt lgkmcnt(0)\ns_barrier')
stamp(10)
p_reads()
v_reads(1)
A(f's_cmp_lg_u32 s{sWV}, 0')
for s in range(4):
    A(f's_waitcnt lgkmcnt({[11, 8, 8, 0][s]})')
    for ct in range(4): mfma32(PA + 4 * ct, VF + (s * 4 + ct) * 4, PF + 4 * s, '0' if s == 0 else None)
    if s == 0:
        A('s_waitcnt lgkmcnt(7)')
        v_reads(2)
        A('s_cbranch_scc1 L_nol')
        for s2 in range(4): mfma32(LA, ONES, PF + 4 * s2, '0' if s2 == 0 else None)
        A.label('L_nol')
    if s == 1: v_reads(3)
    if s == 2 and not OPT['statlate']:
        A(f'''s_cbranch_scc1 L_nolse
              v_mov_b32 v13, v{LA}
              s_mov_b64 exec, 0xffff
              buffer_store_dwordx4 v[12:15], v{aL16}, {srd(WS)}, s{sHSST} offen sc1
              s_mov_b64 exec, -1''')
        A.label('L_nolse')
if OPT['statlate'] == 3:
    A(f'''s_cbranch_scc1 L_pvout
          v_mov_b32 v13, v{LA}
          s_mov_b64 exec, 0xffff
          buffer_store_dwordx4 v[12:15], v{aL16}, {srd(WS)}, s{sHSST} offen sc1
          s_mov_b64 exec, -1''')
A('s_branch L_pvout')

A.label('L_exit')
A('s_endpgm')

ref = open('cdna_kernels/%s.s.ref' % NAME).read().split('\n')
head = []
for ln in ref:
    if ln.startswith('; @launch'):
        head.append('; @launch grid=(256,1,1) block=(512,1,1) lds=%d' % LDS_BYTES); break
    head.append(ln)
out = '\n'.join(head) + f"""
.amdgcn_target "amdgcn-amd-amdhsa--gfx950"
.text
.globl {NAME}_kernel
.p2align 8
.type {NAME}_kernel,@function
{NAME}_kernel:
""" + A.text() + f""".section .rodata,"a"
.p2align 6
.amdhsa_kernel {NAME}_kernel
  .amdhsa_next_free_vgpr 256
  .amdhsa_next_free_sgpr 102
  .amdhsa_accum_offset 256
  .amdhsa_group_segment_fixed_size 0
  .amdhsa_kernarg_size 104
  .amdhsa_user_sgpr_count 2
  .amdhsa_user_sgpr_kernarg_segment_ptr 1
  .amdhsa_system_sgpr_workgroup_id_x 1
.end_amdhsa_kernel
"""
out = out.replace('CODE_BYTES', 'L_exit-L_pc')
open(sys.argv[1], 'w').write(out)
```

```python
import sys, math, struct
from asmlib import Asm, vr, sr

NAME = 'sequential_preLN__compressed_kv_cla__glu_gated_reglu__decode'
OPT = dict(g0hold=0, ukpf=4, tk=0, bbpf=3, pr1=0, pr2=1, osc=0, qsl=0, qprio=0, t0first=0, wqpf=0, wukpos=2, g1pf=0, n0=6, rdel=12, late=1, statlate=3, helper=0, trig=11, pd=1, pd3=1, wod=0, hspre=1, ackbar=1, prog1=20, ffnpf=0, qrot=1, cpf=1, ffnwait=0, fix=0, fixat=63, rev=0, wukd=0, inf1=0, inf2=0, pf_nt=0, h3pre=1, kl=5, debug=0, prog0=26, ckv_nt=0, w_nt=0, limit=200000, ka=8, qsleep=4)
for a in sys.argv[2:]:
    k, v = a.split('='); OPT[k] = int(v)
DEBUG = OPT['debug']

H0A, H0B, H1, HS = 0x40000, 0x80000, 0xC0000, 0x100000
H4A, HX, HT = 0x120000, 0x130000, 0x131000
HCA = 0x140000
H3, H5, H2, DBG = 0x110000, 0x200000, 0x400000, 0xA00000
WS_BYTES = 0x1000000
PITCH = 1056
L_P = 128 * PITCH
L_R = L_P + 4096
LDS_BYTES = 163840
L_WQ, L_WUK = 0, 36864
L_QO = L_R + 21504
L_XC = L_P
L_XQ = L_R + 17408
def pad(row): return row * PITCH + 1024
L_MAX, L_QFLAG, L_PROG, L_FA, L_FB = pad(72), pad(96), pad(96) + 16, pad(97), pad(97) + 16
WP = 288
L_UV, L_WO, L_CS, L_OL, L_RED, L_WT = 0, 40960, 73728, 122880, 126976, 135168
L_G, L_U, L_D, L_FX = 0, 32768, 65536, 102400
sWV, sT, sE = 3, 4, 5
X, CKV, WQ, WUK, WUV, WO, WG, WU, WD, OUT, WS = 8, 12, 16, 20, 24, 28, 32, 36, 40, 44, 48
sH, sJ4, sB, sX8, sG, sPAIR, sV4, sR = 52, 53, 54, 55, 56, 57, 58, 59
sCNT, sA, sBt, sC, sD = 60, 61, 62, 63, 64
sP0, sP1, sP2, sP3 = 65, 66, 67, 68
sH2ST, sHSST, sFS = 72, 73, 74
sONES = 82
sLOC, sXCC = 88, 89
sST = 90
def srd(b): return sr(b, 4)
vL, vQ, vI, vB4, vU, vT = 1, 2, 3, 4, 5, 15
aL16, aVF0, aVF1, aP, aSR, aST, aSW = 228, 229, 230, 231, 233, 232, 252
aKF, aQF, aMXr, aMXw, aPw, aHS = 237, 238, 239, 240, 241, 242
vSTAMP = 255
NTC = ' nt' if OPT['ckv_nt'] else ''
NTW = ' nt' if OPT['w_nt'] else ''
def f32(x): return '0x%08x' % struct.unpack('<I', struct.pack('<f', x))[0]
A = Asm()

def stamp(i):
    if OPT['fix'] and i == OPT['fixat']:
        lab = A.newlab('Lfix')
        if 'fixx' in OPT: A(f's_cmp_lg_u32 s{sX8}, {OPT["fixx"]}\ns_cbranch_scc1 {lab}_e')
        A.label(lab)
        A(f'''s_memrealtime s[{sST}:{sST+1}]
              s_waitcnt lgkmcnt(0)
              s_sub_u32 s{sST}, s{sST}, s{sST+2}
              s_cmp_lt_u32 s{sST}, {OPT['fix']}
              s_cbranch_scc1 {lab}''')
        A.label(lab + '_e')
    if DEBUG:
        A(f'''s_memrealtime s[{sST}:{sST+1}]
              s_waitcnt lgkmcnt(0)
              v_writelane_b32 v{vSTAMP}, s{sST}, {i}''')
def stampcnt(i):
    if DEBUG: A(f's_add_u32 s{sST}, s{sCNT}, 1\nv_writelane_b32 v{vSTAMP}, s{sST}, {i}')

def endwave():
    if not DEBUG: stamp(63)
    if DEBUG:
        stamp(63)
        A(f's_memtime s[{sST}:{sST+1}]\ns_waitcnt lgkmcnt(0)\ns_sub_u32 s{sST}, s{sST}, s{sST+4}\nv_writelane_b32 v{vSTAMP}, s{sST}, 47')
        A(f'''s_mov_b64 exec, -1
              s_lshl_b32 s{sA}, s2, 3
              s_add_u32 s{sA}, s{sA}, s{sWV}
              s_lshl_b32 s{sA}, s{sA}, 8
              s_add_u32 s{sA}, s{sA}, {DBG}
              v_lshlrev_b32 v6, 2, v{vL}
              buffer_store_dword v{vSTAMP}, v6, {srd(WS)}, s{sA} offen''')
    if DEBUG == 2:
        ids = [0, 3, 5, 6, 8, 9, 10, 11, 13, 14, 15, 16, 18, 19, 20, 63]
        A(f'''s_lshl_b32 s{sA}, s2, 3
              s_add_u32 s{sA}, s{sA}, s{sWV}
              s_cmp_lg_u32 s{sA}, 0
              s_cbranch_scc1 L_nodbg
              s_load_dwordx2 s[96:97], s[0:1], 88
              s_mov_b32 s98, 256
              s_mov_b32 s99, 0x00020000
              v_mov_b32 v7, 0''')
        for k, i in enumerate(ids):
            A(f'v_readlane_b32 s{sA}, v{vSTAMP}, {i}\ns_sub_u32 s{sA}, s{sA}, s{sST+2}\nv_writelane_b32 v7, s{sA}, {k}')
        A(f'''s_waitcnt lgkmcnt(0)
              buffer_store_dword v7, v6, s[96:99], 0 offen''')
        A.label('L_nodbg')
    A('s_endpgm')

def set_exec(mask32): A(f's_mov_b32 exec_lo, 0x{mask32:08x}\ns_mov_b32 exec_hi, 0x{mask32:08x}')
def full_exec(): A('s_mov_b64 exec, -1')

def check_tags(tags, tmp):
    acc, t1, t2 = tmp, tmp + 1, tmp + 2
    tags = list(tags)
    if len(tags) == 1:
        A(f'v_cmp_ne_u32 vcc, v{tags[0]}, v{vT}'); return
    if len(tags) % 2: tags.append(tags[-1])
    prs = [(tags[i], tags[i + 1]) for i in range(0, len(tags), 2)]
    A(f'v_bitop3_b32 v{acc}, v{prs[0][0]}, v{prs[0][1]}, v{vT} bitop3:0x7e')
    rest = prs[1:]
    while rest:
        if len(rest) >= 2:
            A(f'v_bitop3_b32 v{t1}, v{rest[0][0]}, v{rest[0][1]}, v{vT} bitop3:0x7e')
            A(f'v_bitop3_b32 v{t2}, v{rest[1][0]}, v{rest[1][1]}, v{vT} bitop3:0x7e')
            A(f'v_or3_b32 v{acc}, v{acc}, v{t1}, v{t2}')
            rest = rest[2:]
        else:
            A(f'v_bitop3_b32 v{t1}, v{rest[0][0]}, v{rest[0][1]}, v{vT} bitop3:0x7e')
            A(f'v_or_b32 v{acc}, v{acc}, v{t1}')
            rest = rest[1:]
    A(f'v_cmp_ne_u32 vcc, 0, v{acc}')

def poll(loads, tags, tmp, onfail='', between=None, late=None, pre_late='', late_ok=None):
    L, D = A.newlab('Lpoll'), A.newlab('Lpok')
    A(f's_mov_b32 s{sCNT}, 0')
    A(loads)
    if between: between()
    A.label(L)
    A('s_waitcnt vmcnt(0)')
    check_tags(tags, tmp)
    A(f'''s_cmp_eq_u64 vcc, 0
          s_cbranch_scc1 {D}
          s_add_u32 s{sCNT}, s{sCNT}, 1''')
    if late:
        l2 = A.newlab('Lnl')
        A(f's_cmp_lg_u32 s{sCNT}, {OPT["kl"]}\ns_cbranch_scc1 {l2}')
        late()
        A.label(l2)
    A(onfail)
    A(loads)
    A(f'''s_cmp_lt_u32 s{sCNT}, {OPT['limit']}
          s_cbranch_scc1 {L}
          s_waitcnt vmcnt(0)''')
    A.label(D)
    A(pre_late)
    if late_ok: late_ok()
    elif late: late()

def mpoll(groups, init, MK, tmp, between=None):
    L, D = A.newlab('Lmp'), A.newlab('Lmok')
    A(f's_mov_b32 s{sCNT}, 0\ns_mov_b32 exec_lo, {init[0]}\ns_mov_b32 exec_hi, {init[1]}')
    for ld, tg in groups: A(ld)
    if between:
        full_exec(); between(); A(f's_mov_b32 exec_lo, {init[0]}\ns_mov_b32 exec_hi, {init[1]}')
    A.label(L)
    A('s_waitcnt vmcnt(0)')
    for k, (ld, tg) in enumerate(groups):
        if len(tg) == 2: A(f'v_bitop3_b32 v{tmp+k}, v{tg[0]}, v{tg[1]}, v{vT} bitop3:0x7e')
    for k, (ld, tg) in enumerate(groups):
        if len(tg) == 2: A(f'v_cmp_ne_u32 s[{MK+2*k}:{MK+2*k+1}], 0, v{tmp+k}')
        else: A(f'v_cmp_ne_u32 s[{MK+2*k}:{MK+2*k+1}], v{tg[0]}, v{vT}')
    n = len(groups)
    A(f's_or_b64 s[6:7], s[{MK}:{MK+1}], s[{MK+2*(n>1)}:{MK+2*(n>1)+1}]')
    for k in range(2, n): A(f's_or_b64 s[6:7], s[6:7], s[{MK+2*k}:{MK+2*k+1}]')
    A(f's_cbranch_scc0 {D}')
    for k, (ld, tg) in enumerate(groups):
        sk = A.newlab('Lsk')
        A(f's_mov_b64 exec, s[{MK+2*k}:{MK+2*k+1}]\ns_cbranch_execz {sk}')
        A(ld)
        A.label(sk)
    A(f'''s_mov_b32 exec_lo, {init[0]}
          s_mov_b32 exec_hi, {init[1]}
          s_add_u32 s{sCNT}, s{sCNT}, 1
          s_cmp_lt_u32 s{sCNT}, {OPT['limit']}
          s_cbranch_scc1 {L}
          s_waitcnt vmcnt(0)''')
    A.label(D)
    full_exec()

def ppoll(load, sets, tagoff, dst, ncopy, exec_hi='-1'):
    L, D = A.newlab('Lpp'), A.newlab('Lppok')
    nd = len(sets)
    A(f's_mov_b32 s{sCNT}, 0\ns_mov_b32 exec_hi, {exec_hi}')
    for k, r in enumerate(sets):
        A(load.format(r=vr(r, 4)))
        if k < nd - 1: A('s_sleep 2')
    A.label(L)
    oks = [A.newlab('Lppk') for _ in sets]
    for k, r in enumerate(sets):
        A(f'''s_waitcnt vmcnt({nd-1})
              v_cmp_ne_u32 vcc, v{r+tagoff}, v{vT}
              s_cmp_eq_u64 vcc, 0
              s_cbranch_scc1 {oks[k] if r != dst else D}''')
        A(load.format(r=vr(r, 4)))
    A(f'''s_add_u32 s{sCNT}, s{sCNT}, 1
          s_cmp_lt_u32 s{sCNT}, {OPT['limit']}
          s_cbranch_scc1 {L}
          s_waitcnt vmcnt(0)
          s_branch {D}''')
    for k, r in enumerate(sets):
        if r == dst: continue
        A.label(oks[k])
        for c in ncopy: A(f'v_mov_b32 v{dst+c}, v{r+c}')
        if k < nd - 1: A(f's_branch {D}')
    A.label(D)
    A('s_mov_b32 exec_hi, -1')

def loc_issue(reg):
    sadd(sA, (sX8, 8), HX)
    A(f'''v_and_b32 v6, 31, v{vL}
          v_lshlrev_b32 v6, 3, v6
          buffer_load_dwordx2 {vr(reg,2)}, v6, {srd(WS)}, s{sA} offen sc1''')
def loc_eval(reg):
    A(f'''v_cmp_ne_u32 vcc, s{sXCC}, v{reg}
          v_cmp_ne_u32 s[6:7], v{reg+1}, v{vT}
          s_or_b64 vcc, vcc, s[6:7]
          s_cselect_b32 s{sLOC}, 0, 1''')
def loc_store(text):
    a, b = A.newlab('Lls'), A.newlab('Lle')
    A(f's_cmp_eq_u32 s{sLOC}, 0\ns_cbranch_scc1 {a}\n{text}\ns_branch {b}')
    A.label(a)
    A(text + ' sc1')
    A.label(b)

def toggle(regs, x):
    lab = A.newlab('Lnt')
    return f's_cmp_lt_u32 s{sCNT}, {OPT["ka"]}\ns_cbranch_scc1 {lab}\n' + ''.join(f's_xor_b32 s{r}, s{r}, {x}\n' for r in regs) + f'{lab}:'

def lds_wait(addr, n, tmp, sleep=1, cnt=None):
    sCNT = cnt or globals()['sCNT']
    L, D = A.newlab('Llw'), A.newlab('Llok')
    A(f's_mov_b32 s{sCNT}, 0\nv_mov_b32 v{tmp+7}, {addr}')
    A.label(L)
    if n == 1:
        A(f'ds_read_b32 v{tmp}, v{tmp+7}\ns_waitcnt lgkmcnt(0)')
    else:
        A(f'ds_read_b128 {vr(tmp,4)}, v{tmp+7}\ns_waitcnt lgkmcnt(0)')
        A(f'v_bitop3_b32 v{tmp}, v{tmp}, v{tmp+1}, v{tmp+2} bitop3:0x80\nv_and_b32 v{tmp}, v{tmp}, v{tmp+3}')
    A(f'''v_cmp_ne_u32 vcc, -1, v{tmp}
          s_cmp_eq_u64 vcc, 0
          s_cbranch_scc1 {D}
          {'s_sleep %d' % sleep if sleep else ''}
          s_add_u32 s{sCNT}, s{sCNT}, 1
          s_cmp_lt_u32 s{sCNT}, {OPT['limit']*8}
          s_cbranch_scc1 {L}''')
    A.label(D)

def make_tag():
    A(f'''s_waitcnt lgkmcnt(0)
          s_add_u32 s{sT}, s{sE}, 0x9e3779b9
          v_mov_b32 v{vT}, s{sT}''')

def swap_red(a, t, op, which):
    A(f'v_mov_b32 v{t}, v{a}\nv_permlane{which}_swap_b32 v{a}, v{t}\n{op} v{a}, v{a}, v{t}')
def row_red(a, op):
    for n in (1, 2, 4, 8):
        A(f'{op}_dpp v{a}, v{a}, v{a} row_ror:{n} row_mask:0xf bank_mask:0xf')

def mfma32(d, a, b, c=None):
    A(f'v_mfma_f32_16x16x32_bf16 {vr(d,4)}, {vr(a,4)}, {vr(b,4)}, {vr(d,4) if c is None else c}')

def sadd(dst, *terms):
    const = sum(t for t in terms if isinstance(t, int))
    first = True
    for t in terms:
        if isinstance(t, int): continue
        tgt = dst if first else sBt
        if len(t) == 3: A(f's_mul_i32 s{tgt}, s{t[0]}, {t[2]}')
        elif t[1] == 0:
            if first: A(f's_mov_b32 s{dst}, s{t[0]}')
            else: A(f's_add_u32 s{dst}, s{dst}, s{t[0]}'); continue
        else: A(f's_lshl_b32 s{tgt}, s{t[0]}, {t[1]}')
        if not first: A(f's_add_u32 s{dst}, s{dst}, s{sBt}')
        first = False
    if const: A(f's_add_u32 s{dst}, s{dst}, {const}')

if DEBUG or OPT['fix']: A(f's_memrealtime s[{sST+2}:{sST+3}]\ns_memtime s[{sST+4}:{sST+5}]')
A(f'''s_cmp_ge_u32 s2, 256
      s_cbranch_scc1 L_exit
      s_load_dwordx2 s[{CKV}:{CKV+1}], s[0:1], 8
      s_load_dwordx2 s[{X}:{X+1}], s[0:1], 0
      s_load_dwordx2 s[{WQ}:{WQ+1}], s[0:1], 16
      s_load_dwordx2 s[{WUK}:{WUK+1}], s[0:1], 24
      s_load_dwordx2 s[{WS}:{WS+1}], s[0:1], 96
      v_lshrrev_b32 v6, 6, v0
      v_and_b32 v{vL}, 63, v0
      v_readfirstlane_b32 s{sWV}, v6
      v_lshrrev_b32 v{vQ}, 4, v{vL}
      v_and_b32 v{vI}, 15, v{vL}
      v_and_b32 v{vB4}, 3, v{vL}
      v_lshrrev_b32 v{vU}, 2, v{vI}
      v_lshlrev_b32 v{aL16}, 4, v{vL}
      v_and_b32 v8, 7, v{vL}
      v_bfe_u32 v9, v{vL}, 3, 1
      v_mul_u32_u24 v9, {PITCH}, v9
      v_lshl_add_u32 v8, v8, 2, v9
      v_add_u32 v8, {L_QFLAG}, v8
      v_mov_b32 v9, 0
      ds_write_b32 v8, v9
      v_bfe_u32 v6, v{vL}, 2, 1
      v_lshlrev_b32 v243, 10, v{vB4}
      v_lshl_add_u32 v243, v6, 5, v243''')
if OPT['cpf']:
    A(f'''s_getpc_b64 s[6:7]
          L_pc:
          s_bfe_u32 s{sA}, s2, 0x10003
          s_lshl_b32 s{sA}, s{sA}, 13
          v_lshl_add_u32 v8, v{vL}, 7, s{sA}
          s_cmp_lg_u32 s{sWV}, 3
          s_cbranch_scc1 L_nocpf
          s_cmp_ge_u32 s2, 32
          s_cbranch_scc1 L_nocpf
          v_cmp_gt_u32 vcc, CODE_BYTES, v8
          s_and_b64 exec, exec, vcc
          s_cbranch_execz L_nocpf2
          global_load_dword v201, v8, s[6:7]''')
    A.label('L_nocpf2')
    A('s_mov_b64 exec, -1')
    A.label('L_nocpf')
for b, n in ((X, 4096), (CKV, 1 << 24), (WQ, 1 << 22), (WUK, 1 << 22), (WUV, 1 << 22), (WO, 1 << 22), (WG, 1835008),
             (WU, 1835008), (WD, 1835008), (OUT, 4096), (WS, WS_BYTES)):
    if (OPT.get('wi',0)&1 and b in (WG,WU,WD)) or (OPT.get('wi',0)&2 and b in (WUV,WO)) or (OPT.get('wi',0)&4 and b in (CKV,)) or (OPT.get('wi',0)&8 and b in (WQ,WUK)): n = 0
    A(f's_mov_b32 s{b+2}, {n}\ns_mov_b32 s{b+3}, 0x00020000')
A(f'''s_and_b32 s{sX8}, s2, 7
      s_bfe_u32 s{sR}, s2, 0x40003
      s_and_b32 s{sC}, s{sR}, 3
      s_lshl2_add_u32 s{sH}, s{sX8}, s{sC}
      s_lshr_b32 s{sJ4}, s{sR}, 2
      s_lshl4_add_u32 s{sPAIR}, s{sX8}, s{sR}
      s_lshr_b32 s{sB}, s{sPAIR}, 5
      s_lshr_b32 s{sG}, s2, 7
      s_and_b32 s{sV4}, s{sWV}, 3
      s_mov_b32 s{sONES}, 0x3f803f80
      s_mov_b32 s83, 0x00010001
      s_getreg_b32 s{sXCC}, hwreg(HW_REG_XCC_ID, 0, 4)''')
if DEBUG: A(f'v_mov_b32 v{vSTAMP}, 0\ns_waitcnt lgkmcnt(0)\nv_writelane_b32 v{vSTAMP}, s{sST+2}, 62')
if DEBUG: A('s_mov_b32 s96, 0\ns_mov_b32 s98, 0\ns_memrealtime s[100:101]')
A(f'''s_waitcnt lgkmcnt(0)
      s_load_dword s{sE}, s[{WS}:{WS+1}], 0
      s_load_dwordx2 s[{WUV}:{WUV+1}], s[0:1], 32
      s_load_dwordx2 s[{WO}:{WO+1}], s[0:1], 40
      s_load_dwordx2 s[{WG}:{WG+1}], s[0:1], 56
      s_load_dwordx2 s[{WU}:{WU+1}], s[0:1], 64
      s_load_dwordx2 s[{WD}:{WD+1}], s[0:1], 72
      s_load_dwordx2 s[{OUT}:{OUT+1}], s[0:1], 80
      s_cmp_eq_u32 s{sG}, 0
      s_cbranch_scc1 L_g0front''')

XS, XF, TF, ACC, G1_, UF, XQ, XB = 16, 32, 80, 112, 120, 96, 128, 136
A(f'''s_cmp_lg_u32 s{sWV}, 0
      s_cbranch_scc1 L_nox
      v_lshlrev_b32 v6, 10, v{vQ}
      v_lshl_add_u32 v6, v{vI}, 4, v6
      s_lshl_b32 s{sA}, s{sJ4}, 8''')
for k in range(4):
    A(f'buffer_load_dwordx4 {vr(XS+4*k,4)}, v6, {srd(X)}, s{sA} offen')
    if k < 3: A(f's_add_u32 s{sA}, s{sA}, 256\ns_and_b32 s{sA}, s{sA}, 1023')
A.label('L_nox')
A(f'''v_lshlrev_b32 v7, 1, v{vQ}
      v_xor_b32 v7, v7, v{vI}
      v_lshlrev_b32 v7, 4, v7
      v_lshl_add_u32 v7, v{vQ}, 13, v7''')
sadd(sD, (sJ4, 20), (sWV, 17), (sH, 8))
A(f's_mul_i32 s{sC}, s{sWV}, {4*1152}\ns_mov_b32 s{sA}, s{sD}')
for n in range(4):
    A(f's_add_u32 m0, s{sC}, {L_WQ + n*1152}')
    A(f'buffer_load_dwordx4 v7, {srd(WQ)}, s{sA} offen{NTW} lds')
    if n < 3: A(f's_add_u32 s{sA}, s{sA}, 0x8000')
stamp(0)
A(f'''v_mul_u32_u24 v9, 1152, v{vQ}
      v_lshl_add_u32 v9, v{vU}, 8, v9
      v_lshl_add_u32 v9, v{vB4}, 3, v9
      v_xor_b32 v8, s{sWV}, v{vU}
      v_lshl_add_u32 v9, v8, 5, v9
      v_mul_u32_u24 v14, 272, v{vB4}
      v_lshl_add_u32 v14, v{vQ}, 3, v14
      v_add_u32 v14, {L_XC}, v14
      v_lshlrev_b32 v11, 8, v{vQ}
      v_lshl_add_u32 v11, v{vB4}, 4, v11
      s_mul_i32 s{sC}, s{sWV}, 4352''')
sadd(sP0, (sH, 13), (sWV, 10), H0A)
sadd(sP1, (sJ4, 6), (sP0, 0))
A(f'''s_xor_b32 s{sP3}, s{sP1}, {H0A ^ H0B}
      v_mul_u32_u24 v8, 1088, v{vU}
      v_lshl_add_u32 v8, v{vB4}, 8, v8
      v_and_b32 v10, 1, v{vQ}
      v_lshl_add_u32 v8, v10, 3, v8
      v_add_u32 v8, s{sC}, v8
      v_lshrrev_b32 v10, 1, v{vQ}
      v_xor_b32 v10, v10, v{vB4}
      v_xor_b32 v124, 2, v10
      v_lshl_add_u32 v10, v10, 4, v8
      v_lshl_add_u32 v124, v124, 4, v8
      v_add_u32 v125, {L_XQ}, v{aL16}
      s_lshr_b32 s{sA}, s{sWV}, 1
      s_lshl_b32 s{sA}, s{sA}, 10
      s_and_b32 s{sBt}, s{sWV}, 1
      s_lshl_b32 s87, s{sBt}, 3
      s_add_u32 s{sA}, s{sA}, s87
      v_add_u32 v126, s{sA}, v125
      v_lshlrev_b32 v127, 4, v{vI}
      v_lshl_add_u32 v127, v{vQ}, 15, v127
      s_lshl_b32 s{sA}, s{sWV}, 5
      s_add_u32 s{sA}, s{sA}, {L_QO}
      v_lshl_add_u32 v152, v{vB4}, 8, s{sA}
      v_lshl_add_u32 v152, v{vQ}, 3, v152
      v_add_u32 v153, {L_QO}, v{aL16}
      v_xor_b32 v7, v{vQ}, v{vI}
      v_lshlrev_b32 v7, 4, v7
      v_lshl_add_u32 v7, v{vQ}, 13, v7''')
sadd(sP2, (sH, 10), (sJ4, 8), H1)
def wuk_dma():
    for n in range(4):
        A(f's_add_u32 m0, s{sC}, {L_WUK + n*1088}')
        A(f'buffer_load_dwordx4 v7, {srd(WUK)}, s{sD} offen{NTW} lds')
        if n < 3: A(f's_add_u32 s{sD}, s{sD}, 0x8000')
make_tag()
A(f'''v_mov_b32 v{G1_+2}, s{sT}
      v_mov_b32 v{G1_+3}, s{sT}
      v_lshl_add_u32 v8, v{vQ}, 1, s87
      v_lshrrev_b32 v154, v8, v{vT}
      v_lshrrev_b32 v155, 1, v154
      s_mov_b32 s86, 0x07060302
      s_mov_b32 s83, 0x00010001''')
A(f's_cmp_lg_u32 s{sWV}, 0\ns_cbranch_scc1 L_noln\ns_waitcnt vmcnt(4)\nv_mov_b32 v12, 0')
for k in range(16): A(f'v_dot2c_f32_bf16 v12, s{sONES}, v{XS+k}')
A(f'v_mul_u32_u24 v6, 272, v{vQ}\nv_lshl_add_u32 v6, v{vI}, 4, v6\nv_add_u32 v6, {L_XC}, v6')
row_red(12, 'v_add_f32')
A(f'v_mul_f32 v12, {f32(-1.0/512)}, v12\nv_mov_b32 v13, v12\nv_mov_b32 v44, 0\nv_mov_b32 v45, 0')
for k in range(16):
    t = 48 + 2 * k
    A(f'''v_lshlrev_b32 v{t}, 16, v{XS+k}
          v_and_b32 v{t+1}, 0xffff0000, v{XS+k}
          v_pk_add_f32 {vr(t,2)}, {vr(t,2)}, v[12:13]''')
    if k < 4: A(f'v_cvt_pk_bf16_f32 v{40+k}, v{t}, v{t+1}')
    if k == 3: A('ds_write_b128 v6, v[40:43]')
    A(f'v_pk_fma_f32 v[44:45], {vr(t,2)}, {vr(t,2)}, v[44:45]')
A('v_add_f32 v12, v44, v45')
row_red(12, 'v_add_f32')
QFIX = 1.0
A(f'''v_mov_b32 v13, {f32(1e-5)}
      v_fmac_f32 v13, {f32(1.0/512)}, v12
      v_rsq_f32 v12, v13
      v_lshlrev_b32 v6, 2, v{vQ}
      v_add_u32 v6, {L_XC+2048}, v6
      v_mul_f32 v12, {f32(128**-0.5*math.log2(math.e)*QFIX)}, v12
      ds_write_b32 v6, v12''')
stamp(21)
A.label('L_noln')
if OPT['wukpos'] == 0: wuk_dma()
A(f'''v_lshlrev_b32 v6, 2, v{vB4}
      v_add_u32 v6, {L_XC+2048}, v6
      s_waitcnt vmcnt({0 if OPT["wukpos"] else 4}) lgkmcnt(0)''')
if OPT['wukpos'] == 2: wuk_dma()
if OPT['g1pf']:
    n = OPT['g1pf']
    sadd(sA, (sPAIR, 17), (sV4, 15), (32 - n) * 1024 - 0)
    A(f'''s_lshr_b32 s{sBt}, s{sWV}, 2
          s_mul_i32 s{sBt}, s{sBt}, {n*512}
          s_add_u32 s{sA}, s{sA}, s{sBt}
          v_lshlrev_b32 v8, 7, v{vL}
          s_mov_b64 exec, {hex((1 << (4*n)) - 1) if n < 8 else '0x7fffffff'}
          buffer_load_dword v200, v8, {srd(CKV)}, s{sA} offen
          s_mov_b64 exec, -1''')
stamp(1)
A('s_barrier')
for s in range(4):
    for hf in range(2):
        A(f'ds_read_b64 {vr(XF+4*s+2*hf,2)}, v14 offset:{64*s + 32*hf}')
        A(f'ds_read_b64_tr_b16 {vr(TF+4*s+2*hf,2)}, v9 offset:{L_WQ + (8*s+4*hf)*1152}')
for s in range(4):
    A(f's_waitcnt lgkmcnt({12-4*s})')
    mfma32(ACC, TF + 4 * s, XF + 4 * s, '0' if s == 0 else None)
A('ds_read_b32 v12, v6')
set_exec(0x000f000f)
A(f'''v_cvt_pk_bf16_f32 v{G1_}, v{ACC}, v{ACC+1}
      v_cvt_pk_bf16_f32 v{G1_+1}, v{ACC+2}, v{ACC+3}
      buffer_store_dwordx4 {vr(G1_,4)}, v11, {srd(WS)}, s{sP1} offen''')
full_exec()
stamp(2)
if OPT['wukpos'] == 1: wuk_dma()
def uf_reads():
    A('s_waitcnt vmcnt(1)')
    for s in range(4):
        A(f'ds_read_b64 {vr(UF+4*s,2)}, v10 offset:{L_WUK + s*64}')
        A(f'ds_read_b64 {vr(UF+4*s+2,2)}, v124 offset:{L_WUK + s*64}')
if OPT['bbpf']:
    n = OPT['bbpf']
    sadd(69, (sPAIR, 17), (sV4, 15), (32 - n) * 1024)
    A(f'''s_lshr_b32 s{sBt}, s{sWV}, 2
          s_mul_i32 s{sBt}, s{sBt}, {n*512}
          s_add_u32 s69, s69, s{sBt}
          v_lshlrev_b32 v156, 7, v{vL}''')
def fb0():
    set_exec(0x000f000f)
    A(f'buffer_store_dwordx4 {vr(G1_,4)}, v11, {srd(WS)}, s{sP3} offen sc1')
    full_exec()
poll(f'buffer_load_dwordx4 {vr(XQ,4)}, v{aL16}, {srd(WS)}, s{sP0} offen sc1',
     [XQ + 3], 44, onfail=toggle([sP0], H0A ^ H0B), late=fb0, pre_late=f'ds_write_b64 v126, {vr(XQ,2)}', between=uf_reads)
stampcnt(40)
stamp(3)
A('s_waitcnt lgkmcnt(0)\ns_barrier')
for s in range(4): A(f'ds_read_b128 {vr(XB+4*s,4)}, v125 offset:{1024*s}')
if OPT['bbpf']:
    n = OPT['bbpf']
    A(f'''s_mov_b32 exec_lo, {hex((1 << (4*n)) - 1) if n < 8 else '-1'}
          s_mov_b32 exec_hi, {hex((1 << (4*n-32)) - 1) if n > 8 else '0'}
          buffer_load_dword v200, v156, {srd(CKV)}, s69 offen
          s_mov_b64 exec, -1''')
for s in range(4):
    A(f's_waitcnt lgkmcnt({3-s})')
    mfma32(ACC, UF + 4 * s, XB + 4 * s, '0' if s == 0 else None)
for r in range(4): A(f'v_add_f32_dpp v{ACC+r}, v{ACC+r}, v{ACC+r} row_ror:4 row_mask:0xf bank_mask:0xf')
for r in range(4): A(f'v_add_f32_dpp v{ACC+r}, v{ACC+r}, v{ACC+r} row_ror:8 row_mask:0xf bank_mask:0xf')
for r in range(4): A(f'v_mul_f32 v{ACC+r}, v12, v{ACC+r}')
for r in range(4): A(f'v_add_u32 v{ACC+r}, 0x10000, v{ACC+r}')
A(f'''v_perm_b32 v116, v{ACC+1}, v{ACC}, s86
      v_perm_b32 v117, v{ACC+3}, v{ACC+2}, s86
      v_bfi_b32 v116, s83, v154, v116
      v_bfi_b32 v117, s83, v155, v117
      ds_write_b64 v152, v[116:117]
      s_cmp_lt_u32 s{sWV}, 4
      s_waitcnt lgkmcnt(0)
      s_barrier
      s_cbranch_scc1 L_stream
      s_cmp_lg_u32 s{sWV}, 4
      s_cbranch_scc1 L_qgather
      ds_read_b128 v[116:119], v153
      s_waitcnt lgkmcnt(0)
      buffer_store_dwordx4 v[116:119], v127, {srd(WS)}, s{sP2} offen sc1''')
stamp(4)
A.label('L_qgather')

VF, PF, PA, OW, LA, ONES = 16, 80, 96, 112, 216, 220
RB = PF
def common_addr():
    A(f'''v_lshl_add_u32 v{aVF0}, v{vQ}, 2, v{vU}
          v_mul_u32_u24 v{aVF0}, {PITCH}, v{aVF0}
          v_lshl_add_u32 v{aVF0}, v{vB4}, 3, v{aVF0}
          s_lshl_b32 s{sA}, s{sWV}, 7
          v_add_u32 v{aVF0}, s{sA}, v{aVF0}
          v_add_u32 v{aVF1}, {64*PITCH}, v{aVF0}
          v_add_u32 v{aP}, {L_P}, v{aL16}
          s_lshl_b32 s{sA}, s{sWV}, 11
          s_add_u32 s{sA}, s{sA}, {L_R}
          v_add_u32 v{aSR}, s{sA}, v{aL16}
          v_lshl_add_u32 v9, v{vI}, 7, s{sA}
          v_lshlrev_b32 v6, 1, v{vQ}
          v_xor_b32 v6, v6, v{vI}
          v_and_b32 v6, 7, v6
          v_lshl_add_u32 v{aSW}, v6, 4, v9
          v_xor_b32 v{aSW+1}, 16, v{aSW}
          v_lshrrev_b32 v6, 3, v{vL}
          v_xor_b32 v7, v6, v{vL}
          v_and_b32 v7, 7, v7
          v_lshlrev_b32 v7, 4, v7
          v_lshl_add_u32 v{aST}, v6, 17, v7''')
    sadd(sH2ST, (sG, 21), (sWV, 14), (sPAIR, 7), H2)
def v_reads(s):
    for ct in range(4):
        for hf in range(2):
            A(f'ds_read_b64_tr_b16 {vr(VF+(s*4+ct)*4+2*hf,2)}, v{aVF0+(s>>1)} offset:{(s&1)*32*PITCH + hf*16*PITCH + ct*32}')
def p_reads():
    for s in range(4): A(f'ds_read_b128 {vr(PF+4*s,4)}, v{aP} offset:{1024*s}')
TB = 120
def ow_tags():
    A(f'v_and_b32 v6, 1, v{vQ}\nv_lshlrev_b32 v6, 3, v6\nv_lshrrev_b32 v{TBR[0]}, v6, v{vT}')
    for k in range(1, 8): A(f'v_lshrrev_b32 v{TBR[k]}, {k}, v{TBR[0]}')
TBR = [6, 7, 10, 11, 224, 225, 226, 227]

QG, WR = 16, 124
aLS, aGS, aBIT, aOL, aWTw, aWTr, aHCs, aUV, aOF, aRDw, aRDr, aH3, aCT, aE, aDMP = 192, 193, 194, 195, 196, 197, 198, 199, 200, 202, 203, 204, 206, 210, 212
G4, W4, aOLw = 184, 188, 205
aQW = 160
def back_addr():
    A(f'''v_add_u32 v{aOL}, {L_OL}, v{aL16}
          v_lshlrev_b32 v{aHCs}, 8, v{vQ}
          v_lshl_add_u32 v{aHCs}, v{vB4}, 4, v{aHCs}
          v_lshl_add_u32 v7, v{vQ}, 2, v{vU}
          v_mul_u32_u24 v{aUV}, {16*WP + 128}, v{vQ}
          v_mul_u32_u24 v6, {WP}, v{vU}
          v_add_u32 v{aUV}, v{aUV}, v6
          v_lshl_add_u32 v{aUV}, v{vB4}, 3, v{aUV}
          s_lshl_b32 s{sA}, s{sWV}, 5
          v_add_u32 v{aUV}, s{sA}, v{aUV}
          v_lshlrev_b32 v7, 6, v7
          v_lshl_add_u32 v7, v{vB4}, 3, v7
          v_and_b32 v6, 1, v{vQ}
          v_lshl_add_u32 v7, v6, 5, v7
          s_lshl_b32 s{sA}, s{sWV}, 12
          s_add_u32 s{sA}, s{sA}, {L_WO}
          v_add_u32 v{aOF}, s{sA}, v7
          v_xor_b32 v{aOF+1}, 32, v{aOF}
          s_lshl_b32 s{sA}, s{sWV}, 10
          s_add_u32 s{sA}, s{sA}, {L_RED}
          v_add_u32 v{aRDw}, s{sA}, v{aL16}
          v_lshrrev_b32 v6, 1, v{vU}
          v_lshl_add_u32 v{aRDr}, v6, 12, v{aL16}
          v_add_u32 v{aRDr}, {L_RED}, v{aRDr}
          v_and_b32 v6, 7, v{vL}
          v_lshlrev_b32 v6, 4, v6
          v_lshl_add_u32 v{aH3}, v{vQ}, 10, v6''')
    sadd(76, (sX8, 15), (sWV, 12), HCA)
    sadd(77, (sH, 13), (sWV, 10), (sJ4, 6), HCA)
    sadd(79, (sR, 12), (sX8, 7), H3)
    sadd(78, (sX8, 7), (sR, 2), HT)
    for k in range(4): A(f'v_mov_b32 v{G4+k}, s{sT}')
    A(f'v_mov_b32 v{W4}, s{sT}\nv_mov_b32 v{W4+1}, s{sT}')
common_addr()
A(f's_lshl1_add_u32 s{sC}, s{sB}, s{sG}')
sadd(sP0, (sC, 14), H1)
sQ = 16
A(f'v_add_u32 v11, {L_R}, v{aL16}')
if OPT['qrot']: A(f's_lshl2_add_u32 s{sD}, s{sV4}, s{sR}')
else: A(f's_lshl_b32 s{sD}, s{sV4}, 2')
for k in range(4):
    A(f'''s_add_u32 s{sA}, s{sD}, {k}
          s_and_b32 s{sA}, s{sA}, 15
          s_lshl_b32 s{sBt}, s{sA}, 10
          s_add_u32 s{sQ+k}, s{sBt}, s{sP0}
          s_mul_i32 s{sA}, s{sA}, {PITCH}
          v_add_u32 v{aQW+k}, s{sA}, v11
          v_lshl_add_u32 v6, v{vB4}, 2, {k}
          v_lshrrev_b32 v6, v6, v{vT}
          v_and_b32 v{aQW+4+k}, 0x00010001, v6''')
A(f'''s_lshl_b32 s{sA}, s{sV4}, 2
      s_add_u32 s{sA}, s{sA}, {L_QFLAG}
      v_mov_b32 v12, s{sA}
      v_and_b32 v9, 1, v{vL}
      v_lshlrev_b32 v9, 7, v9
      v_lshrrev_b32 v13, 1, v{vL}
      v_lshl_add_u32 v10, v13, 10, v9
      v_lshlrev_b32 v9, 4, v{vI}
      v_lshl_add_u32 v9, v{vQ}, 13, v9''')
sadd(sP2, (sJ4, 20), (sV4, 18), (sH, 8))
sadd(sP3, (sH, 17), (sV4, 15), (sJ4, 8))
sadd(sA, (sH, 13), (sJ4, 11), (sV4, 9), HCA)
A(f's_lshr_b32 s{sC}, s{sH}, 4\ns_and_b32 s{sD}, s{sH}, 15')
sadd(sP0, (sC, 15), (sV4, 13), (sD, 4), HS)
A(f'''s_cmp_lg_u32 s{sG}, 0
      s_cbranch_scc1 L_nopre
      v_lshlrev_b32 v8, 7, v{vB4}
      buffer_load_dword v47, v8, {srd(WS)}, s{sA} offen sc1
      v_and_b32 v8, 1, v{vL}
      v_lshlrev_b32 v8, 8, v8''')
sadd(sA, (sC, 15), (sR, 11), (sV4, 9), (sD, 4), HS)
if OPT['hspre']: A(f'buffer_load_dword v46, v8, {srd(WS)}, s{sA} offen sc1')
A.label('L_nopre')
lds_wait(L_PROG, 1, 48)
stamp(5)
def gather_addr():
    back_addr()
    A(f's_lshl2_add_u32 s{sC}, s{sH}, s{sJ4}\ns_lshl3_add_u32 s{sC}, s{sC}, s{sV4}')
    sadd(sP1, (sC, 12), H2)
    A(f'''v_and_b32 v6, 31, v{vL}
          v_lshlrev_b32 v{aLS}, 8, v6
          s_lshl_b32 s85, s{sV4}, 13
          s_add_u32 s85, s85, {L_CS}
          s_cmp_lt_u32 s{sWV}, 4
          s_cselect_b32 s{sA}, 0x1000, 0
          s_add_u32 s86, s85, s{sA}
          s_lshl2_add_u32 s87, s{sA}, s{sP1}
          s_lshr_b32 s{sA}, s{sA}, 1
          v_add_u32 v{aOLw}, s{sA}, v{aOL}
          s_lshl_b32 s{sA}, s{sV4}, 6
          s_add_u32 s{sA}, s{sA}, {L_WT}
          v_lshl_add_u32 v{aWTw}, v6, 1, s{sA}
          v_lshl_add_u32 v{aWTr}, v{vQ}, 3, s{sA}
          s_lshl_b32 s84, 0x11111111, s{sV4}
          v_mul_u32_u24 v{aDMP}, {WP}, v{vQ}
          v_lshl_add_u32 v{aDMP}, v{vI}, 4, v{aDMP}
          s_mul_i32 s{sA}, s{sV4}, {32*WP + 256}
          v_add_u32 v{aDMP}, s{sA}, v{aDMP}
          v_lshlrev_b32 v6, 5, v{vQ}
          v_xor_b32 v{aGS}, v6, v{aL16}
          v_lshrrev_b32 v6, 3, v{vL}
          v_lshlrev_b32 v{aBIT}, v6, 1
          v_lshrrev_b32 v6, 1, v{vI}
          v_and_b32 v7, 1, v{vI}
          v_lshl_add_u32 v6, v7, 4, v6
          v_bfe_u32 v7, v{vT}, v6, 1
          v_mul_u32_u24 v{aE}, 0x10001, v7
          v_add_u32 v6, 8, v6
          v_bfe_u32 v7, v{vT}, v6, 1
          v_mul_u32_u24 v{aE+1}, 0x10001, v7
          v_lshl_add_u32 v6, v{vQ}, 2, v{vU}
          v_bfe_u32 v7, v6, 1, 2
          v_lshl_add_u32 v6, v6, 7, s86
          v_lshl_add_u32 v6, v{vB4}, 3, v6''')
    for t in range(4):
        A(f'v_xor_b32 v{aCT+t}, {t}, v7\nv_lshl_add_u32 v{aCT+t}, v{aCT+t}, 5, v6')
loads = ''.join(f'buffer_load_dwordx4 {vr(QG+4*k,4)}, v{aL16}, {srd(WS)}, s{sQ+k} offen sc1\n' for k in range(4))
A(f's_mov_b32 s{sCNT}, 0')
if OPT['qprio']: A('s_setprio 3')
A(loads)
if OPT['qprio']: A('s_setprio 0')
stamp(29)
gather_addr()
if OPT['pr1']: A('s_setprio 2')
A.label('L_qp')
A('v_mov_b32 v48, 0')
for k in range(4):
    A(f's_waitcnt vmcnt({3-k})')
    for c in range(4): A(f'v_xor_b32 v{QG+4*k+c}, v{QG+4*k+c}, v{aQW+4+c}')
    A(f'ds_write_b128 v{aQW+k}, {vr(QG+4*k,4)}')
    A(f'v_or3_b32 v48, v48, v{QG+4*k}, v{QG+4*k+1}\nv_or3_b32 v48, v48, v{QG+4*k+2}, v{QG+4*k+3}')
A(f'''v_and_b32 v48, s83, v48
      v_cmp_ne_u32 vcc, 0, v48
      s_cmp_eq_u64 vcc, 0
      s_cbranch_scc1 L_qok
      s_add_u32 s{sCNT}, s{sCNT}, 1
      s_sleep {OPT["qsleep"]}
      s_waitcnt lgkmcnt(0)''')
A(loads)
A(f'''s_cmp_lt_u32 s{sCNT}, {OPT['limit']}
      s_cbranch_scc1 L_qp''')
A.label('L_qok')
A('v_mov_b32 v48, -1\ns_waitcnt lgkmcnt(0)\nds_write_b32 v12, v48')
if OPT['pr1']: A('s_setprio 0')
stampcnt(41)
stamp(8)
NTP = ' nt' if OPT['pf_nt'] else ''
def late_loads():
    A(f'''s_cmp_lg_u32 s{sG}, 0
          s_cbranch_scc1 L_nolate''')
    for n in range(8):
        A(f'buffer_load_dwordx4 {vr(WR+4*n,4)}, v213, {srd(WUV)}, s{sP2} offen{NTW}')
        if n < 7: A(f's_add_u32 s{sP2}, s{sP2}, 0x8000')
    A('s_branch L_late_done')
    A.label('L_nolate')
    A(f'buffer_load_dword v124, v214, {srd(WO)}, s{sP3} offen{NTP}')
    A.label('L_late_done')
A('v_mov_b32 v213, v9\nv_mov_b32 v214, v10')
loc_issue(180)
if OPT['late'] == 1: late_loads()
stamp(9)
ow_tags()
A('s_waitcnt lgkmcnt(0)\ns_barrier')
for s in range(4): v_reads(s)
if OPT['late'] == 2: late_loads()
A('s_barrier')
stamp(10)
p_reads()
for s in range(4):
    A(f's_waitcnt lgkmcnt({3-s})')
    for ct in range(4): mfma32(PA + 4 * ct, VF + (s * 4 + ct) * 4, PF + 4 * s, '0' if s == 0 else None)

A.label('L_pvout')
stamp(22)
A('s_nop 4')
for dd in range(8):
    A(f'v_cvt_pk_bf16_f32 v{OW+dd}, v{PA+2*dd}, v{PA+2*dd+1}')
    A(f'v_bfi_b32 v{OW+dd}, s83, v{TBR[dd]}, v{OW+dd}')
    if dd in (3, 7): A(f'ds_write_b128 v{aSW+dd//4}, {vr(OW+dd-3,4)}')
UVF, OF = 16, 32
LS, WF, CF, CA, OLW = 48, 52, 76, 100, 120
CF2, CA2, OLW2 = 16, 160, 56
END = 's_branch L_end' if DEBUG else 's_endpgm'
A(f's_add_u32 s{sA}, s{sH2ST}, 0x100000\ns_waitcnt lgkmcnt(0)')
for k in range(2): A(f'ds_read_b128 {vr(16+4*k,4)}, v{aSR} offset:{1024*k}')
for k in range(2):
    A(f's_waitcnt lgkmcnt({1-k})')
    A(f'buffer_store_dwordx4 {vr(16+4*k,4)}, v{aST}, {srd(WS)}, s{[sH2ST, sA][k]} offen sc1')
if OPT['statlate'] in (1, 2):
    A(f'''s_cmp_lg_u32 s{sWV}, 0
          s_cbranch_scc1 L_nolse
          v_mov_b32 v13, v{LA}
          {'s_waitcnt vmcnt(0)' if OPT['statlate']==2 else ''}
          s_mov_b64 exec, 0xffff
          buffer_store_dwordx4 v[12:15], v{aL16}, {srd(WS)}, s{sHSST} offen sc1
          s_mov_b64 exec, -1''')
    A.label('L_nolse')
stamp(11)
A(f'''s_cmp_ge_u32 s{sWV}, 4
      s_barrier
      s_cbranch_scc1 L_nostore
      s_cmp_lg_u32 s{sG}, 0
      s_cbranch_scc1 L_g1w03''')
def wo_dma():
    A(f'''v_lshrrev_b32 v6, 2, v{vL}
          v_and_b32 v7, 1, v{vQ}
          v_lshlrev_b32 v7, 1, v7
          v_xor_b32 v7, v7, v{vB4}
          v_lshlrev_b32 v7, 4, v7
          v_lshl_add_u32 v6, v6, 10, v7
          s_lshl_b32 s{sD}, s{sWV}, 12''')
    sadd(sA, (sX8, 19), (sWV, 16), (sR, 6))
    for n in range(4):
        A(f's_add_u32 m0, s{sD}, {L_WO + 1024*n}')
        A(f'buffer_load_dwordx4 v6, {srd(WO)}, s{sA} offen{NTW} lds')
        if n < 3: A(f's_add_u32 s{sA}, s{sA}, 0x4000')
wo_dma()
if OPT['ffnpf'] == 3:
    A(f'''v_lshrrev_b32 v9, 2, v{vL}
          v_mul_u32_u24 v9, 3584, v9
          v_lshl_add_u32 v9, v{vB4}, 7, v9''')
    sadd(sA, (sR, 'mul', 32 * 3584), (sV4, 'mul', 8 * 3584), (sX8, 'mul', 448))
    A(f'''s_mov_b32 exec_hi, 0
          buffer_load_dword v124, v9, {srd(WG)}, s{sA} offen{NTP}
          buffer_load_dword v125, v9, {srd(WU)}, s{sA} offen{NTP}
          s_mov_b32 exec_hi, -1''')
SEL, RA, HV, RD, aX, XH = 216, 220, 224, 128, 243, 234
def unpack_hv():
    A(f'''v_lshlrev_b32 v{HV}, 16, v{XH}
          v_and_b32 v{HV+1}, 0xffff0000, v{XH}
          v_lshlrev_b32 v{HV+2}, 16, v{XH+1}
          v_and_b32 v{HV+3}, 0xffff0000, v{XH+1}''')
A(f'''      v_bfe_u32 v6, v{vL}, 2, 1
      v_cmp_eq_u32 s[70:71], 1, v6
      v_and_b32 v9, 1, v{vB4}
      v_lshlrev_b32 v9, 4, v9
      v_mov_b32 v10, 0x3f80
      v_lshlrev_b32 v10, v9, v10
      v_cmp_gt_u32 vcc, 2, v{vB4}
      v_cndmask_b32 v{SEL}, 0, v10, vcc
      v_cndmask_b32 v{SEL+1}, v10, 0, vcc
      v_mov_b32 v{SEL+2}, v{SEL}
      v_mov_b32 v{SEL+3}, v{SEL+1}
      v_mov_b32 v{RD+4}, 0
      v_mov_b32 v{RD+5}, 0
      v_mov_b32 v{RD+28}, 0
      v_mov_b32 v{RD+29}, 0''')
loc_issue(180)
gather_addr()
unpack_hv()
if OPT['ackbar'] == 1: A('s_waitcnt vmcnt(0)')
if OPT['ackbar'] == 2: A('s_waitcnt vmcnt(5)')
A('s_barrier')
A('s_waitcnt vmcnt(0)')
loc_eval(180)
def uv_reads():
    for s in range(4):
        for hf in range(2):
            A(f'ds_read_b64_tr_b16 {vr(UVF+4*s+2*hf,2)}, v{aUV} offset:{L_UV + (s>>1)*(64*WP+512) + (8*(s&1)+4*hf)*WP}')
uv_reads()
stamp(12)
A('s_branch L_bg')
A.label('L_nostore')
if OPT['pr2']: A('s_setprio 2')
if OPT['late'] == 3: late_loads()
A(f's_cmp_lg_u32 s{sG}, 0\ns_cbranch_scc1 L_g1tail')

sPEND, sNEW = 80, 81
def dma_k(k, cs):
    A(f'buffer_load_dwordx4 v{aGS}, {srd(WS)}, s{sP1 + cs} offen offset:{1024*k} sc1 lds')
def gather_loop(css, mid=None):
    GL, GN, GD = A.newlab('Lgl'), A.newlab('Lgn'), A.newlab('Lgd')
    stamp(31)
    A(f'''s_mov_b32 exec_hi, 0
          buffer_load_dwordx4 {vr(LS,4)}, v{aLS}, {srd(WS)}, s{sP0} offen sc1
          s_mov_b32 exec_hi, -1
          s_mov_b32 s{sPEND}, -1
          s_mov_b32 s{sCNT}, 0
          s_add_u32 s{sP2}, s{sP1}, 0x4000''')
    if mid: mid()
    A.label(GL)
    A(f'''s_waitcnt vmcnt(0)
          v_cmp_eq_u32 vcc, v{LS+3}, v{vT}
          s_and_b32 s{sNEW}, vcc_lo, s{sPEND}
          s_cbranch_scc0 {GN}
          s_andn2_b32 s{sPEND}, s{sPEND}, s{sNEW}''')
    for k in range(4):
        A(f'v_and_b32 v{136+k}, s{sNEW}, v{aBIT}')
        if k < 3: A(f's_lshr_b32 s{sNEW}, s{sNEW}, 8')
    for k in range(4): A(f'v_cmp_ne_u32 s[{16+2*k}:{17+2*k}], 0, v{136+k}')
    for cs in css:
        A(f's_add_u32 m0, s85, {cs*4096}')
        for k in range(4):
            sk = A.newlab('Lsk')
            A(f's_mov_b64 exec, s[{16+2*k}:{17+2*k}]\ns_cbranch_execz {sk}')
            dma_k(k, cs)
            A.label(sk)
    A(f'''s_mov_b64 exec, -1
          s_cmp_eq_u32 s{sPEND}, 0
          s_cbranch_scc1 {GD}''')
    A.label(GN)
    A(f'''s_mov_b32 exec_lo, s{sPEND}
          s_mov_b32 exec_hi, 0
          buffer_load_dwordx4 {vr(LS,4)}, v{aLS}, {srd(WS)}, s{sP0} offen sc1
          s_mov_b64 exec, -1
          s_add_u32 s{sCNT}, s{sCNT}, 1
          s_cmp_lt_u32 s{sCNT}, {OPT['limit']}
          s_cbranch_scc1 {GL}''')
    A.label(GD)
def dump_uv():
    for n in range(8):
        A(f's_waitcnt vmcnt({(11 if OPT["ffnpf"] else 8)-n})')
        A(f'ds_write_b128 v{aDMP}, {vr(WR+4*n,4)} offset:{L_UV + n*4*WP + (n>>2)*128}')
    stamp(13)
for n in range(8):
    A(f's_waitcnt vmcnt({(12 if OPT["ffnpf"] in (1,2) else 9)-n})')
    A(f'ds_write_b128 v{aDMP}, {vr(WR+4*n,4)} offset:{L_UV + n*4*WP + (n>>2)*128}')
loc_eval(180)
A(f's_add_u32 s{sP2}, s{sP1}, 0x4000\ns_mov_b32 m0, s85')
A('s_waitcnt lgkmcnt(0)\ns_barrier')
stamp(13)
mpoll([(f'buffer_load_dwordx4 {vr(LS,4)}, v{aLS}, {srd(WS)}, s{sP0} offen sc1', [LS + 3])], ('-1', '0'), 16, 136, between=uv_reads)
for cs in range(2):
    if cs: A(f's_add_u32 m0, s85, 4096')
    for k in range(4): dma_k(k, cs)
wo_dma()
stampcnt(42)
stamp(14)
A(f'v_mov_b32 v12, v{LS}')
row_red(12, 'v_max_f32')
swap_red(12, 13, 'v_max_f32', 16)
A(f'''v_sub_f32 v12, v{LS}, v12
      v_exp_f32 v12, v12
      v_mul_f32 v13, v12, v{LS+1}''')
row_red(13, 'v_add_f32')
swap_red(13, 14, 'v_add_f32', 16)
A(f'''v_rcp_f32 v13, v13
      v_mul_f32 v12, {f32(1.0 + 2.0**-8*0.72)}, v12
      v_mul_f32 v12, v12, v13
      v_cvt_pk_bf16_f32 v12, v12, v12
      s_mov_b32 exec_hi, 0
      ds_write_b16 v{aWTw}, v12
      s_mov_b32 exec_hi, -1
      s_waitcnt vmcnt(4)''')
stamp(15)
if OPT['pr2'] == 1: A('s_setprio 0')
A.label('L_bg')
A(f'''s_mov_b32 s{sCNT}, 0
      s_waitcnt lgkmcnt(0)
      s_barrier
      ds_read_b64 {vr(WF,2)}, v{aWTr}
      ds_read_b64 {vr(WF+2,2)}, v{aWTr} offset:32''')
if OPT['tk']:
    A(f'''s_cmp_lg_u32 s{sWV}, 0
          s_cbranch_scc1 L_h2poll
          s_mov_b64 exec, 1
          buffer_store_dword v{vT}, v{aL16}, {srd(WS)}, s78 offen
          s_mov_b64 exec, -1''')
A.label('L_h2poll')
for t in range(4):
    for hf in range(2): A(f'ds_read_b64_tr_b16 {vr(CF+4*t+2*hf,2)}, v{aCT+t} offset:{2048*hf}')
A('v_mov_b32 v14, 0')
for t in range(4):
    A(f's_waitcnt lgkmcnt({6 - 2*t})')
    for k in range(4): A(f'v_xor_b32 v{CF+4*t+k}, v{CF+4*t+k}, v{aE+(t&1)}')
    A(f'v_or3_b32 v14, v14, v{CF+4*t}, v{CF+4*t+1}\nv_or3_b32 v14, v14, v{CF+4*t+2}, v{CF+4*t+3}')
    mfma32(CA + 4 * t, CF + 4 * t, WF, '0')
A(f'''v_and_b32 v14, s83, v14
      v_cmp_ne_u32 vcc, 0, v14
      s_cmp_eq_u64 vcc, 0
      s_cbranch_scc1 L_h2ok
      s_add_u32 s{sCNT}, s{sCNT}, 1
      s_mov_b32 m0, s86''')
for k in range(4): A(f'buffer_load_dwordx4 v{aGS}, {srd(WS)}, s87 offen offset:{1024*k} sc1 lds')
A(f'''s_cmp_lt_u32 s{sCNT}, {OPT['limit']}
      s_waitcnt vmcnt(0)
      s_cbranch_scc1 L_h2poll''')
A.label('L_h2ok')
stampcnt(43)
A('s_mov_b32 exec_lo, s84\ns_mov_b32 exec_hi, s84\ns_nop 1')
for dd in range(8):
    A(f'v_cvt_pk_bf16_f32 v{OLW+dd}, v{CA+2*dd}, v{CA+2*dd+1}')
    if dd in (3, 7): A(f'ds_write_b128 v{aOLw}, {vr(OLW+dd-3,4)} offset:{1024*(dd//4)}')
full_exec()
A(f's_bitcmp1_b32 s{sWV}, 0\ns_waitcnt lgkmcnt(0)\ns_barrier')
stamp(16)
for s in range(4): A(f'ds_read_b128 {vr(56+4*s,4)}, v{aOL} offset:{1024*s}')
for s in range(4):
    A(f's_waitcnt lgkmcnt({3-s})')
    mfma32(72, UVF + 4 * s, 56 + 4 * s, '0' if s == 0 else None)
set_exec(0x000f000f)
A(f'''s_cbranch_scc1 L_s4odd
      s_nop 4
      v_cvt_pk_bf16_f32 v{G4+2}, v72, v73
      v_cvt_pk_bf16_f32 v{G4+3}, v74, v75
      s_branch L_s4done''')
A.label('L_s4odd')
A(f'''s_nop 4
      v_cvt_pk_bf16_f32 v{G4}, v72, v73
      v_cvt_pk_bf16_f32 v{G4+1}, v74, v75''')
A.label('L_s4done')
loc_store(f'buffer_store_dwordx4 {vr(G4,4)}, v{aHCs}, {srd(WS)}, s77 offen')
full_exec()
stamp(17)
def of_reads():
    A('s_waitcnt vmcnt(5)')
    for s2 in range(2):
        for t in range(2):
            for hf in range(2):
                A(f'ds_read_b64_tr_b16 {vr(OF+(s2*2+t)*4+2*hf,2)}, v{aOF+t} offset:{s2*2048 + hf*1024}')
A5, YO = 80, 88
mpoll([(f'buffer_load_dwordx4 {vr(56+4*k,4)}, v{aL16}, {srd(WS)}, s76 offen offset:{1024*k} sc1', [56 + 4 * k + (3 if k & 1 else 0)]) for k in range(4)],
      ('-1', '-1'), 16, 136, between=of_reads)
A('s_waitcnt lgkmcnt(0)')
for s2 in range(2):
    for t in range(2): mfma32(A5 + 4 * t, OF + (s2 * 2 + t) * 4, 58 + 8 * s2, '0' if s2 == 0 else None)
stampcnt(44)
stamp(18)
for r in range(4): A(f'v_add_f32_dpp v{YO+r}, v{A5+r}, v{A5+r} row_ror:4 row_mask:0xf bank_mask:0x5')
for r in range(4): A(f'v_add_f32_dpp v{YO+r}, v{A5+4+r}, v{A5+4+r} row_ror:4 row_mask:0xf bank_mask:0xa')
for r in range(4): A(f'v_add_f32_dpp v{YO+r}, v{YO+r}, v{YO+r} row_ror:8 row_mask:0xf bank_mask:0xf')
A(f'''ds_write_b128 v{aRDw}, {vr(YO,4)}
      s_cmp_eq_u32 s{sWV}, 4
      s_waitcnt lgkmcnt(0)
      s_barrier
      s_cbranch_scc1 L_s5fin
      s_cmp_lt_u32 s{sWV}, 4
      s_cbranch_scc1 L_red
      {END}''')
A.label('L_s5fin')
for k in range(4): A(f'ds_read_b128 {vr(80+4*k,4)}, v{aRDr} offset:{1024*k}')
A(f'''s_waitcnt lgkmcnt(0)
      v_pk_add_f32 v[80:81], v[80:81], v[84:85]
      v_pk_add_f32 v[82:83], v[82:83], v[86:87]
      v_pk_add_f32 v[88:89], v[88:89], v[92:93]
      v_pk_add_f32 v[90:91], v[90:91], v[94:95]
      v_pk_add_f32 v[80:81], v[80:81], v[88:89]
      v_pk_add_f32 v[82:83], v[82:83], v[90:91]''')
for r in range(4): A(f'v_add_f32_dpp v{80+r}, v{80+r}, v{80+r} row_ror:8 row_mask:0xf bank_mask:0xf')
set_exec(0x00ff00ff)
A(f'''v_cvt_pk_bf16_f32 v{W4+2}, v80, v81
      v_cvt_pk_bf16_f32 v{W4+3}, v82, v83
      buffer_store_dwordx4 {vr(W4,4)}, v{aH3}, {srd(WS)}, s79 offen sc1''')
stamp(19)
A.label('L_end')
endwave()

A.label('L_g1w03')
A(f'''{'s_waitcnt vmcnt(0)' if OPT['ffnwait'] else ''}
      s_barrier
      {END}''')
A.label('L_g1tail')
A(f'''v_lshrrev_b32 v9, 2, v{vL}
      v_mul_u32_u24 v6, 3584, v9
      v_lshl_add_u32 v9, v{vB4}, 7, v6
      v_lshlrev_b32 v10, 7, v{vL}''')
sadd(sD, (sR, 'mul', 32 * 3584), (sV4, 'mul', 8 * 3584), (sX8, 'mul', 448))
A(f's_and_b32 s{sA}, s{sR}, 7')
sadd(sC, (sA, 'mul', 28672), (sX8, 'mul', 7 * 32768), (sV4, 'mul', 7168))
if OPT['helper']:
    gather_loop((1, 0))
    A('s_waitcnt vmcnt(0)')
    stamp(14)
A('s_barrier')
if not OPT['ffnpf']:
    if OPT['trig']:
        if OPT['tk']:
            sadd(sA, (sX8, 7), HT)
            A(f'''s_mov_b32 s{sCNT}, 0
                  v_lshlrev_b32 v8, 2, v{vL}
                  s_mov_b64 exec, 0xffff''')
            A.label('L_trig')
            A(f'''buffer_load_dword v124, v8, {srd(WS)}, s{sA} offen sc1
                  s_add_u32 s{sCNT}, s{sCNT}, 1
                  s_waitcnt vmcnt(0)
                  v_cmp_eq_u32 vcc, v124, v{vT}
                  s_cmp_ge_u32 s{sCNT}, {OPT['trig']}
                  s_cbranch_scc1 L_trigged
                  s_bcnt1_i32_b64 s{sBt}, vcc
                  s_cmp_lt_u32 s{sBt}, {OPT['tk']}
                  s_cbranch_scc1 L_trig''')
        else:
            sadd(sA, (sH, 13), (sJ4, 6), HCA)
            A(f'''s_mov_b32 s{sCNT}, 0
                  s_mov_b64 exec, 1''')
            A.label('L_trig')
            A(f'''buffer_load_dword v124, v{aL16}, {srd(WS)}, s{sA} offen sc1
                  s_add_u32 s{sCNT}, s{sCNT}, 1
                  s_waitcnt vmcnt(0)
                  v_cmp_eq_u32 vcc, v124, v{vT}
                  s_cmp_ge_u32 s{sCNT}, {OPT['trig']}
                  s_cbranch_scc1 L_trigged
                  s_cbranch_vccz L_trig''')
        A.label('L_trigged')
        stamp(27)
    A(f'''s_mov_b32 exec_lo, -1
          s_mov_b32 exec_hi, 0
          buffer_load_dword v124, v9, {srd(WG)}, s{sD} offen{NTP}
          buffer_load_dword v125, v9, {srd(WU)}, s{sD} offen{NTP}
          s_mov_b64 exec, -1''')
A(f'''s_cmp_lt_u32 s{sR}, 7
      s_cbranch_scc1 L_ffn
      s_cmp_ge_u32 s{sR}, 8
      s_cbranch_scc1 L_dpf
      {END}''')
A.label('L_dpf')
A(f'''s_mov_b32 exec_hi, 0xffffff
      buffer_load_dword v126, v10, {srd(WD)}, s{sC} offen{NTP}
      {END}''')

A.label('L_red')
def reduce_fin(nl):
    for p in range((nl + 1) // 2):
        mfma32(RA, SEL, RD + 8 * p + 2, '0' if p == 0 else None)
    for r in range(4): A(f'v_add_f32_dpp v{RA+r}, v{RA+r}, v{RA+r} row_ror:8 row_mask:0xf bank_mask:0xf')
    for r in range(4): A(f'v_add_f32 v{HV+r}, v{HV+r}, v{RA+r}')
    A(f'v_cvt_pk_bf16_f32 v{XH}, v{HV}, v{HV+1}\nv_cvt_pk_bf16_f32 v{XH+1}, v{HV+2}, v{HV+3}')
if OPT['rdel']: A(f's_sleep {OPT["rdel"]}')
stamp(25)
mpoll([(f'buffer_load_dwordx4 {vr(RD,4)}, v{aL16}, {srd(WS)}, s{sP3} offen sc1', [RD])], ('-1', '-1'), 12, 100)
reduce_fin(1)
A(f'''v_cndmask_b32 v248, v{vT}, v{XH}, s[70:71]
      v_cndmask_b32 v249, v{vT}, v{XH+1}, s[70:71]
      v_cndmask_b32 v250, v{XH}, v{vT}, s[70:71]
      v_cndmask_b32 v251, v{XH+1}, v{vT}, s[70:71]
      s_mov_b64 exec, 0xff''')
loc_store(f'buffer_store_dwordx4 v[248:251], v{aL16}, {srd(WS)}, s{sP0} offen')
full_exec()
stampcnt(46)
stamp(26)
A(f'''s_and_b32 s{sA}, s{sFS}, 7
      s_cmp_eq_u32 s{sA}, s{sX8}
      s_cbranch_scc1 L_final
      {END}''')
A.label('L_final')
unpack_hv()
sadd(sP3, (sFS, 13), H5)
A(f's_add_u32 s{sP2}, s{sP3}, 0x1000')
if OPT.get('fdel', 0): A(f's_sleep {OPT["fdel"]}')
mpoll([(f'buffer_load_dwordx4 {vr(RD+4*k,4)}, v{aL16}, {srd(WS)}, s{sP3 if k<4 else sP2} offen offset:{(k&3)*1024} sc1', [RD + 4 * k + (3 if k & 1 else 0)]) for k in range(7)],
      ('-1', '-1'), 12, 100)
reduce_fin(7)
stampcnt(45)
stamp(30)
A(f'''s_mov_b64 exec, 0xff
      buffer_store_dwordx2 {vr(XH,2)}, v{aX}, {srd(OUT)}, s75 offen{[""," sc1"," sc0 sc1"," nt"][OPT["osc"]]}
      s_cmp_eq_u32 s{sFS}, 0
      s_cbranch_scc1 L_epoch
      {END}''')
A.label('L_epoch')
A(f'''s_mov_b64 exec, 1
      buffer_store_dword v{vT}, v{aL16}, {srd(WS)}, 0 offen sc1
      {END}''')

A.label('L_ffn')
FF, DF, FA, G2, FO, CS, HQ, A7 = 112, 176, 208, 224, 248, 96, 16, 48
W70, W71 = 232, 238
aG, aD, aH, aO, aSr, aSw, aXr, aXw, vLO = 104, 106, 107, 108, 109, 110, 111, 14, 12
A(f'''s_mul_i32 s{sFS}, s{sX8}, 7
      s_add_u32 s{sFS}, s{sFS}, s{sR}
      v_and_b32 v7, 1, v{vQ}
      v_lshlrev_b32 v8, 1, v7
      v_xor_b32 v8, v8, v{vB4}
      v_lshl_add_u32 v6, v8, 4, v6
      v_lshl_add_u32 v8, v{vQ}, 2, v{vU}
      v_lshlrev_b32 v{aG}, 6, v8
      v_lshl_add_u32 v{aG}, v{vB4}, 3, v{aG}
      s_lshl_b32 s{sD}, s{sV4}, 13
      v_add_u32 v{aG}, s{sD}, v{aG}
      v_lshl_add_u32 v{aG}, v7, 5, v{aG}
      v_xor_b32 v{aG+1}, 32, v{aG}
      v_mul_u32_u24 v{aD}, {PITCH}, v8
      v_lshl_add_u32 v{aD}, v{vB4}, 3, v{aD}
      s_lshl_b32 s{sA}, s{sV4}, 8
      s_add_u32 s{sA}, s{sA}, {L_D}
      v_add_u32 v{aD}, s{sA}, v{aD}
      v_lshlrev_b32 v{aH}, 7, v{vQ}
      v_lshl_add_u32 v{aH}, v{vB4}, 4, v{aH}
      v_lshrrev_b32 v7, 1, v{vU}
      v_lshl_add_u32 v7, v7, 2, v{vQ}
      v_lshlrev_b32 v7, 13, v7
      v_and_b32 v8, 7, v{vL}
      v_lshl_add_u32 v{aO}, v8, 4, v7
      v_lshlrev_b32 v{aSr}, 5, v{vB4}
      v_add_u32 v{aSr}, {L_FX + 8192}, v{aSr}
      s_lshl_b32 s{sA}, s{sV4}, 2
      v_lshl_add_u32 v{aSw}, v{vQ}, 4, v{aSr}
      v_add_u32 v{aSw}, s{sA}, v{aSw}
      v_add_u32 v{aXr}, {L_FX}, v{aL16}
      s_lshl_b32 s{sA}, s{sV4}, 10
      v_add_u32 v{aXw}, s{sA}, v{aXr}
      v_cmp_gt_u32 vcc, 2, v{vU}
      v_mov_b32 v{vLO}, 0xff800000
      v_cndmask_b32 v{vLO}, v{vLO}, 0, vcc
      s_mul_i32 s{sP3}, s{sV4}, {8*PITCH}''')
for k in range(4): A(f'v_mov_b32 v{FO+k}, s{sONES}')
for k in (0, 1, 4, 5): A(f'v_mov_b32 v{W70+k}, s{sT}\nv_mov_b32 v{W71+k}, s{sT}')
for s in range(4):
    for k in range(4): A(f'v_mov_b32 v{HQ+8*s+2+k}, s{sONES}')
sadd(sP0, (sX8, 13), (sV4, 11), H4A)
sadd(sP1, (sV4, 17), (sFS, 7), H5)
A(f's_add_u32 s{sP2}, s{sP1}, 0x10000')
sadd(sA, (sV4, 'mul', 128 * 3584), (sFS, 6))
sadd(sC, (sFS, 15), (sV4, 13))
A('s_waitcnt vmcnt(0)')
stamp(24)
for n in range(8):
    A(f's_add_u32 m0, s{sD}, {L_G + 1024*n}')
    A(f'buffer_load_dwordx4 v6, {srd(WG)}, s{sA} offen{NTW} lds')
    A(f's_add_u32 m0, s{sD}, {L_U + 1024*n}')
    A(f'buffer_load_dwordx4 v6, {srd(WU)}, s{sA} offen{NTW} lds')
    if n < 7: A(f's_add_u32 s{sA}, s{sA}, {16*3584}')
for n in range(8):
    A(f's_add_u32 m0, s{sP3}, {L_D + PITCH*n}')
    A(f'buffer_load_dwordx4 v{aL16}, {srd(WD)}, s{sC} offen{NTW} lds')
    if n < 7: A(f's_add_u32 s{sC}, s{sC}, 1024')
stamp(12)
def compact_dpp():
    for u in range(1, 4):
        for r in range(4): A(f'v_mov_b32_dpp v{FA+r}, v{FA+4*u+r} row_shr:{4*u} row_mask:0xf bank_mask:{1<<u:#x}')
def ffn_prep():
    for s in range(4):
        A(f's_waitcnt vmcnt({28-4*s})')
        for u in range(4):
            for hf in range(2):
                A(f'ds_read_b64_tr_b16 {vr(FF+(u*4+s)*4+2*hf,2)}, v{aG+(u&1)} offset:{(L_U if u>=2 else L_G) + s*2048 + hf*1024}')
        if s:
            A('s_waitcnt lgkmcnt(8)')
            for u in range(4): mfma32(FA + 4 * u, FF + (u * 4 + s - 1) * 4, FO, '0' if s == 1 else None)
    A('s_waitcnt lgkmcnt(0)')
    for u in range(4): mfma32(FA + 4 * u, FF + (u * 4 + 3) * 4, FO)
    compact_dpp()
    A(f'ds_write_b128 v{aXw}, {vr(FA,4)}\ns_waitcnt vmcnt(8) lgkmcnt(0)\ns_barrier')
    for k in range(4): A(f'ds_read_b128 {vr(80+4*k,4)}, v{aXr} offset:{1024*k}')
    for t in range(8):
        for hf in range(2):
            A(f'ds_read_b64_tr_b16 {vr(DF+4*t+2*hf,2)}, v{aD} offset:{hf*16*PITCH + 32*t}')
    A('s_waitcnt lgkmcnt(15)')
    for r in range(0, 4, 2):
        A(f'''v_pk_add_f32 {vr(80+r,2)}, {vr(80+r,2)}, {vr(84+r,2)}
              v_pk_add_f32 {vr(88+r,2)}, {vr(88+r,2)}, {vr(92+r,2)}
              v_pk_add_f32 {vr(CS+r,2)}, {vr(80+r,2)}, {vr(88+r,2)}''')
    stamp(19)
mpoll([(f'buffer_load_dwordx4 {vr(HQ+8*s,4)}, v{aH}, {srd(WS)}, s{sP0} offen offset:{512*s} sc1\nbuffer_load_dwordx4 {vr(HQ+8*s+4,4)}, v{aH}, {srd(WS)}, s{sP0} offen offset:{512*s+64} sc1',
        [HQ + 8 * s, HQ + 8 * s + 7]) for s in range(4)], ('0x000f000f', '0x000f000f'), 16, 100, between=ffn_prep)
stampcnt(45)
stamp(20)
for s in range(4): mfma32(G2, HQ + 8 * s + 2, HQ + 8 * s + 2, '0' if s == 0 else None)
for s in range(4):
    for u in range(4): mfma32(FA + 4 * u, FF + (u * 4 + s) * 4, HQ + 8 * s + 2, '0' if s == 0 else None)
for b in range(1, 4): A(f's_mov_b64 exec, {1 << b}\nv_mov_b32 v{G2}, v{G2+b}')
A(f's_mov_b64 exec, 0x000f000f\nds_write_b32 v{aSw}, v{G2}')
full_exec()
compact_dpp()
A(f'''ds_write_b128 v{aXw}, {vr(FA,4)} offset:4096
      s_waitcnt lgkmcnt(0)
      s_barrier
      ds_read_b128 v[16:19], v{aSr}
      ds_read_b128 v[20:23], v{aSr} offset:16''')
for k in range(4): A(f'ds_read_b128 {vr(80+4*k,4)}, v{aXr} offset:{4096+1024*k}')
A(f'''s_waitcnt lgkmcnt(4)
      v_pk_add_f32 v[16:17], v[16:17], v[18:19]
      v_pk_add_f32 v[20:21], v[20:21], v[22:23]
      v_add_f32 v17, v16, v17
      v_add_f32 v16, v20, v21
      v_mul_f32 v16, {f32(-1.0/512)}, v16
      v_mul_f32 v18, {f32(1.0/512)}, v17
      v_fma_f32 v18, -v16, v16, v18
      v_max_f32 v18, 0, v18
      v_add_f32 v18, {f32(1e-5)}, v18
      v_rsq_f32 v18, v18
      s_waitcnt lgkmcnt(0)''')
for r in range(0, 4, 2):
    A(f'''v_pk_add_f32 {vr(80+r,2)}, {vr(80+r,2)}, {vr(84+r,2)}
          v_pk_add_f32 {vr(88+r,2)}, {vr(88+r,2)}, {vr(92+r,2)}
          v_pk_add_f32 {vr(80+r,2)}, {vr(80+r,2)}, {vr(88+r,2)}''')
for r in range(4): A(f'v_fmac_f32 v{80+r}, v16, v{CS+r}')
for r in range(4): A(f'v_mul_f32 v{80+r}, v18, v{80+r}')
for r in range(4): A(f'v_max_f32 v{80+r}, v12, v{80+r}')
for r in range(4): A(f'v_mul_f32_dpp v{84+r}, v{80+r}, v{80+r} row_ror:8 row_mask:0xf bank_mask:0xf')
A('''v_cvt_pk_bf16_f32 v88, v84, v85
     v_cvt_pk_bf16_f32 v89, v86, v87
     v_cvt_pk_bf16_f32 v92, v84, v85
     v_cvt_pk_bf16_f32 v93, v86, v87
     v_cvt_pk_bf16_f32 v94, v84, v85
     v_cvt_pk_bf16_f32 v95, v86, v87
     v_mov_b32_dpp v92, v88 row_ror:4 row_mask:0xf bank_mask:0xa
     v_mov_b32_dpp v93, v89 row_ror:4 row_mask:0xf bank_mask:0xa
     v_mov_b32_dpp v94, v88 row_ror:4 row_mask:0xf bank_mask:0x5
     v_mov_b32_dpp v95, v89 row_ror:4 row_mask:0xf bank_mask:0x5''')
order = [0, 4, 1, 5, 2, 6, 3, 7]
for t in order: mfma32(A7 + 4 * t, DF + 4 * t, 92, '0')
A(f's_bitcmp1_b32 s{sFS}, 3')
for u in range(4):
    if u: set_exec(0x000f000f << (4 * u))
    A(f'''v_cvt_pk_bf16_f32 v{W70+2}, v{A7+4*u}, v{A7+4*u+1}
          v_cvt_pk_bf16_f32 v{W70+3}, v{A7+4*u+2}, v{A7+4*u+3}
          v_cvt_pk_bf16_f32 v{W71+2}, v{A7+16+4*u}, v{A7+16+4*u+1}
          v_cvt_pk_bf16_f32 v{W71+3}, v{A7+16+4*u+2}, v{A7+16+4*u+3}''')
full_exec()
A(f'''s_cbranch_scc1 L_s7odd
      buffer_store_dwordx4 {vr(W70,4)}, v{aO}, {srd(WS)}, s{sP1} offen sc1
      buffer_store_dwordx4 {vr(W71,4)}, v{aO}, {srd(WS)}, s{sP2} offen sc1
      {END}''')
A.label('L_s7odd')
A(f'''buffer_store_dwordx4 {vr(W70+2,4)}, v{aO}, {srd(WS)}, s{sP1} offen sc1
      buffer_store_dwordx4 {vr(W71+2,4)}, v{aO}, {srd(WS)}, s{sP2} offen sc1
      {END}''')
A.label('L_g0front')
if DEBUG: A(f's_memrealtime s[96:97]')
A(f's_cmp_lt_u32 s{sWV}, 4\ns_cbranch_scc1 L_g0s')
A(f'''v_and_b32 v9, 1, v{vL}
      v_lshlrev_b32 v9, 7, v9
      v_lshrrev_b32 v8, 1, v{vL}
      v_lshl_add_u32 v9, v8, 13, v9
      v_lshlrev_b32 v8, 7, v{vB4}''')
sadd(sA, (sJ4, 20), (sV4, 18), (sH, 8))
sadd(sC, (sH, 13), (sJ4, 11), (sV4, 9), H0A)
if OPT['wqpf']:
    sadd(sD, (sJ4, 20), (sV4, 17), (sH, 8), 64 * 8192)
    A(f'''s_mov_b32 exec_hi, 0
          buffer_load_dword v45, v9, {srd(WQ)}, s{sD} offen
          s_mov_b32 exec_hi, -1''')
    if OPT['wqpf'] == 2: A('s_sleep 8')
A(f'''buffer_load_dword v46, v8, {srd(WS)}, s{sC} offen sc1
      s_cmp_lt_u32 s{sV4}, {4 - OPT['ukpf']}
      s_cbranch_scc1 L_nouk
      buffer_load_dword v47, v9, {srd(WUK)}, s{sA} offen''')
A.label('L_nouk')
if OPT['g0hold'] == 1: A('s_waitcnt vmcnt(0)')
if OPT['g0hold'] == 2: A('s_waitcnt vmcnt(1)')
A('s_barrier')
make_tag()
A('s_branch L_qgather')
A.label('L_g0s')
A('s_barrier')
if DEBUG: A(f's_memrealtime s[98:99]')
A.label('L_stream')
KF0, QF, KF1, SA, vM = 16, 80, 144, 208, 12
sSA, sSC, sSN = 84, 85, 86
if OPT['rev']:
    sadd(sSA, (sPAIR, 17), (sV4, 15), (sG, 'mul', 31 * 1024))
    A(f's_cmp_eq_u32 s{sG}, 0\ns_cselect_b32 s{sSC}, 1, -1\ns_lshl_b32 s{sSC}, s{sSC}, 10')
else:
    sadd(sSA, (sPAIR, 17), (sV4, 15))
    A(f's_movk_i32 s{sSC}, 1024')
A(f'''s_mul_i32 m0, s{sV4}, {32*PITCH}
      s_mov_b32 s{sSN}, 0''')
def sloop(lab, lim, thr=0):
    A.label(lab)
    if thr: A(f's_waitcnt vmcnt({thr-1})')
    A(f'''buffer_load_dwordx4 v{aL16}, {srd(CKV)}, s{sSA} offen{NTC} lds
          s_add_u32 s{sSA}, s{sSA}, s{sSC}
          s_add_u32 m0, m0, {PITCH}
          s_add_u32 s{sSN}, s{sSN}, 1
          s_cmp_lt_u32 s{sSN}, {lim}
          s_cbranch_scc1 {lab}''')
sloop('L_sl0', str(OPT['n0']))
if OPT['rev'] == 2:
    A(f's_cmp_eq_u32 s{sG}, 0\ns_cbranch_scc1 L_fwd')
    sadd(sSA, (sPAIR, 17), (sV4, 15))
    A(f's_movk_i32 s{sSC}, 1024')
    A.label('L_fwd')
A(f's_lshl2_add_u32 s{sFS}, s{sR}, s{sWV}')
sadd(75, (sR, 6), (sWV, 3))
sadd(sP3, (sFS, 10), H3)
sadd(sP0, (sX8, 13), (sFS, 7), H4A)
A(f'''s_cmp_lg_u32 s{sG}, 0
      s_cbranch_scc1 L_nrp
      buffer_load_dwordx2 {vr(XH,2)}, v{aX}, {srd(X)}, s75 offen
      s_mov_b64 exec, 1
      buffer_load_dword v236, v{aL16}, {srd(WS)}, s{sP0} offen sc1
      s_mov_b64 exec, -1''')
A.label('L_nrp')
common_addr()
A(f'''v_mul_u32_u24 v8, {PITCH}, v{vI}
      v_add_u32 v{aMXr}, {L_MAX}, v8
      s_lshl_b32 s{sA}, s{sV4}, 2
      v_add_u32 v{aMXw}, s{sA}, v{aMXr}
      v_lshl_add_u32 v8, v{vQ}, 4, v8
      s_mul_i32 s{sA}, s{sV4}, {32*PITCH}
      v_add_u32 v{aKF}, s{sA}, v8
      v_add_u32 v{aQF}, {L_R}, v8
      s_lshl_b32 s{sA}, s{sV4}, 10
      v_add_u32 v{aPw}, s{sA}, v{aP}
      v_mov_b32 v9, -1
      v_mov_b32 v8, {L_PROG}''')
for k in range(4): A(f'v_mov_b32 v{ONES+k}, s{sONES}')
sadd(sHSST, (sG, 15), (sPAIR, 8), HS)
make_tag()
A(f'''s_cmp_lg_u32 s{sWV}, 3
      s_cbranch_scc1 L_noann
      v_mov_b32 v14, s{sXCC}
      s_lshr_b32 s{sC}, s2, 3''')
sadd(sA, (sX8, 8), (sC, 3), HX)
A(f'''s_mov_b64 exec, 1
      buffer_store_dwordx2 v[14:15], v{aL16}, {srd(WS)}, s{sA} offen sc1
      s_mov_b64 exec, -1''')
A.label('L_noann')
A(f'v_mov_b32 v14, s{sT}')
stamp(28)
if DEBUG: A(f'v_writelane_b32 v{vSTAMP}, s96, 32\nv_writelane_b32 v{vSTAMP}, s98, 33\nv_writelane_b32 v{vSTAMP}, s100, 34')
A(f's_cmp_eq_u32 s{sG}, 0\ns_cselect_b32 s87, {OPT["prog0"]}, {OPT["prog1"]}')
sloop('L_sl1', 's87', OPT['inf1'])
A('ds_write_b32 v8, v9')
stamp(5)
sloop('L_sl2', '32', OPT['inf2'])
stamp(6)
ow_tags()
A('s_waitcnt vmcnt(16)')
for s in range(16): A(f'ds_read_b128 {vr(KF0+4*s,4)}, v{aKF} offset:{64*s}')
if OPT['t0first']:
    lds_wait(L_QFLAG, 4, 244, sleep=OPT['qsl'])
    stamp(8)
    for s in range(16): A(f'ds_read_b128 {vr(QF+4*s,4)}, v{aQF} offset:{64*s}')
    for s in range(16):
        A(f's_waitcnt lgkmcnt({15-s})')
        mfma32(SA, KF0 + 4 * s, QF + 4 * s, '0' if s == 0 else None)
    A('s_waitcnt vmcnt(0)')
    stamp(7)
    for s in range(16): A(f'ds_read_b128 {vr(KF1+4*s,4)}, v{aKF} offset:{16*PITCH + 64*s}')
    for s in range(16):
        A(f's_waitcnt lgkmcnt({15-s})')
        mfma32(SA + 4, KF1 + 4 * s, QF + 4 * s, '0' if s == 0 else None)
else:
    A('s_waitcnt vmcnt(0)')
    stamp(7)
    for s in range(16): A(f'ds_read_b128 {vr(KF1+4*s,4)}, v{aKF} offset:{16*PITCH + 64*s}')
    lds_wait(L_QFLAG, 4, 244, sleep=OPT['qsl'])
    stamp(8)
    for s in range(16): A(f'ds_read_b128 {vr(QF+4*s,4)}, v{aQF} offset:{64*s}')
    for s in range(16):
        A(f's_waitcnt lgkmcnt({15-s})')
        mfma32(SA, KF0 + 4 * s, QF + 4 * s, '0' if s == 0 else None)
        mfma32(SA + 4, KF1 + 4 * s, QF + 4 * s, '0' if s == 0 else None)
A(f'v_max3_f32 v{vM}, v{SA}, v{SA+1}, v{SA+2}\nv_max_f32 v{vM}, v{vM}, v{SA+3}')
A(f'v_max3_f32 v{vM}, v{vM}, v{SA+4}, v{SA+5}\nv_max3_f32 v{vM}, v{vM}, v{SA+6}, v{SA+7}')
swap_red(vM, 13, 'v_max_f32', 16)
swap_red(vM, 13, 'v_max_f32', 32)
stamp(23)
A(f'''ds_write_b32 v{aMXw}, v{vM}
      s_waitcnt lgkmcnt(0)
      s_barrier
      ds_read_b128 v[244:247], v{aMXr}''')
v_reads(0)
A(f'''s_waitcnt lgkmcnt(8)
      v_max3_f32 v{vM}, v244, v245, v246
      v_max_f32 v{vM}, v{vM}, v247''')
for k in range(8): A(f'v_sub_f32 v{SA+k}, v{SA+k}, v{vM}')
for k in range(8): A(f'v_exp_f32 v{SA+k}, v{SA+k}')
for k in range(4): A(f'v_cvt_pk_bf16_f32 v{244+k}, v{SA+2*k}, v{SA+2*k+1}')
A(f'ds_write_b128 v{aPw}, v[244:247]\ns_waitcnt lgkmcnt(0)\ns_barrier')
stamp(10)
p_reads()
v_reads(1)
A(f's_cmp_lg_u32 s{sWV}, 0')
for s in range(4):
    A(f's_waitcnt lgkmcnt({[11, 8, 8, 0][s]})')
    for ct in range(4): mfma32(PA + 4 * ct, VF + (s * 4 + ct) * 4, PF + 4 * s, '0' if s == 0 else None)
    if s == 0:
        A('s_waitcnt lgkmcnt(7)')
        v_reads(2)
        A('s_cbranch_scc1 L_nol')
        for s2 in range(4): mfma32(LA, ONES, PF + 4 * s2, '0' if s2 == 0 else None)
        A.label('L_nol')
    if s == 1: v_reads(3)
    if s == 2 and not OPT['statlate']:
        A(f'''s_cbranch_scc1 L_nolse
              v_mov_b32 v13, v{LA}
              s_mov_b64 exec, 0xffff
              buffer_store_dwordx4 v[12:15], v{aL16}, {srd(WS)}, s{sHSST} offen sc1
              s_mov_b64 exec, -1''')
        A.label('L_nolse')
if OPT['statlate'] == 3:
    A(f'''s_cbranch_scc1 L_pvout
          v_mov_b32 v13, v{LA}
          s_mov_b64 exec, 0xffff
          buffer_store_dwordx4 v[12:15], v{aL16}, {srd(WS)}, s{sHSST} offen sc1
          s_mov_b64 exec, -1''')
A('s_branch L_pvout')

A.label('L_exit')
A('s_endpgm')

DOC = '''; ---------------------------------------------------------------------------------------------
; ---------------------------------------------------------------------------------------------'''
ref = open('cdna_kernels/%s.s.ref' % NAME).read().split('\n')
head = []
for ln in ref:
    if ln.startswith('; @launch'):
        head.append('; @launch grid=(256,1,1) block=(512,1,1) lds=%d' % LDS_BYTES); break
    head.append(ln)
out = '; opts: ' + ' '.join(sys.argv[2:]) + '\n' + '\n'.join(head) + '\n' + DOC + f"""
.amdgcn_target "amdgcn-amd-amdhsa--gfx950"
.text
.globl {NAME}_kernel
.p2align 8
.type {NAME}_kernel,@function
{NAME}_kernel:
""" + A.text() + f""".section .rodata,"a"
.p2align 6
.amdhsa_kernel {NAME}_kernel
  .amdhsa_next_free_vgpr 256
  .amdhsa_next_free_sgpr 102
  .amdhsa_accum_offset 256
  .amdhsa_group_segment_fixed_size 0
  .amdhsa_kernarg_size 104
  .amdhsa_user_sgpr_count 2
  .amdhsa_user_sgpr_kernarg_segment_ptr 1
  .amdhsa_system_sgpr_workgroup_id_x 1
.end_amdhsa_kernel
"""
out = out.replace('CODE_BYTES', 'L_exit-L_pc')
open(sys.argv[1], 'w').write(out)
```
